```python
import torch

def _softmax(x, axis=-1):
    return torch.softmax(x, dim=axis)

def _gelu(x):
    return torch.nn.functional.gelu(x, approximate='tanh')

def _silu(x):
    return torch.nn.functional.silu(x)

def _sigmoid(x):
    return torch.sigmoid(x)

def _layernorm(x, axis=-1, eps=1e-05):
    m = x.mean(dim=axis, keepdim=True)
    v = x.var(dim=axis, keepdim=True, unbiased=False)
    return (x - m) / torch.sqrt(v + eps)

def _scatter_add(tgt, idx, src, axis=0):
    return tgt.clone().index_add_(axis, idx, src)

def _segment_sum(src, seg, n):
    out = torch.zeros((n,) + src.shape[1:], dtype=src.dtype)
    return out.index_add_(0, seg, src)

def _pad(x, pw):
    flat = tuple((v for pair in reversed(pw) for v in pair))
    return torch.nn.functional.pad(x, flat)
kernel_name = 'interleave_layers__memory_aug_recurrent_mem_tr__dense_activation_relu__prompt'

def setup_inputs():

    _w = lambda a: (lambda t: t.to(torch.bfloat16) if t.is_floating_point() else t)(torch.as_tensor(a))

    def _A_setup():
        B, S, Dm = (1, 2048, 640)
        H, Dh = (32, 192)
        M, seg = (8, 32)
        seg = min(seg, S)
        S = S // seg * seg
        return {'x': _w((lambda *s: torch.randn(*s, dtype=torch.bfloat16) * 0.05)(B, S, Dm)), 'mem0': _w((lambda *s: torch.randn(*s, dtype=torch.bfloat16) * 0.8)(B, M, Dm)), 'Wq': _w((lambda *s: torch.randn(*s, dtype=torch.bfloat16) * 0.8)(Dm, H, Dh) * Dm ** (-0.5)), 'Wk': _w((lambda *s: torch.randn(*s, dtype=torch.bfloat16) * 0.8)(Dm, H, Dh) * Dm ** (-0.5)), 'Wv': _w((lambda *s: torch.randn(*s, dtype=torch.bfloat16) * 0.8)(Dm, H, Dh) * Dm ** (-0.5)), 'Wo': _w((lambda *s: torch.randn(*s, dtype=torch.bfloat16) * 0.8)(H, Dh, Dm) * (H * Dh) ** (-0.5)), 'seg_len': seg}
    _A_in = _A_setup()

    def _B_setup():
        B, S, D, Dff = (1, 2048, 640, 1536)
        return {'x': _w((lambda *s: torch.randn(*s, dtype=torch.bfloat16) * 0.05)(B, S, D)), 'w1': _w((lambda *s: torch.randn(*s, dtype=torch.bfloat16) * 0.05)(D, Dff)), 'w2': _w((lambda *s: torch.randn(*s, dtype=torch.bfloat16) * 0.05)(Dff, D))}
    _B_in = _B_setup()
    return {'A_x': _A_in['x'], 'A_mem0': _A_in['mem0'], 'A_Wq': _A_in['Wq'], 'A_Wk': _A_in['Wk'], 'A_Wv': _A_in['Wv'], 'A_Wo': _A_in['Wo'], 'A_seg_len': _A_in['seg_len'], 'B_x': _B_in['x'], 'B_w1': _B_in['w1'], 'B_w2': _B_in['w2']}

def reference(A_x, A_mem0, A_Wq, A_Wk, A_Wv, A_Wo, A_seg_len, B_x, B_w1, B_w2):

    def _A_ref(x, mem0, Wq, Wk, Wv, Wo, seg_len):
        B, S, Dm = x.shape
        H, Dh = (Wq.shape[1], Wq.shape[2])
        M = mem0.shape[1]
        scale = Dh ** (-0.5)
        n_seg = S // seg_len
        L = M + seg_len
        idx = torch.arange(L)
        mask = (idx[:, None] < M) | (idx[:, None] >= idx[None, :])
        mem = mem0
        outs = []
        for s in range(n_seg):
            xs = x[:, s * seg_len:(s + 1) * seg_len, :].clone()
            h = torch.concatenate([mem, xs], axis=1)
            q = torch.einsum('btd,dhe->bhte', h, Wq)
            k = torch.einsum('btd,dhe->bhte', h, Wk)
            v = torch.einsum('btd,dhe->bhte', h, Wv)
            scores = torch.einsum('bhqe,bhke->bhqk', q, k) * scale
            scores = torch.where(mask[None, None], scores, -1000000000.0)
            p = _softmax(scores, axis=-1)
            o = torch.einsum('bhqk,bhke->bhqe', p, v)
            o = torch.einsum('bhte,hed->btd', o, Wo)
            mem = o[:, :M, :].clone()
            outs.append(o[:, M:, :])
        return torch.concatenate(outs, axis=1)

    def _B_ref(x, w1, w2):
        h = torch.einsum('bsd,df->bsf', x, w1)
        zero = torch.zeros_like(h)
        h = torch.maximum(h, zero)
        return torch.einsum('bsf,fd->bsd', h, w2)
    x = A_x
    x = x + _A_ref(_layernorm(x, axis=-1), A_mem0, A_Wq, A_Wk, A_Wv, A_Wo, A_seg_len)
    x = x + _B_ref(_layernorm(x, axis=-1), B_w1, B_w2)
    x = x + _A_ref(_layernorm(x, axis=-1), A_mem0, A_Wq, A_Wk, A_Wv, A_Wo, A_seg_len)
    x = x + _B_ref(_layernorm(x, axis=-1), B_w1, B_w2)
    return x
```

```python
import re

TRANS = ('v_exp_f32', 'v_log_f32', 'v_rcp_f32', 'v_rsq_f32', 'v_sqrt_f32', 'v_sin_f32', 'v_cos_f32')
RMW_DST = ('v_fmac_f32', 'v_pk_fmac', 'v_dot2c')


def regs_of(tok):
    tok = tok.strip()
    tok = re.sub(r'^-', '', tok)
    m = re.match(r'^(?:abs|neg)\((.*)\)$', tok)
    if m:
        tok = m.group(1)
    tok = tok.strip('|')
    m = re.match(r'^([vas])\[(\d+):(\d+)\]$', tok)
    if m:
        return [(m.group(1), i) for i in range(int(m.group(2)), int(m.group(3)) + 1)]
    m = re.match(r'^([vas])(\d+)$', tok)
    if m:
        return [(m.group(1), int(m.group(2)))]
    if tok == 'vcc':
        return [('s', 106), ('s', 107)]
    if tok == 'vcc_lo':
        return [('s', 106)]
    if tok == 'vcc_hi':
        return [('s', 107)]
    if tok == 'exec':
        return [('s', 126), ('s', 127)]
    if tok == 'm0':
        return [('s', 124)]
    return []


class Ins:
    def __init__(self, text):
        self.text = text
        t = text.split(';')[0].strip()
        self.label = None
        self.op = None
        self.reads, self.writes = set(), set()
        self.target = None
        self.srcc = set()
        self.srcab = set()
        self.stdata = set()
        if not t or t.startswith('.'):
            self.kind = 'dir'
            return
        if t.endswith(':'):
            self.kind = 'label'
            self.label = t[:-1]
            return
        parts = t.split(None, 1)
        op = parts[0]
        self.op = op
        rest = parts[1] if len(parts) > 1 else ''
        ops = [o.strip() for o in rest.split(',')] if rest else []
        mods = ''
        if ops:
            sp = ops[-1].split(None, 1)
            ops[-1] = sp[0]
            mods = sp[1] if len(sp) > 1 else ''
        self.mods = mods
        R = lambda i: set(regs_of(ops[i])) if i < len(ops) else set()
        allr = lambda a: set().union(*[R(i) for i in range(a, len(ops))]) if len(ops) > a else set()
        self.dpp = '_dpp' in op or 'row_' in mods or 'quad_perm' in mods
        if op.startswith('v_mfma'):
            self.kind = 'mfma'
            self.writes = R(0)
            self.srcab = R(1) | R(2)
            self.srcc = R(3)
            self.reads = self.srcab | self.srcc
            self.passes = 8 if '32x32' in op else 4
            self.dkey = tuple(sorted(self.writes))
            self.ckey = tuple(sorted(self.srcc))
        elif op.startswith('v_'):
            self.kind = 'valu'
            if op.startswith('v_cmp'):
                self.writes = R(0)
                self.reads = allr(1)
                if op.startswith('v_cmpx'):
                    self.writes |= set(regs_of('exec'))
            elif op.startswith('v_permlane') and 'swap' in op:
                self.writes = R(0) | R(1)
                self.reads = R(0) | R(1)
            elif op.startswith(('v_add_co', 'v_sub_co', 'v_addc_co', 'v_subb_co')):
                self.writes = R(0) | R(1)
                self.reads = allr(2)
            else:
                self.writes = R(0)
                self.reads = allr(1)
                if op.startswith(RMW_DST) or self.dpp or op.startswith('v_writelane'):
                    self.reads |= R(0)
                if op.startswith('v_cndmask') and len(ops) == 3:
                    self.reads |= set(regs_of('vcc'))
            self.trans = op.replace('_e32', '').replace('_e64', '') in TRANS
        elif op.startswith('buffer_') or op.startswith('global_'):
            self.kind = 'vmem'
            lds = ' lds' in (' ' + mods)
            self.lds = lds
            if op.startswith('buffer_load'):
                if lds:
                    self.reads = allr(0) | set(regs_of('m0'))
                else:
                    self.writes = R(0)
                    self.reads = allr(1)
            elif op.startswith('buffer_store'):
                self.reads = allr(0)
                if 'x3' in op or 'x4' in op:
                    self.stdata = R(0)
            elif op.startswith('buffer_atomic'):
                self.reads = allr(0)
                if 'sc0' in mods:
                    self.writes = R(0)
            elif op.startswith('buffer_inv') or op.startswith('buffer_wbl2'):
                pass
            else:
                raise ValueError('unhandled vmem ' + text)
        elif op.startswith('ds_'):
            self.kind = 'ds'
            if op.startswith('ds_read') or '_rtn_' in op or op.startswith('ds_bpermute') or op.startswith('ds_swizzle'):
                self.writes = R(0)
                self.reads = allr(1)
            else:
                self.reads = allr(0)
        elif op.startswith('s_'):
            self.kind = 'salu'
            if op in ('s_branch',) or op.startswith('s_cbranch'):
                self.kind = 'branch'
                self.target = ops[0]
            elif op.startswith(('s_cmp', 's_waitcnt', 's_barrier', 's_nop', 's_sleep', 's_endpgm', 's_setprio', 's_bitcmp')):
                self.reads = allr(0)
            else:
                self.writes = R(0)
                self.reads = allr(1)
                if op.startswith('s_bitset'):
                    self.reads |= R(0)
                if 'saveexec' in op:
                    self.writes |= set(regs_of('exec'))
        else:
            raise ValueError('unknown op ' + text)

    def states(self):
        if self.kind in ('dir', 'label'):
            return 0
        if self.op == 's_nop':
            return int(self.text.split(';')[0].split()[1], 0) + 1
        return 1


def isv(rs):
    return {r for r in rs if r[0] in 'va'}


def iss(rs):
    return {r for r in rs if r[0] == 's'}


def need(p, c):
    n = 0
    if p.kind == 'mfma':
        far = 12 if p.passes == 8 else 8
        ovl = 10 if p.passes == 8 else 6
        if c.kind == 'mfma':
            if p.writes & c.srcab:
                n = max(n, far)
            if p.writes & c.srcc:
                if not (p.dkey == c.ckey and p.passes == c.passes):
                    n = max(n, ovl)
            elif p.writes & c.writes:
                n = max(n, ovl)
        elif c.kind in ('valu', 'vmem', 'ds'):
            if p.writes & (c.reads | c.writes):
                n = max(n, far)
            if c.kind == 'valu' and (p.srcc & c.writes):
                n = max(n, 7 if p.passes == 8 else 3)
    elif p.kind == 'valu':
        vw = isv(p.writes)
        sw = iss(p.writes)
        if c.kind == 'mfma':
            if vw & c.reads:
                n = max(n, 2)
            if ('s', 126) in sw:
                n = max(n, 4)
        if c.kind == 'valu':
            if p.trans and not c.trans and (vw & c.reads):
                n = max(n, 1)
            if c.op.startswith('v_permlane') and (vw & c.reads):
                n = max(n, 2)
            if c.dpp and (vw & c.reads):
                n = max(n, 2)
            if c.op.startswith(('v_readfirstlane', 'v_readlane')) and (vw & c.reads):
                n = max(n, 1)
            if sw & c.reads:
                n = max(n, 4 if c.op.startswith(('v_readlane', 'v_writelane')) else 2)
            if ('s', 126) in sw and (c.dpp or c.op.startswith(('v_readfirstlane', 'v_readlane', 'v_permlane'))):
                n = max(n, 5)
        if c.kind == 'vmem' and (sw & c.reads):
            n = max(n, 5)
        if c.kind in ('salu', 'branch') and (sw & c.reads):
            n = max(n, 0)
    elif p.kind == 'salu':
        if ('s', 124) in p.writes and c.kind == 'vmem' and getattr(c, 'lds', False):
            n = max(n, 1)
    elif p.kind == 'vmem':
        if p.stdata and c.kind in ('valu', 'mfma', 'ds', 'vmem') and (p.stdata & c.writes):
            n = max(n, 2)
    return n


MAXD = 13


class Asm:
    def __init__(self):
        self.lines = []
        self.uid = 0

    def e(self, s):
        for l in s.split('\n'):
            l = l.strip()
            if l:
                self.lines.append(l)

    def __call__(self, s):
        self.e(s)

    def lab(self, base):
        self.uid += 1
        return 'L_%s_%d' % (base, self.uid)

    def pad(self):
        ins = [Ins(l) for l in self.lines]
        total = 0
        changed = True
        while changed:
            changed = False
            labels = {x.label: i for i, x in enumerate(ins) if x.kind == 'label'}
            jumps = {}
            for i, x in enumerate(ins):
                if x.kind == 'branch':
                    jumps.setdefault(x.target, []).append(i)
            out = []
            add = {}
            for i, c in enumerate(ins):
                if c.kind in ('dir', 'label') or c.op == 's_nop':
                    continue
                if c.kind not in ('mfma', 'valu', 'vmem', 'ds'):
                    continue
                worst = 0
                stack = [(i - 1, 0)]
                seen = {}
                while stack:
                    j, d = stack.pop()
                    while j >= 0 and d < MAXD:
                        if seen.get(j, 99) <= d:
                            break
                        seen[j] = d
                        p = ins[j]
                        if p.kind == 'label':
                            for b in jumps.get(p.label, []):
                                stack.append((b, d))
                            j -= 1
                            continue
                        if p.kind == 'dir':
                            j -= 1
                            continue
                        k = need(p, c)
                        if k > d:
                            worst = max(worst, k - d)
                        d += p.states()
                        j -= 1
                if worst:
                    add[i] = worst
            if add:
                changed = True
                new = []
                last = -999
                for i, x in enumerate(ins):
                    if i in add and i - last > MAXD + 2:
                        last = i
                        n = add[i]
                        total += n
                        while n > 0:
                            k = min(n, 16)
                            new.append(Ins('s_nop %d' % (k - 1)))
                            n -= k
                    new.append(x)
                ins = new
        self.lines = [x.text for x in ins]
        return total

    def text(self):
        out = []
        for l in self.lines:
            if l.endswith(':') or l.startswith('.') or l.startswith(';'):
                out.append(l)
            else:
                out.append('    ' + l)
        return '\n'.join(out) + '\n'
```

```python
import sys, os
sys.path.insert(0, os.path.dirname(os.path.abspath(__file__)))
from asmlib import Asm

NAME = 'interleave_layers__memory_aug_recurrent_mem_tr__dense_activation_relu__prompt'

P_LN1 = 0x0000
P_R1 = 0x0800
P_R2 = 0x0900
P_F = 0x0A00
P_OP = 0x1000
P_AT = 0x2000
P_QKV = 0x3000
P_CH = 0x4000
CH_AG, AG_C, AG_S = 0x10000, 0x14000, 20480
CH_S, S_C, S_S = 0xB0000, 0x24000, 36864
CH_O, O_C, O_S = 0x1D0000, 0x18000, 24576
CH_CR, CR_S = 0x290000, 327680
XN1, XA, XNA, XB, XN2, XC, XNC = 0x400000, 0x680000, 0x900000, 0xB80000, 0xE00000, 0x1080000, 0x1300000
XP1, XP2, XP_S = 0x1600000, 0x2280000, 327680
FP1, FP2, FP_S = 0x1B00000, 0x3680000, 491520
RING = 16
KMVM, KM_SEG, KM_HEAD = 0x5480000, 196608, 6144
QKV, QKV_SEG, QKV_HEAD = 0x6C80000, 1179648, 36864
QL2 = 64 * QKV_SEG
KL2 = 64 * KM_SEG
TS = 0xFD00000
TS2 = XP2
WS_BYTES = 0x10000000
SEGB = 40960

sCLS, sW, sSLOT, sSPIN, sFAST = 's3', 's4', 's5', 's6', 's7'
WS, DBG = 's[8:11]', 's[12:15]'
SRA, SRB, SRC, SRD = 's[44:47]', 's[48:51]', 's[52:55]', 's[56:59]'
PTR = dict(x=16, mem0=18, wq=20, wk=22, wv=24, wo=26, w1=32, w2=34, out=36, dbg=38, ws=40)
NBYTES = dict(x=2621440, mem0=10240, wq=7864320, wk=7864320, wv=7864320, wo=7864320,
              w1=1966080, w2=1966080, out=2621440)
SCALE_LOG2E = (192 ** -0.5) * 1.4426950408889634


def f2u(x):
    import struct
    return struct.unpack('<I', struct.pack('<f', x))[0]


def v(i, n=1):
    return 'v%d' % i if n == 1 else 'v[%d:%d]' % (i, i + n - 1)


def a(i, n=1):
    return 'a%d' % i if n == 1 else 'a[%d:%d]' % (i, i + n - 1)


def s(i, n=1):
    return 's%d' % i if n == 1 else 's[%d:%d]' % (i, i + n - 1)


class Gen:
    def __init__(self, L=6, A=10, roles='all', diag=False, nsteps=None, force_slow=False, opt=None):
        self.A = Asm()
        self.L = L
        self.AH = A
        self.roles = roles
        self.diag = diag
        self.nsteps = nsteps if nsteps is not None else 64 + L
        self.force_slow = force_slow
        self.opt = dict(cdelay=8, agdelay=0, helper=1, agsleep=0, rq=8, intra=1)
        self.opt.update(opt or {})

    def on(self, r):
        return self.roles == 'all' or r in self.roles.split(',')

    def srd(self, dst, name):
        e = self.A.e
        b = int(dst[2:dst.index(':')])
        p = PTR[name]
        e(f's_mov_b32 s{b}, s{p}')
        e(f's_and_b32 s{b+1}, s{p+1}, 0xffff')
        e(f's_mov_b32 s{b+2}, {NBYTES[name]}')
        e(f's_mov_b32 s{b+3}, 0x20000')

    def spin(self, back, sleep=0):
        e = self.A.e
        if sleep:
            e(f's_sleep {sleep}')
        e(f's_sub_u32 {sSPIN}, {sSPIN}, 1')
        e(f's_cbranch_scc0 {back}')
        e('s_branch L_fail')

    def poll(self, vt, voff, soff, need, sleep=1, imm=0):
        e = self.A.e
        l0, l1 = self.A.lab('poll'), self.A.lab('pok')
        e(f'{l0}:')
        e(f'buffer_load_dword {vt}, {voff}, {WS}, {soff} offen offset:{imm} sc1')
        e('s_waitcnt vmcnt(0)')
        e(f'v_cmp_gt_u32 vcc, {need}, {vt}')
        e(f's_cbranch_vccz {l1}')
        self.spin(l0, sleep)
        e(f'{l1}:')

    def st_mode(self, text):
        e = self.A.e
        lines = text if isinstance(text, list) else [text]
        l0, l1 = self.A.lab('sl'), self.A.lab('sd')
        e(f's_cmp_eq_u32 {sFAST}, 0')
        e(f's_cbranch_scc1 {l0}')
        for t in lines:
            e(t)
        e(f's_branch {l1}')
        e(f'{l0}:')
        for t in lines:
            e(t + (' sc1' if t.startswith('buffer_store') else ''))
        e(f'{l1}:')

    def st_intra(self, lines):
        if self.opt['intra']:
            self.st_mode(lines)
        else:
            for t in lines:
                self.A.e(t + ' sc1')

    def signal(self, vt, soff, val, intra=False):
        e = self.A.e
        e(f'v_mov_b32 {vt}, {val}')
        e('s_mov_b64 exec, 1')
        if intra:
            self.st_mode(f'buffer_store_dword {vt}, off, {WS}, {soff}')
        else:
            e(f'buffer_store_dword {vt}, off, {WS}, {soff} sc1')
        e('s_mov_b64 exec, -1')

    def arrive(self):
        e = self.A.e
        l = self.A.lab('arr')
        e('s_waitcnt vmcnt(0)')
        e('s_barrier')
        e(f's_cmp_lg_u32 {sW}, 0')
        e(f's_cbranch_scc1 {l}')
        e('s_and_b32 s60, s2, 7')
        e('s_lshl_b32 s60, s60, 5')
        e('s_add_u32 s60, s60, 16')
        e('v_mov_b32 v1, 1')
        e('s_mov_b64 exec, 1')
        e(f'buffer_atomic_add v1, off, {DBG}, s60')
        e('s_mov_b64 exec, -1')
        e(f'{l}:')

    def wait_init(self, vt, vt2):
        e = self.A.e
        l0, l1 = self.A.lab('wi'), self.A.lab('wid')
        e(f'v_lshlrev_b32 {vt2}, 2, v0')
        e(f'{l0}:')
        e(f'buffer_load_dword {vt}, {vt2}, {DBG}, 0 offen sc1')
        e('s_waitcnt vmcnt(0)')
        e(f'v_cmp_ne_u32 vcc, 32, {vt}')
        e('s_mov_b32 s60, 0x10101010')
        e('s_mov_b32 s61, 0x10101010')
        e('s_and_b64 s[62:63], vcc, s[60:61]')
        e(f's_cbranch_scc0 {l1}')
        self.spin(l0, 2)
        e(f'{l1}:')
        e('s_mov_b32 s60, 0x01010101')
        e('s_mov_b32 s61, 0x01010101')
        e('s_and_b64 s[62:63], vcc, s[60:61]')
        e(f's_cselect_b32 {sFAST}, 0, 1')
        if self.force_slow:
            e(f's_mov_b32 {sFAST}, 0')

    def trl(self, items, vaddr, vtmp):
        e = self.A.e
        base = None
        for dst, off in items:
            b = (off // 65536) * 65536 if off >= 65536 else 0
            if off - b > 65535:
                raise ValueError
            if b == 0:
                e(f'ds_read_b64_tr_b16 {dst}, {vaddr} offset:{off}')
            else:
                if base != b:
                    e(f'v_add_u32 {vtmp}, {b}, {vaddr}')
                    base = b
                e(f'ds_read_b64_tr_b16 {dst}, {vtmp} offset:{off - b}')

    def dma(self, n, voff, srd, ssoff, sstep, m0step=1024, sc1=False):
        e = self.A.e
        for i in range(n):
            e(f'buffer_load_dwordx4 {voff}, {srd}, {ssoff} offen{" sc1" if sc1 else ""} lds')
            if i + 1 < n:
                e(f's_add_u32 m0, m0, {m0step}')
                e(f's_add_u32 {ssoff}, {ssoff}, {sstep}')

    def stamp(self, idx, real=False):
        if not self.diag:
            return
        e = self.A.e
        e('s_memrealtime s[98:99]' if real else 's_memtime s[98:99]')
        e('s_waitcnt lgkmcnt(0)')
        e(f'v_writelane_b32 v14, s98, {idx}')

    def note(self, idx, sreg):
        if self.diag:
            self.A.e(f'v_writelane_b32 v14, {sreg}, {idx}')

    def flush(self):
        if not self.diag:
            return
        e = self.A.e
        e('v_lshlrev_b32 v15, 2, v0')
        e('s_mov_b64 exec, 0xffff')
        e(f'buffer_store_dword v14, v15, {WS}, s97 offen')
        e('s_mov_b64 exec, -1')
        e('s_add_u32 s97, s97, 64')

    def rowstat(self, val, tmp):
        e = self.A.e
        for r in (8, 4, 2, 1):
            e(f'v_add_f32_dpp {val}, {val}, {val} row_ror:{r} row_mask:0xf bank_mask:0xf')
        e(f'v_mov_b32 {tmp}, {val}')
        e(f'v_permlane16_swap_b32 {tmp}, {val}')
        e(f'v_add_f32 {val}, {val}, {tmp}')

    def bfround(self, r, ):
        e = self.A.e
        e(f'v_cvt_pk_bf16_f32 {r}, {r}, {r}')
        e(f'v_and_b32 {r}, 0xffff0000, {r}')

    def ln_pair(self, X, OUT, T):
        e = self.A.e
        t0, t2, t4 = T, T + 2, T + 4
        e(f'v_pk_add_f32 {v(t0,2)}, {v(X,2)}, {v(X+2,2)}')
        e(f'v_pk_add_f32 {v(t2,2)}, {v(X+4,2)}, {v(X+6,2)}')
        for k in range(8, 20, 4):
            e(f'v_pk_add_f32 {v(t0,2)}, {v(t0,2)}, {v(X+k,2)}')
            e(f'v_pk_add_f32 {v(t2,2)}, {v(t2,2)}, {v(X+k+2,2)}')
        e(f'v_pk_add_f32 {v(t0,2)}, {v(t0,2)}, {v(t2,2)}')
        e(f'v_add_f32 {v(t0)}, {v(t0)}, {v(t0+1)}')
        self.rowstat(v(t0), v(t0 + 1))
        e(f'v_mul_f32 {v(t0)}, {f2u(-1.0/640):#x}, {v(t0)}')
        e(f'v_mov_b32 {v(t0+1)}, {v(t0)}')
        e(f'v_pk_add_f32 {v(t4,2)}, {v(X,2)}, {v(t0,2)}')
        e(f'v_pk_mul_f32 {v(t2,2)}, {v(t4,2)}, {v(t4,2)}')
        for k in range(2, 20, 2):
            e(f'v_pk_add_f32 {v(t4,2)}, {v(X+k,2)}, {v(t0,2)}')
            e(f'v_pk_fma_f32 {v(t2,2)}, {v(t4,2)}, {v(t4,2)}, {v(t2,2)}')
        e(f'v_add_f32 {v(t2)}, {v(t2)}, {v(t2+1)}')
        self.rowstat(v(t2), v(t2 + 1))
        e(f'v_mul_f32 {v(t2)}, {f2u(1.0/640):#x}, {v(t2)}')
        self.bfround(v(t2))
        e(f'v_add_f32 {v(t2)}, {f2u(1e-5):#x}, {v(t2)}')
        self.bfround(v(t2))
        e(f'v_sqrt_f32 {v(t2)}, {v(t2)}')
        self.bfround(v(t2))
        e(f'v_rcp_f32 {v(t2)}, {v(t2)}')
        self.bfround(v(t0))
        e(f'v_mov_b32 {v(t0+1)}, {v(t0)}')
        e(f'v_mov_b32 {v(t2+1)}, {v(t2)}')
        for k in range(0, 20, 2):
            e(f'v_pk_add_f32 {v(t4,2)}, {v(X+k,2)}, {v(t0,2)}')
            e(f'v_pk_mul_f32 {v(t4,2)}, {v(t4,2)}, {v(t2,2)}')
            e(f'v_cvt_pk_bf16_f32 {v(OUT+k//2)}, {v(t4)}, {v(t4+1)}')

    def rowlane_addr(self, dst, tmp):
        e = self.A.e
        e(f'v_lshrrev_b32 {dst}, 5, v0')
        e(f'v_mul_u32_u24 {dst}, 1280, {dst}')
        e(f'v_and_b32 {tmp}, 15, v0')
        e(f'v_lshl_add_u32 {dst}, {tmp}, 4, {dst}')
        e(f'v_bfe_u32 {tmp}, v0, 4, 1')
        e(f'v_lshl_add_u32 {dst}, {tmp}, 3, {dst}')

    def unpack(self, dst, src, n):
        e = self.A.e
        for k in range(n):
            e(f'v_lshlrev_b32 {v(dst+2*k)}, 16, {v(src+k)}')
            e(f'v_and_b32 {v(dst+2*k+1)}, 0xffff0000, {v(src+k)}')

    def ln1_phase(self):
        e = self.A.e
        self.srd(SRA, 'x')
        e(f's_sub_u32 s64, {sSLOT}, 21')
        e('s_lshl_b32 s64, s64, 2')
        e(f's_add_u32 s64, s64, {sW}')
        self.rowlane_addr('v2', 'v3')
        e('v_mov_b32 v4, 0')
        e('s_mov_b64 exec, 1')
        e('s_lshl_b32 s65, s64, 5')
        e(f's_lshl_b32 s66, {sCLS}, 2')
        e('s_add_u32 s65, s65, s66')
        e(f'buffer_store_dword v4, off, {WS}, s65 offset:{P_LN1} sc1')
        e('s_cmp_ge_u32 s64, 20')
        l = self.A.lab('z2')
        e(f's_cbranch_scc1 {l}')
        e(f'buffer_store_dword v4, off, {WS}, s65 offset:{P_LN1 + 44*32} sc1')
        e(f'{l}:')
        e('s_mov_b64 exec, -1')

    def ln1_items(self):
        e = self.A.e
        lp, done = self.A.lab('ln1'), self.A.lab('ln1d')
        e(f's_mul_i32 s66, {sCLS}, 5120')
        e(f'{lp}:')
        e(f's_mul_i32 s67, s64, {SEGB}')
        e('s_add_u32 s67, s67, s66')
        for p in range(2):
            for cg in range(5):
                e(f'buffer_load_dwordx2 {v(16+10*p+2*cg,2)}, v2, {SRA}, s67 offen offset:{p*2560+cg*256}')
        e(f's_add_u32 s68, s67, {XN1}')
        for p in range(2):
            e(f's_waitcnt vmcnt({5 if p == 0 else 5})')
            if p == 1:
                e('s_waitcnt vmcnt(5)')
            self.unpack(40, 16 + 10 * p, 10)
            self.ln_pair(40, 60 + 10 * p, 8)
            for cg in range(5):
                e(f'buffer_store_dwordx2 {v(60+10*p+2*cg,2)}, v2, {WS}, s68 offen offset:{p*2560+cg*256} sc1')
        e('s_waitcnt vmcnt(0)')
        e(f's_add_u32 s68, s65, {P_LN1}')
        self.signal('v4', 's68', 1)
        e('s_cmp_ge_u32 s64, 20')
        e(f's_cbranch_scc1 {done}')
        e('s_add_u32 s64, s64, 44')
        e(f's_add_u32 s65, s65, {44*32}')
        e(f's_branch {lp}')
        e(f'{done}:')

    def xn_consts(self, vdma, vrd):
        e = self.A.e
        e('v_lshrrev_b32 v1, 3, v0')
        e('v_and_b32 v2, 7, v0')
        e('v_xor_b32 v2, v2, v1')
        e(f's_and_b32 s60, {sW}, 1')
        e('v_xor_b32 v2, s60, v2')
        e(f's_lshl_b32 s60, {sW}, 3')
        e('v_add_u32 v1, s60, v1')
        e('v_mul_u32_u24 v1, 1280, v1')
        e(f'v_lshl_add_u32 {v(vdma)}, v2, 4, v1')
        e('v_bfe_u32 v1, v0, 3, 2')
        e('v_and_b32 v2, 7, v0')
        e('v_mul_u32_u24 v3, 10240, v1')
        e('v_lshl_add_u32 v3, v2, 7, v3')
        e('v_and_b32 v1, 1, v1')
        e('v_xor_b32 v2, v2, v1')
        e('v_lshrrev_b32 v1, 5, v0')
        e('v_xor_b32 v2, v2, v1')
        for q in range(4):
            e(f'v_xor_b32 v1, {2*q}, v2')
            e(f'v_lshl_add_u32 {v(vrd+q)}, v1, 4, v3')

    def xn_dma(self, vdma, ssoff, ldsbase):
        e = self.A.e
        e(f's_mul_i32 s60, {sW}, 10240')
        e(f's_add_u32 m0, s60, {ldsbase}')
        for cb in range(10):
            if cb:
                e('s_add_u32 m0, m0, 896')
            e(f'buffer_load_dwordx4 {v(vdma)}, {WS}, {ssoff} offen offset:{cb*128} sc1 lds')

    def tile_out(self, acc, pk, vw, vr, vg, soff, imm, relu=False):
        e = self.A.e
        for j in range(8):
            e(f'v_cvt_pk_bf16_f32 {v(pk+j)}, {v(acc+2*j)}, {v(acc+2*j+1)}')
        for j in range(4):
            e(f'ds_write_b64 {v(vw)}, {v(pk+2*j,2)} offset:{16*j}')
        e('s_waitcnt lgkmcnt(0)')
        e(f'ds_read_b128 {v(pk+8,4)}, {v(vr)}')
        e(f'ds_read_b128 {v(pk+12,4)}, {v(vr)} offset:1280')
        e('s_waitcnt lgkmcnt(1)')
        e(f'buffer_store_dwordx4 {v(pk+8,4)}, {v(vg)}, {WS}, {soff} offen offset:{imm} sc1')
        e('s_waitcnt lgkmcnt(0)')
        e(f'buffer_store_dwordx4 {v(pk+12,4)}, {v(vg+1)}, {WS}, {soff} offen offset:{imm} sc1')

    def tile_out_consts(self, vw, vr, vg, ldsbase):
        e = self.A.e
        e(f's_mul_i32 s60, {sW}, 2560')
        e(f's_add_u32 s60, s60, {ldsbase}')
        e('v_and_b32 v1, 31, v0')
        e('v_mul_u32_u24 v1, 80, v1')
        e('v_lshrrev_b32 v2, 5, v0')
        e('v_lshl_add_u32 v1, v2, 3, v1')
        e(f'v_add_u32 {v(vw)}, s60, v1')
        e('v_lshrrev_b32 v1, 2, v0')
        e('v_and_b32 v2, 3, v0')
        e('v_mul_u32_u24 v3, 80, v1')
        e('v_lshl_add_u32 v3, v2, 4, v3')
        e(f'v_add_u32 {v(vr)}, s60, v3')
        e('v_mul_u32_u24 v3, 1280, v1')
        e(f'v_lshl_add_u32 {v(vg)}, v2, 4, v3')
        e(f'v_add_u32 {v(vg+1)}, 20480, {v(vg)}')

    def tr_lane(self, dst, rowmul_hf, pitch, extra_s=None):
        e = self.A.e
        e('v_lshrrev_b32 v1, 5, v0')
        e(f'v_mul_u32_u24 v1, {rowmul_hf}, v1')
        e('v_bfe_u32 v2, v0, 2, 2')
        e('v_add_u32 v1, v1, v2')
        e(f'v_mul_u32_u24 v1, {pitch}, v1')
        e('v_bfe_u32 v2, v0, 4, 1')
        e('v_lshl_add_u32 v1, v2, 5, v1')
        e('v_and_b32 v2, 3, v0')
        e(f'v_lshl_add_u32 {dst}, v2, 3, v1')
        if extra_s:
            e(f'v_add_u32 {dst}, {extra_s}, {dst}')

    def role_qkv(self):
        e = self.A.e
        A = self.A
        e('L_qkv:')
        e(f's_sub_u32 s64, {sSLOT}, 12')
        e('s_lshl_b32 s64, s64, 2')
        e(f's_add_u32 s64, s64, {sW}')
        e(f's_lshl_b32 s65, {sCLS}, 8')
        e('s_lshl_b32 s66, s64, 2')
        e('s_add_u32 s65, s65, s66')
        e(f's_add_u32 s65, s65, {P_QKV}')
        e('s_add_u32 s66, s65, 2048')
        e('v_mov_b32 v4, 0')
        e('s_mov_b64 exec, 1')
        e(f'buffer_store_dword v4, off, {WS}, s65 sc1')
        e(f'buffer_store_dword v4, off, {WS}, s66 sc1')
        e('s_mov_b64 exec, -1')
        self.arrive()
        e('s_mul_i32 s67, s64, 57')
        e('s_lshr_b32 s67, s67, 9')
        e('s_mul_i32 s68, s67, 9')
        e('s_sub_u32 s68, s64, s68')
        e('s_mul_i32 s69, s68, 11')
        e('s_lshr_b32 s69, s69, 5')
        e('s_mul_i32 s70, s69, 3')
        e('s_sub_u32 s70, s68, s70')
        e(f's_lshl_b32 s71, {sCLS}, 2')
        e('s_add_u32 s71, s71, s67')
        e('s_cmp_eq_u32 s69, 1')
        e(f's_cselect_b32 s44, s{PTR["wk"]}, s{PTR["wq"]}')
        e(f's_cselect_b32 s45, s{PTR["wk"]+1}, s{PTR["wq"]+1}')
        e('s_cmp_eq_u32 s69, 2')
        e(f's_cselect_b32 s44, s{PTR["wv"]}, s44')
        e(f's_cselect_b32 s45, s{PTR["wv"]+1}, s45')
        e('s_and_b32 s45, s45, 0xffff')
        e(f's_mov_b32 s46, {NBYTES["wq"]}')
        e('s_mov_b32 s47, 0x20000')
        e('s_mul_i32 s72, s71, 384')
        e('s_lshl_b32 s73, s70, 7')
        e('s_add_u32 s72, s72, s73')
        e('v_lshrrev_b32 v1, 3, v0')
        e('v_mul_u32_u24 v1, 12288, v1')
        e('v_and_b32 v2, 7, v0')
        e('v_lshl_add_u32 v5, v2, 4, v1')
        e('v_add_u32 v5, s72, v5')
        e(f's_mul_i32 s73, {sW}, 40960')
        self.tr_lane('v6', 8, 128, 's73')

        def W(tl, k, u):
            r = 160 * tl + 4 * k + 2 * u
            return a(r, 2) if r < 256 else v(192 + r - 256, 2)

        def Wf(tl, k):
            r = 160 * tl + 4 * k
            return a(r, 4) if r < 256 else v(192 + r - 256, 4)

        def chunk_dma(q):
            e(f's_add_u32 m0, s73, {(q & 1) * 20480}')
            e(f's_mov_b32 s74, {q * 160 * 12288}')
            self.dma(20, 'v5', SRA, 's74', 8 * 12288)

        chunk_dma(0)
        chunk_dma(1)
        for q in range(4):
            e(f's_waitcnt vmcnt({20 if q < 3 else 0})')
            items = []
            for k in range(10):
                for tl in range(2):
                    for u in range(2):
                        items.append((W(tl, 10 * q + k, u), (q & 1) * 20480 + k * 2048 + u * 512 + tl * 64))
            self.trl(items, 'v6', 'v7')
            e('s_waitcnt lgkmcnt(0)')
            if q < 2:
                chunk_dma(q + 2)
        VD, VR = 8, 10
        self.xn_consts(VD, VR)
        e('v_lshlrev_b32 v9, 4, v0')
        e('v_and_b32 v5, 7, v0')
        e('v_lshlrev_b32 v5, 2, v5')
        e(f's_mul_i32 s72, s71, {QKV_HEAD}')
        e('s_mul_i32 s73, s69, 12288')
        e('s_add_u32 s72, s72, s73')
        e('s_lshl_b32 s73, s70, 12')
        e('s_add_u32 s72, s72, s73')
        e(f's_add_u32 s72, s72, {QKV}')
        self.wait_init('v6', 'v7')
        e('s_barrier')
        if self.diag:
            e(f's_mul_i32 s97, {sCLS}, 36')
            e('s_add_u32 s97, s97, s64')
            e('s_lshl_b32 s97, s97, 13')
            e(f's_add_u32 s97, s97, {TS2}')
        RQ = self.opt['rq']
        e('v_min_u32 v7, 19, v0')
        e('v_lshlrev_b32 v7, 2, v7')
        e(f's_mul_i32 s82, {sCLS}, 80')
        e(f's_add_u32 s82, s82, {P_OP + 1024}')
        ACC, PK, BR = (16, 48), 80, 96
        sP1, sP2, sO = 's75', 's76', 's77'

        def compute(buf, acc, isV, mid=None):
            PF = 4
            for k in range(PF):
                e(f'ds_read_b128 {v(BR+4*(k%8),4)}, {v(VR+(k&3))} offset:{buf+(k>>2)*1024}')
            for k in range(40):
                if k + PF < 40:
                    kk = k + PF
                    e(f'ds_read_b128 {v(BR+4*(kk%8),4)}, {v(VR+(kk&3))} offset:{buf+(kk>>2)*1024}')
                e(f's_waitcnt lgkmcnt({min(PF, 39-k)})')
                b = v(BR + 4 * (k % 8), 4)
                for tl in range(2):
                    d = v(acc + 16 * tl, 16)
                    c = '0' if k == 0 else d
                    if isV:
                        e(f'v_mfma_f32_32x32x16_bf16 {d}, {b}, {Wf(tl,k)}, {c}')
                    else:
                        e(f'v_mfma_f32_32x32x16_bf16 {d}, {Wf(tl,k)}, {b}, {c}')
                if mid and k == 26:
                    mid()
            for tl in range(2):
                for j in range(8):
                    e(f'v_cvt_pk_bf16_f32 {v(PK+8*tl+j)}, {v(acc+16*tl+2*j)}, {v(acc+16*tl+2*j+1)}')
            self.st_intra([f'buffer_store_dwordx4 {v(PK+8*tl+4*h,4)}, v9, {WS}, {sO} offen offset:{tl*2048+h*1024}'
                           for tl in range(2) for h in range(2)])

        def body(isV):
            tag = 'v' if isV else 'q'
            e(f's_mov_b32 {sP1}, 0')
            e(f's_mov_b32 {sP2}, 0')
            e(f's_mov_b32 s78, {P_LN1}')
            self.poll('v4', 'v5', 's78', 1)
            e(f's_mov_b32 s79, {XN1}')
            self.xn_dma(VD, 's79', 0)
            lp = f'L_qkv_a_{tag}'
            e(f'{lp}:')
            for half in range(2):
                e('s_add_u32 s78, s78, 32')
                self.poll_keep('v4', 'v5', 's78', 1)
                e('s_barrier')
                e(f's_add_u32 s79, s79, {SEGB}')
                self.xn_dma(VD, 's79', 40960 * (1 - half))
                lz = A.lab('np')
                e(f's_cmp_eq_u32 {sP1}, 0')
                e(f's_cbranch_scc1 {lz}')
                self.signal('v4', 's65', sP1, intra=self.opt['intra'])
                e(f'{lz}:')
                e(f's_and_b32 {sO}, {sP1}, {RQ-1}')
                e(f's_mul_i32 {sO}, {sO}, {QKV_SEG}')
                e(f's_add_u32 {sO}, {sO}, s72')
                compute(40960 * half, ACC[half], isV)
                e(f's_add_u32 {sP1}, {sP1}, 1')
            e(f's_cmp_lt_u32 {sP1}, {self.AH}')
            e(f's_cbranch_scc1 {lp}')
            lp2, nop1, end = f'L_qkv_b_{tag}', A.lab('nop1'), A.lab('qend')
            e(f'{lp2}:')
            self.stamp(0)
            e('s_waitcnt vmcnt(0)')
            self.stamp(1)
            self.stamp(15, real=True)
            self.flush()
            self.signal('v4', 's65', sP1, intra=self.opt['intra'])
            if self.on('r'):
                if RQ < 64:
                    lb = A.lab('bp')
                    e(f's_cmp_lt_u32 {sP2}, {RQ}')
                    e(f's_cbranch_scc1 {lb}')
                    e(f's_sub_u32 s80, {sP2}, {RQ-1}')
                    self.poll('v4', 'v7', 's82', 's80')
                    e(f'{lb}:')
                e(f's_add_u32 s80, {sP2}, 1')
                e(f's_mov_b32 s81, {P_R2}')
                self.poll('v4', 'v5', 's81', 's80')
                e(f's_mul_i32 s81, {sP2}, {SEGB}')
                e(f's_add_u32 s81, s81, {XN2}')
                self.xn_dma(VD, 's81', 40960)
                e('s_waitcnt vmcnt(0)')
                e('s_barrier')
                e(f's_and_b32 s81, {sP2}, {RQ-1}')
                e('s_add_u32 s81, s81, 64')
                e(f's_mul_i32 {sO}, s81, {QKV_SEG}')
                e(f's_add_u32 {sO}, {sO}, s72')
                compute(40960, ACC[1], isV)
            else:
                e('s_barrier')
            self.stamp(2)
            e(f's_add_u32 {sP2}, {sP2}, 1')
            e(f's_cmp_ge_u32 {sP1}, 64')
            e(f's_cbranch_scc1 {nop1}')
            e(f's_and_b32 {sO}, {sP1}, {RQ-1}')
            e(f's_mul_i32 {sO}, {sO}, {QKV_SEG}')
            e(f's_add_u32 {sO}, {sO}, s72')

            def mid():
                e('s_waitcnt vmcnt(0)')
                self.signal('v4', 's66', sP2, intra=self.opt['intra'])
            compute(0, ACC[0], isV, mid)
            e(f's_add_u32 {sP1}, {sP1}, 1')
            self.stamp(3)
            e('s_barrier')
            self.stamp(4)
            e(f's_cmp_ge_u32 {sP1}, 64')
            e(f's_cbranch_scc1 {lp2}')
            e('s_add_u32 s78, s78, 32')
            self.poll_keep('v4', 'v5', 's78', 1)
            self.stamp(5)
            e(f's_add_u32 s79, s79, {SEGB}')
            self.xn_dma(VD, 's79', 0)
            e(f's_branch {lp2}')
            e(f'{nop1}:')
            e('s_waitcnt vmcnt(0)')
            self.signal('v4', 's66', sP2, intra=self.opt['intra'])
            e('s_barrier')
            e(f's_cmp_lt_u32 {sP2}, 64')
            e(f's_cbranch_scc1 {lp2}')
            e('s_endpgm')

        e('s_cmp_eq_u32 s69, 2')
        e('s_cbranch_scc1 L_qkv_v')
        body(False)
        e('L_qkv_v:')
        body(True)

    def poll_keep(self, vt, voff, soff, need):
        self.poll(vt, voff, soff, need)

    def role_chain(self):
        e = self.A.e
        A = self.A
        L = self.L
        e('L_chain:')
        sHH, sP, sTILE, sS = 's64', 's65', 's66', 's67'
        sAGr, sAGw, sAGz = 's68', 's69', 's70'
        sSw, sSz, sSa, sSb = 's71', 's72', 's73', 's74'
        sOw, sOz, sOr = 's75', 's76', 's77'
        sCw, sCz, sCa, sCb = 's78', 's79', 's80', 's81'
        sN1, sN2, sQ1, sQ2, sPF, sPCH = 's82', 's83', 's84', 's85', 's86', 's87'
        mL2, mINV, mT, mU = 's[88:89]', 's[90:91]', 's[92:93]', 's[94:95]'
        sHEAD = 's96'
        sK1, sK2 = 's42', 's43'
        e(f's_mul_i32 {sHH}, {sSLOT}, 11')
        e(f's_lshr_b32 {sHH}, {sHH}, 5')
        e(f's_mul_i32 s60, {sHH}, 3')
        e(f's_sub_u32 {sP}, {sSLOT}, s60')
        e(f's_lshl_b32 {sTILE}, {sSLOT}, 2')
        e(f's_add_u32 {sTILE}, {sTILE}, {sW}')
        e(f's_lshl_b32 {sHEAD}, {sCLS}, 2')
        e(f's_add_u32 {sHEAD}, {sHEAD}, {sHH}')
        vL16, vTW, vGA, vGO, vFL, vK, vV, vKM, vVM, vQW = 2, 3, 4, 5, 6, 7, 8, 9, 10, 11
        vMW, vOWL = 12, 13
        e(f'v_lshlrev_b32 {v(vL16)}, 4, v0')
        e('v_and_b32 v16, 15, v0')
        e('v_lshrrev_b32 v17, 4, v0')
        e('v_lshlrev_b32 v18, 5, v16')
        e(f'v_lshl_add_u32 {v(vTW)}, v17, 3, v18')
        e('v_lshrrev_b32 v19, 1, v17')
        e('v_and_b32 v20, 1, v17')
        e('v_lshl_add_u32 v18, v19, 9, v18')
        e('v_lshl_add_u32 v18, v20, 4, v18')
        e(f's_mul_i32 s60, {sW}, 5120')
        e(f'v_add_u32 {v(vGA)}, s60, v18')
        e(f'v_add_u32 {v(vMW)}, s60, {v(vL16)}')
        e(f's_mul_i32 s60, {sW}, 6144')
        e(f'v_add_u32 {v(vGO)}, s60, v18')
        e(f'v_add_u32 {v(vOWL)}, s60, {v(vL16)}')
        e(f's_mul_i32 s60, {sCLS}, {AG_C}')
        e(f's_add_u32 {sAGr}, s60, {CH_AG}')
        e(f's_lshl_b32 s61, {sTILE}, 9')
        e(f's_add_u32 {sAGw}, {sAGr}, s61')
        e(f's_mul_i32 s60, {sCLS}, {S_C}')
        e(f's_add_u32 s60, s60, {CH_S}')
        e(f's_lshl_b32 s61, {sW}, 10')
        e('s_add_u32 s60, s60, s61')
        e(f's_mul_i32 s61, {sSLOT}, 3072')
        e(f's_add_u32 {sSw}, s60, s61')
        e(f's_add_u32 s61, {sP}, 1')
        e('s_cmp_eq_u32 s61, 3')
        e('s_cselect_b32 s61, 0, s61')
        e(f's_mul_i32 s62, {sHH}, 3')
        e('s_add_u32 s63, s62, s61')
        e('s_mul_i32 s63, s63, 3072')
        e(f's_add_u32 {sSa}, s60, s63')
        e('s_add_u32 s61, s61, 1')
        e('s_cmp_eq_u32 s61, 3')
        e('s_cselect_b32 s61, 0, s61')
        e('s_add_u32 s63, s62, s61')
        e('s_mul_i32 s63, s63, 3072')
        e(f's_add_u32 {sSb}, s60, s63')
        e(f's_mul_i32 s60, {sCLS}, {O_C}')
        e(f's_add_u32 {sOr}, s60, {CH_O}')
        e(f's_lshl_b32 s61, {sTILE}, 9')
        e(f's_add_u32 {sOw}, {sOr}, s61')
        e(f's_lshl_b32 s60, {sTILE}, 13')
        e(f's_add_u32 {sCa}, s60, {CH_CR}')
        e(f's_lshl_b32 s61, {sCLS}, 10')
        e(f's_add_u32 {sCw}, {sCa}, s61')
        e(f's_lshl_b32 s60, {sCLS}, 8')
        e(f's_lshl_b32 s61, {sTILE}, 2')
        e('s_add_u32 s60, s60, s61')
        e(f's_add_u32 {sPCH}, s60, {P_CH}')
        for r in range(16, 20):
            e(f'v_mov_b32 v{r+8}, -1')
        SENT = 24
        e('v_mov_b32 v28, 0')
        e('s_mov_b64 exec, 1')
        e(f'buffer_store_dword v28, off, {WS}, {sPCH} sc1')
        e('s_mov_b64 exec, -1')
        for sl in range(2):
            e(f's_add_u32 s60, {sOw}, {sl*O_S}')
            e(f'buffer_store_dwordx2 {v(SENT,2)}, {v(vTW)}, {WS}, s60 offen sc1')
        l3 = A.lab('i3')
        e(f's_cmp_eq_u32 {sW}, 3')
        e(f's_cbranch_scc1 {l3}')
        for sl in range(2):
            e(f's_add_u32 s60, {sSw}, {sl*S_S}')
            e(f'buffer_store_dwordx4 {v(SENT,4)}, {v(vL16)}, {WS}, s60 offen sc1')
        e(f'{l3}:')
        l4 = A.lab('i4')
        e(f's_cmp_ge_u32 {sTILE}, 40')
        e(f's_cbranch_scc1 {l4}')
        for sl in range(2):
            e(f's_add_u32 s60, {sCw}, {sl*CR_S}')
            e(f'buffer_store_dwordx4 {v(SENT,4)}, {v(vL16)}, {WS}, s60 offen sc1')
            e(f's_add_u32 s60, {sAGw}, {(sl+1)*AG_S}')
            e(f'buffer_store_dwordx2 {v(SENT,2)}, {v(vTW)}, {WS}, s60 offen sc1')
        e(f'{l4}:')
        self.arrive()
        self.srd(SRA, 'wq')
        self.srd(SRB, 'wk')
        self.srd(SRC, 'wv')
        self.srd(SRD, 'wo')
        e('v_lshrrev_b32 v21, 3, v0')
        e('v_and_b32 v22, 7, v0')
        e(f's_mul_i32 s60, {sW}, 160')
        e('v_add_u32 v23, s60, v21')
        e('s_mov_b32 s61, 12288')
        e('v_mul_lo_u32 v30, s61, v23')
        e('v_lshl_add_u32 v30, v22, 4, v30')
        e(f's_mul_i32 s60, {sHEAD}, 384')
        e(f's_lshl_b32 s61, {sP}, 7')
        e('s_add_u32 s60, s60, s61')
        e('v_add_u32 v30, s60, v30')
        e(f's_min_u32 s61, {sSLOT}, 9')
        e('s_lshl_b32 s61, s61, 7')
        e(f's_mul_i32 s60, {sCLS}, {768*1280}')
        e('s_add_u32 s60, s60, s61')
        e('v_mul_u32_u24 v31, 1280, v23')
        e('v_lshl_add_u32 v31, v22, 4, v31')
        e('v_add_u32 v31, s60, v31')
        e(f's_lshl_b32 s61, {sW}, 5')
        e('v_add_u32 v23, s61, v21')
        e('v_mul_u32_u24 v32, 1280, v23')
        e('v_lshl_add_u32 v32, v22, 4, v32')
        e('v_add_u32 v32, s60, v32')
        e('v_bfe_u32 v21, v0, 2, 2')
        e('v_lshl_add_u32 v21, v17, 3, v21')
        e('v_lshlrev_b32 v21, 7, v21')
        e('v_bfe_u32 v22, v0, 1, 1')
        e('v_lshl_add_u32 v33, v22, 5, v21')
        e('v_and_b32 v22, 1, v0')
        e('v_lshl_add_u32 v33, v22, 3, v33')
        e(f's_lshr_b32 s60, {sW}, 1')
        e('s_lshl_b32 s60, s60, 6')
        e(f's_and_b32 s61, {sW}, 1')
        e('s_lshl_b32 s61, s61, 4')
        e('s_add_u32 s60, s60, s61')
        e('v_add_u32 v33, s60, v33')
        e('v_and_b32 v22, 3, v0')
        e('v_lshl_add_u32 v34, v22, 3, v21')
        e(f's_lshl_b32 s60, {sW}, 5')
        e('v_add_u32 v34, s60, v34')
        BA, BB = 0, 81920

        def Wo(k, n=4, u=0):
            r = 4 * k + 2 * u
            return a(240 + r, n) if r < 16 else v(176 + r - 16, n)

        def stage(voff, srd, step, buf, n, wstride, s0=0):
            e(f's_mul_i32 s60, {sW}, {wstride}')
            e(f's_add_u32 m0, s60, {buf}')
            e(f's_mov_b32 s61, {s0}')
            self.dma(n, voff, srd, 's61', step)

        def take(n_left, fn, vaddr, buf, ks):
            e(f's_waitcnt vmcnt({n_left})')
            e('s_barrier')
            items = []
            for kl, k in enumerate(ks):
                for u in range(2):
                    items.append((fn(k, u), buf + kl * 4096 + u * 512))
            self.trl(items, vaddr, 'v35')
            e('s_waitcnt lgkmcnt(0)')
            e('s_barrier')

        stage('v30', SRA, 8 * 12288, BA, 20, 20480)
        stage('v30', SRB, 8 * 12288, BB, 20, 20480)
        take(20, lambda k, u: a(4 * k + 2 * u, 2), 'v33', BA, range(20))
        stage('v30', SRC, 8 * 12288, BA, 20, 20480)
        take(20, lambda k, u: a(80 + 4 * k + 2 * u, 2), 'v33', BB, range(20))
        stage('v31', SRD, 8 * 1280, BB, 20, 20480)
        take(20, lambda k, u: a(160 + 4 * k + 2 * u, 2), 'v34', BA, range(20))
        stage('v32', SRD, 8 * 1280, BA, 4, 4096, 640 * 1280)
        take(4, lambda k, u: Wo(k, 2, u), 'v34', BB, range(20))
        take(0, lambda k, u: Wo(k, 2, u), 'v34', BA, range(20, 24))
        e('v_lshrrev_b32 v21, 3, v16')
        e('v_lshlrev_b32 v21, 4, v21')
        e('v_bfe_u32 v22, v16, 2, 1')
        e('v_lshl_add_u32 v21, v22, 2, v21')
        e('v_and_b32 v22, 3, v16')
        e('v_add_u32 v21, v21, v22')
        e(f's_and_b32 s60, {sW}, 1')
        e('s_lshl_b32 s60, s60, 3')
        e('v_add_u32 v21, s60, v21')
        e('v_lshl_add_u32 v21, v20, 5, v21')
        e('v_lshlrev_b32 v21, 4, v21')
        e('v_lshl_add_u32 v21, v19, 10, v21')
        e(f's_mul_i32 s60, {sHEAD}, {QKV_HEAD}')
        e(f's_lshl_b32 s61, {sP}, 12')
        e('s_add_u32 s60, s60, s61')
        e('s_add_u32 s61, s60, 12288')
        e(f'v_add_u32 {v(vK)}, s61, v21')
        e(f's_and_b32 s62, {sW}, 1')
        e('s_lshl_b32 s62, s62, 4')
        e('v_add_u32 v21, s62, v16')
        e('v_lshl_add_u32 v22, v20, 5, v21')
        e('v_lshlrev_b32 v22, 4, v22')
        e('v_lshl_add_u32 v22, v19, 10, v22')
        e(f's_lshr_b32 s63, {sW}, 1')
        e('s_lshl_b32 s61, s63, 11')
        e('s_add_u32 s61, s61, s60')
        e('s_add_u32 s61, s61, 24576')
        e(f'v_add_u32 {v(vV)}, s61, v22')
        l2off = KL2
        e('v_lshlrev_b32 v21, 3, v21')
        e('v_lshl_add_u32 v21, v20, 8, v21')
        e(f's_mov_b32 s61, {l2off}')
        e('v_mul_lo_u32 v22, s61, v19')
        e('v_add_u32 v21, v21, v22')
        e(f's_mul_i32 s60, {sHEAD}, {KM_HEAD}')
        e(f's_lshl_b32 s62, {sP}, 10')
        e('s_add_u32 s60, s60, s62')
        e(f's_add_u32 s60, s60, {KMVM}')
        e('s_lshl_b32 s62, s63, 9')
        e('s_add_u32 s62, s62, s60')
        e('s_add_u32 s62, s62, 3072')
        e(f'v_add_u32 {v(vVM)}, s62, v21')
        e('v_lshrrev_b32 v21, 3, v16')
        e('v_mul_lo_u32 v21, s61, v21')
        e('v_and_b32 v22, 7, v16')
        e('v_lshl_add_u32 v21, v22, 4, v21')
        e('v_lshl_add_u32 v21, v17, 7, v21')
        e(f'v_add_u32 {v(vKM)}, s60, v21')
        e(f's_mul_i32 s60, {sHH}, 9')
        e(f's_add_u32 s60, s60, {sP}')
        e('s_add_u32 s60, s60, 3')
        e('v_and_b32 v21, 1, v0')
        e('v_mul_u32_u24 v21, 3, v21')
        e('v_add_u32 v21, s60, v21')
        e(f'v_lshlrev_b32 {v(vFL)}, 2, v21')
        e(f's_lshl_b32 s60, {sCLS}, 8')
        e(f's_add_u32 {sPF}, s60, {P_QKV}')
        e(f's_lshr_b32 s60, {sW}, 1')
        e('s_lshl_b32 s60, s60, 10')
        e(f's_and_b32 s61, {sW}, 1')
        e('s_lshl_b32 s61, s61, 3')
        e('s_add_u32 s60, s60, s61')
        e(f'v_add_u32 {v(vQW)}, s60, {v(vL16)}')
        e('s_mov_b32 s88, 0xff00ff00')
        e('s_mov_b32 s89, 0xff00ff00')
        e('s_mov_b32 s90, 0xff00ff00')
        e('s_mov_b32 s91, 0x00ff00ff')
        QA, KA, VA_, VMP = 16, 20, 24, 28
        PKT = 30
        KX, VX = 32, 48
        QF, KF = 56, 64
        G = 72
        MEM = 96
        ONES, SENT2 = 88, 92
        ONES, SENT2 = 168, 172
        ONES, SENT2, NEGI = 1, 14, 15
        ONESQ = 84
        for r in range(40, 56):
            e(f'v_mov_b32 v{r}, 0')
        for r in range(32, 40):
            e(f'v_mov_b32 v{r}, 0')
        self.srd(SRA, 'mem0')
        e('v_and_b32 v21, 7, v0')
        e('v_mul_u32_u24 v21, 1280, v21')
        e('v_lshrrev_b32 v22, 4, v0')
        e('v_lshl_add_u32 v21, v22, 4, v21')
        e(f's_mul_i32 s60, {sW}, 320')
        e('v_add_u32 v1, s60, v21')
        self.wait_init('v21', 'v22')
        if self.diag:
            e(f's_mul_i32 s97, {sCLS}, 48')
            e(f's_add_u32 s97, s97, {sTILE}')
            e('s_lshl_b32 s97, s97, 13')
            e(f's_add_u32 s97, s97, {TS}')
        e(f's_mov_b32 {sS}, 0')
        e(f's_mov_b32 {sN1}, 1')
        e(f's_mov_b32 {sN2}, 0')
        RQ = self.opt['rq']
        e(f's_mov_b32 {sQ1}, {QKV}')
        e(f's_mov_b32 {sQ2}, {QKV + QL2}')
        for i in range(5):
            e(f'buffer_load_dwordx4 {v(G+4*i,4)}, v1, {SRA}, 0 offen offset:{64*i}')
        e(f's_mov_b32 {sK1}, 0')
        e(f's_mov_b32 {sK2}, 0')
        e('s_branch L_ch_ag')

        def maxtree(dst, first, n):
            e(f'v_max3_u32 {dst}, {v(first)}, {v(first+1)}, {v(first+2)}')
            k = 3
            while k < n:
                if k + 1 < n:
                    e(f'v_max3_u32 {dst}, {dst}, {v(first+k)}, {v(first+k+1)}')
                    k += 2
                else:
                    e(f'v_max_u32 {dst}, {dst}, {v(first+k)}')
                    k += 1

        def maxtree2(d0, d1, first, n):
            h = n // 2
            maxtree(d0, first, h)
            maxtree(d1, first + h, n - h)
            e(f'v_max_u32 {d0}, {d0}, {d1}')

        def flagload():
            e(f'buffer_load_dword v30, {v(vFL)}, {WS}, {sPF} offen sc1')
            e(f'buffer_load_dword v31, {v(vFL)}, {WS}, {sPF} offen offset:2048 sc1')

        def flagtake():
            e(f'v_readlane_b32 {sK1}, v30, 0')
            e('v_readlane_b32 s92, v30, 1')
            e(f'v_readlane_b32 {sK2}, v31, 0')
            e('v_readlane_b32 s93, v31, 1')
            e(f's_min_u32 {sK1}, {sK1}, s92')
            e(f's_min_u32 {sK2}, {sK2}, s93')

        e('L_ch_step:')
        e('s_and_b32 s60, s67, 3')
        e(f's_mul_i32 s60, s60, {AG_S}')
        e(f's_add_u32 s60, s60, {sAGr}')
        e(f's_add_u32 s61, s60, 4096')
        if self.opt['agdelay']:
            e(f's_sleep {self.opt["agdelay"]}')
        e('L_ch_agp:')
        for i in range(4):
            e(f'buffer_load_dwordx4 {v(G+4*i,4)}, {v(vGA)}, {WS}, s60 offen offset:{1024*i} sc1')
        e(f'buffer_load_dwordx4 {v(G+16,4)}, {v(vGA)}, {WS}, s61 offen sc1')
        e('s_waitcnt vmcnt(0)')
        maxtree2('v28', 'v29', G, 20)
        e('v_cmp_eq_u32 vcc, -1, v28')
        e('s_cbranch_vccz L_ch_ag')
        self.spin('L_ch_agp', self.opt['agsleep'])
        e('L_ch_ag:')
        e(f's_cmp_gt_u32 {sN1}, {sK1}')
        e('s_cbranch_scc1 L_ch_fl')
        e(f's_cmp_le_u32 {sN2}, {sK2}')
        e('s_cbranch_scc1 L_ch_got')
        e('L_ch_fl:')
        flagload()
        e('s_waitcnt vmcnt(0)')
        flagtake()
        self.spin('L_ch_ag', 2)
        e('L_ch_got:')
        self.stamp(7)
        self.note(11, sSPIN)
        self.flush()
        self.stamp(0)
        self.stamp(15, real=True)
        lk1, lk2, lk3, lk4 = A.lab('k1'), A.lab('k2'), A.lab('k3'), A.lab('k4')
        e(f's_cmp_eq_u32 {sN1}, 0')
        e(f's_cbranch_scc1 {lk1}')
        e(f'buffer_load_dwordx4 {v(KX,4)}, {v(vK)}, {WS}, {sQ1} offen sc1')
        e(f'buffer_load_dwordx4 {v(KX+4,4)}, {v(vK)}, {WS}, {sQ1} offen offset:2048 sc1')
        e(f'buffer_load_dwordx4 {v(VX,4)}, {v(vV)}, {WS}, {sQ1} offen sc1')
        e(f'{lk1}:')
        e(f's_cmp_eq_u32 {sN2}, 0')
        e(f's_cbranch_scc1 {lk2}')
        e(f'buffer_load_dwordx4 {v(KX+8,4)}, {v(vK)}, {WS}, {sQ2} offen sc1')
        e(f'buffer_load_dwordx4 {v(KX+12,4)}, {v(vK)}, {WS}, {sQ2} offen offset:2048 sc1')
        e(f'buffer_load_dwordx4 {v(VX+4,4)}, {v(vV)}, {WS}, {sQ2} offen sc1')
        e(f's_cmp_lg_u32 {sS}, {L}')
        e(f's_cbranch_scc1 {lk2}')
        for i in range(5):
            e(f'buffer_load_dwordx4 {v(MEM+4*i,4)}, v1, {SRA}, 0 offen offset:{64*i}')
        e('s_waitcnt vmcnt(0)')
        for i in range(20):
            e(f'v_cndmask_b32 {v(G+i)}, {v(G+i)}, {v(MEM+i)}, {mL2}')
        e(f'{lk2}:')
        for i in range(5):
            e(f'ds_write_b128 {v(vMW)}, {v(G+4*i,4)} offset:{1024*i}')
        e('s_waitcnt lgkmcnt(0)')
        e('s_barrier')
        PF = 8
        for k in range(PF):
            e(f'ds_read_b128 {v(MEM+4*k,4)}, {v(vL16)} offset:{1024*k}')
        for k in range(20):
            if k + PF < 20:
                e(f'ds_read_b128 {v(MEM+4*(k+PF),4)}, {v(vL16)} offset:{1024*(k+PF)}')
            e(f's_waitcnt lgkmcnt({min(PF, 19-k)})')
            e(f'v_mfma_f32_16x16x32_bf16 {v(QA,4)}, {a(4*k,4)}, {v(MEM+4*k,4)}, {"0" if k==0 else v(QA,4)}')
            e(f'v_mfma_f32_16x16x32_bf16 {v(KA,4)}, {a(80+4*k,4)}, {v(MEM+4*k,4)}, {"0" if k==0 else v(KA,4)}')
        vk = [0]

        def vm(n):
            for _ in range(n):
                k = vk[0]
                if k < 20:
                    e(f'v_mfma_f32_16x16x32_bf16 {v(VA_,4)}, {v(MEM+4*k,4)}, {a(160+4*k,4)}, {"0" if k==0 else v(VA_,4)}')
                    vk[0] += 1
        vm(2)
        QX, KXL, SL, OL = 45056, 47104, 49152, 20480
        e(f'v_cvt_pk_bf16_f32 {v(G)}, {v(QA)}, {v(QA+1)}')
        e(f'v_cvt_pk_bf16_f32 {v(G+1)}, {v(QA+2)}, {v(QA+3)}')
        e(f'v_cvt_pk_bf16_f32 {v(G+2)}, {v(KA)}, {v(KA+1)}')
        e(f'v_cvt_pk_bf16_f32 {v(G+3)}, {v(KA+2)}, {v(KA+3)}')
        e(f'ds_write_b64 {v(vQW)}, {v(G,2)} offset:{QX}')
        e(f'ds_write_b64 {v(vQW)}, {v(G+2,2)} offset:{KXL}')
        vm(3)
        e('s_waitcnt lgkmcnt(0)')
        e('s_barrier')
        self.stamp(1)
        S4 = G + 4
        e(f'ds_read_b128 {v(QF,4)}, {v(vL16)} offset:{QX}')
        e(f'ds_read_b128 {v(QF+4,4)}, {v(vL16)} offset:{QX+1024}')
        e(f'ds_read_b128 {v(KF,4)}, {v(vL16)} offset:{KXL}')
        e(f'ds_read_b128 {v(KF+4,4)}, {v(vL16)} offset:{KXL+1024}')
        vm(5)
        lw2, lw3, lws, lwe = A.lab('w2'), A.lab('w3'), A.lab('ws'), A.lab('we')
        e('s_and_b32 s60, s67, 3')
        e(f's_mul_i32 s60, s60, {S_S}')
        e(f's_add_u32 s61, s60, {sSw}')
        e(f's_add_u32 s62, s60, {sSa}')
        e(f's_add_u32 s63, s60, {sSb}')
        e(f's_cmp_ge_u32 {sW}, 2')
        e(f's_cbranch_scc1 {lw2}')
        e('s_waitcnt vmcnt(0) lgkmcnt(2)')
        e(f'v_mfma_f32_16x16x32_bf16 {v(QA,4)}, {v(KX,4)}, {v(QF,4)}, 0')
        e(f'v_mfma_f32_16x16x32_bf16 {v(KA,4)}, {v(KX+8,4)}, {v(QF,4)}, 0')
        e(f'v_mfma_f32_16x16x32_bf16 {v(QA,4)}, {v(KX+4,4)}, {v(QF+4,4)}, {v(QA,4)}')
        e(f'v_mfma_f32_16x16x32_bf16 {v(KA,4)}, {v(KX+12,4)}, {v(QF+4,4)}, {v(KA,4)}')
        save = vk[0]
        vm(2)
        for i in range(4):
            e(f'v_cndmask_b32 {v(S4+i)}, {v(QA+i)}, {v(KA+i)}, {mL2}')
        e(f's_branch {lws}')
        e(f'{lw2}:')
        e(f's_cmp_eq_u32 {sW}, 3')
        e(f's_cbranch_scc1 {lw3}')
        e('s_waitcnt lgkmcnt(0)')
        e(f'v_mfma_f32_16x16x32_bf16 {v(S4,4)}, {v(KF,4)}, {v(QF,4)}, 0')
        e(f'v_mfma_f32_16x16x32_bf16 {v(S4,4)}, {v(KF+4,4)}, {v(QF+4,4)}, {v(S4,4)}')
        vk[0] = save
        vm(2)
        e(f'{lws}:')
        for i in range(4):
            e(f'v_min_u32 {v(S4+i)}, -2, {v(S4+i)}')
        self.st_mode(f'buffer_store_dwordx4 {v(S4,4)}, {v(vL16)}, {WS}, s61 offen')
        save2 = vk[0]
        vm(20)
        lsp = A.lab('sp')
        lso = A.lab('so')
        R0 = G + 8
        e(f'{lsp}:')
        e(f'buffer_load_dwordx4 {v(R0,4)}, {v(vL16)}, {WS}, s62 offen sc1')
        e(f'buffer_load_dwordx4 {v(R0+4,4)}, {v(vL16)}, {WS}, s63 offen sc1')
        e('s_waitcnt vmcnt(0)')
        maxtree2('v30', 'v31', R0, 8)
        e('v_cmp_eq_u32 vcc, -1, v30')
        e(f's_cbranch_vccz {lso}')
        self.spin(lsp)
        e(f'{lso}:')
        self.stamp(12)
        self.note(8, sSPIN)
        e(f'v_pk_add_f32 {v(R0,2)}, {v(R0,2)}, {v(R0+4,2)}')
        e(f'v_pk_add_f32 {v(R0+2,2)}, {v(R0+2,2)}, {v(R0+6,2)}')
        e(f'v_pk_add_f32 {v(S4,2)}, {v(S4,2)}, {v(R0,2)}')
        e(f'v_pk_add_f32 {v(S4+2,2)}, {v(S4+2,2)}, {v(R0+2,2)}')
        lnm = A.lab('nm')
        e(f's_cmp_lg_u32 {sW}, 2')
        e(f's_cbranch_scc1 {lnm}')
        e('v_mov_b32 v30, 0xff800000')
        for i in range(4):
            e(f'v_cndmask_b32 {v(S4+i)}, {v(S4+i)}, v30, {mINV}')
        e(f'{lnm}:')
        e(f's_lshl_b32 s60, {sW}, 10')
        e(f'v_add_u32 v30, s60, {v(vL16)}')
        e(f'ds_write_b128 v30, {v(S4,4)} offset:{SL}')
        e('s_waitcnt lgkmcnt(0)')
        e(f's_branch {lwe}')
        e(f'{lw3}:')
        vk[0] = save
        vm(20)
        e('s_waitcnt vmcnt(0) lgkmcnt(0)')
        e(f'{lwe}:')
        e(f'v_cvt_pk_bf16_f32 {v(VMP)}, {v(VA_)}, {v(VA_+1)}')
        e(f'v_cvt_pk_bf16_f32 {v(VMP+1)}, {v(VA_+2)}, {v(VA_+3)}')
        e('s_barrier')
        self.stamp(2)
        X = G
        for t in range(3):
            e(f'ds_read_b128 {v(X+4*t,4)}, {v(vL16)} offset:{SL+1024*t}')
        for i in range(4):
            e(f'v_mov_b32 {v(ONESQ+i)}, 0x3f803f80')
        e(f's_mov_b32 s60, {f2u(SCALE_LOG2E):#x}')
        e('s_waitcnt lgkmcnt(1)')
        e(f'v_max3_f32 v30, {v(X)}, {v(X+1)}, {v(X+2)}')
        e(f'v_max3_f32 v31, {v(X+3)}, {v(X+4)}, {v(X+5)}')
        e(f'v_max3_f32 v30, v30, {v(X+6)}, {v(X+7)}')
        e('s_waitcnt lgkmcnt(0)')
        e(f'v_max3_f32 v31, v31, {v(X+8)}, {v(X+9)}')
        e(f'v_max3_f32 v30, v30, {v(X+10)}, {v(X+11)}')
        e('v_max_f32 v30, v30, v31')
        e('v_mov_b32 v31, v30')
        e('v_permlane32_swap_b32 v31, v30')
        e('v_max_f32 v30, v30, v31')
        e('v_mov_b32 v31, v30')
        e('v_permlane16_swap_b32 v31, v30')
        e('v_max_f32 v30, v30, v31')
        e('v_mul_f32 v30, s60, v30')
        order = [8, 9, 10, 11, 0, 1, 2, 3, 4, 5, 6, 7]
        for i in order:
            e(f'v_fma_f32 {v(X+i)}, {v(X+i)}, s60, -v30')
        PX, PM = QF, QF + 4
        for n, i in enumerate(order):
            e(f'v_exp_f32 {v(X+i)}, {v(X+i)}')
            if n == 5:
                e(f'v_cvt_pk_bf16_f32 {v(PM)}, {v(X+8)}, {v(X+9)}')
                e(f'v_cvt_pk_bf16_f32 {v(PM+1)}, {v(X+10)}, {v(X+11)}')
            if n == 7:
                e(f'v_mfma_f32_16x16x16_bf16 {v(QA,4)}, {v(VMP,2)}, {v(PM,2)}, 0')
                e(f'v_mfma_f32_16x16x16_bf16 {v(KA,4)}, {v(VMP,2)}, {v(PM,2)}, 0')
                e(f'v_mfma_f32_16x16x16_bf16 {v(VA_,4)}, {v(ONESQ,2)}, {v(PM,2)}, 0')
        for i in range(4):
            e(f'v_cvt_pk_bf16_f32 {v(PX+i)}, {v(X+2*i)}, {v(X+2*i+1)}')
        e(f'v_mfma_f32_16x16x32_bf16 {v(VA_,4)}, {v(ONESQ,4)}, {v(PX,4)}, {v(VA_,4)}')
        e(f'v_mfma_f32_16x16x32_bf16 {v(QA,4)}, {v(VX,4)}, {v(PX,4)}, {v(QA,4)}')
        e(f'v_mfma_f32_16x16x32_bf16 {v(KA,4)}, {v(VX+4,4)}, {v(PX,4)}, {v(KA,4)}')
        e('s_and_b32 s60, s67, 3')
        e(f's_mul_i32 s60, s60, {O_S}')
        e(f's_add_u32 s61, s60, {sOw}')
        e(f's_add_u32 s62, s60, {sOr}')
        e('s_add_u32 s63, s62, 4096')
        e(f'v_rcp_f32 v30, {v(VA_)}')
        for i in range(4):
            e(f'v_cndmask_b32 {v(X+i)}, {v(QA+i)}, {v(KA+i)}, {mL2}')
        for i in range(4):
            e(f'v_mul_f32 {v(X+i)}, {v(X+i)}, v30')
        e(f'v_cvt_pk_bf16_f32 {v(X+4)}, {v(X)}, {v(X+1)}')
        e(f'v_cvt_pk_bf16_f32 {v(X+5)}, {v(X+2)}, {v(X+3)}')
        e(f'v_min_u32 {v(X+4)}, -2, {v(X+4)}')
        e(f'v_min_u32 {v(X+5)}, -2, {v(X+5)}')
        self.st_mode(f'buffer_store_dwordx2 {v(X+4,2)}, {v(vTW)}, {WS}, s61 offen')
        self.stamp(3)
        e(f's_and_b32 s92, {sS}, {RQ-1}')
        e(f's_mul_i32 s92, s92, {KM_SEG}')
        e(f's_sub_u32 s93, {sS}, {L}')
        e(f's_and_b32 s93, s93, {RQ-1}')
        e(f's_mul_i32 s93, s93, {KM_SEG}')
        e('v_mov_b32 v30, s92')
        e('v_mov_b32 v31, s93')
        e(f'v_cndmask_b32 {v(X+6)}, v30, v31, {mL2}')
        e(f'v_add_u32 {v(X+6)}, {v(X+6)}, {v(vKM)}')
        e('s_mov_b32 s92, 0')
        e('s_mov_b32 s93, -1')
        e(f'v_cndmask_b32 {v(X+7)}, v30, v31, {mT}')
        e(f'v_add_u32 {v(X+7)}, {v(X+7)}, {v(vVM)}')
        e(f's_cmp_lg_u32 {sN1}, 0')
        e('s_cselect_b32 s92, -1, 0')
        e('s_cselect_b32 s94, 0x00ff00ff, 0')
        e(f's_cmp_lg_u32 {sN2}, 0')
        e('s_cselect_b32 s93, -1, 0')
        e('s_cselect_b32 s95, 0xff00ff00, 0')
        e(f's_mov_b64 exec, {mT}')
        self.st_mode(f'buffer_store_dwordx2 {v(VMP,2)}, {v(X+7)}, {WS}, 0 offen')
        lnk = A.lab('nk')
        e(f's_cmp_lg_u32 {sW}, 2')
        e(f's_cbranch_scc1 {lnk}')
        e('s_or_b32 s94, s94, s95')
        e('s_mov_b32 s95, s94')
        e(f's_mov_b64 exec, {mU}')
        self.st_mode([f'buffer_store_dwordx4 {v(KF,4)}, {v(X+6)}, {WS}, 0 offen',
                      f'buffer_store_dwordx4 {v(KF+4,4)}, {v(X+6)}, {WS}, 0 offen offset:512'])
        e(f'{lnk}:')
        e('s_mov_b64 exec, -1')
        e(f's_add_u32 {sS}, {sS}, 1')
        e(f's_cmp_ge_u32 {sSLOT}, 10')
        e('s_cbranch_scc1 L_ch_noop')
        lop, loo = A.lab('op'), A.lab('oo')
        e(f'{lop}:')
        for i in range(4):
            e(f'buffer_load_dwordx4 {v(G+4*i,4)}, {v(vGO)}, {WS}, s62 offen offset:{1024*i} sc1')
        for i in range(2):
            e(f'buffer_load_dwordx4 {v(G+16+4*i,4)}, {v(vGO)}, {WS}, s63 offen offset:{1024*i} sc1')
        e('s_waitcnt vmcnt(0)')
        maxtree2('v30', 'v31', G, 24)
        e('v_cmp_eq_u32 vcc, -1, v30')
        e(f's_cbranch_vccz {loo}')
        self.spin(lop)
        e(f'{loo}:')
        self.stamp(13)
        self.note(9, sSPIN)
        for i in range(6):
            e(f'ds_write_b128 {v(vOWL)}, {v(G+4*i,4)} offset:{OL+1024*i}')
        self.signal('v30', sPCH, sS, intra=True)
        e('s_waitcnt lgkmcnt(0)')
        e('s_barrier')
        self.stamp(4)
        for k in range(PF):
            e(f'ds_read_b128 {v(MEM+4*k,4)}, {v(vL16)} offset:{OL+1024*k}')
        for k in range(24):
            if k + PF < 24:
                e(f'ds_read_b128 {v(MEM+4*((k+PF)%20),4)}, {v(vL16)} offset:{OL+1024*(k+PF)}')
            e(f's_waitcnt lgkmcnt({min(PF, 23-k)})')
            e(f'v_mfma_f32_16x16x32_bf16 {v(QA,4)}, {Wo(k)}, {v(MEM+4*(k%20),4)}, {"0" if k==0 else v(QA,4)}')
        e(f's_sub_u32 s60, {sS}, 1')
        e('s_and_b32 s60, s60, 3')
        e(f's_mul_i32 s60, s60, {CR_S}')
        e(f's_add_u32 s61, s60, {sCw}')
        e(f's_add_u32 s62, s60, {sCa}')
        e('s_add_u32 s63, s62, 4096')
        for i in range(4):
            e(f'v_min_u32 {v(QA+i)}, -2, {v(QA+i)}')
        e(f'buffer_store_dwordx4 {v(QA,4)}, {v(vL16)}, {WS}, s61 offen sc1')
        self.stamp(5)

        def resets(full):
            for i in range(4):
                e(f'v_mov_b32 {v(KA+i)}, -1')
            e(f's_add_u32 s92, {sS}, 1')
            e('s_and_b32 s92, s92, 3')
            e(f's_mul_i32 s93, s92, {O_S}')
            e(f's_add_u32 s93, s93, {sOw}')
            e(f's_mul_i32 s94, s92, {S_S}')
            e(f's_add_u32 s94, s94, {sSw}')
            st = [f'buffer_store_dwordx2 {v(KA,2)}, {v(vTW)}, {WS}, s93 offen']
            if full:
                e(f's_add_u32 s95, {sS}, 2')
                e('s_and_b32 s95, s95, 3')
                e(f's_mul_i32 s95, s95, {AG_S}')
                e(f's_add_u32 s95, s95, {sAGw}')
                st.append(f'buffer_store_dwordx2 {v(KA,2)}, {v(vTW)}, {WS}, s95 offen')
            self.st_mode(st)
            lr = A.lab('r3')
            e(f's_cmp_eq_u32 {sW}, 3')
            e(f's_cbranch_scc1 {lr}')
            self.st_mode(f'buffer_store_dwordx4 {v(KA,4)}, {v(vL16)}, {WS}, s94 offen')
            e(f'{lr}:')
            e(f's_mul_i32 s92, s92, {CR_S}')
            if full and not self.opt['helper']:
                e(f's_add_u32 s92, s92, {sCw}')
                e(f'buffer_store_dwordx4 {v(KA,4)}, {v(vL16)}, {WS}, s92 offen sc1')
            if not full and self.opt['helper']:
                e(f's_sub_u32 s93, {sTILE}, 40')
                e('s_mul_i32 s93, s93, 40960')
                e('s_add_u32 s92, s92, s93')
                e(f's_lshl_b32 s93, {sCLS}, 10')
                e('s_add_u32 s92, s92, s93')
                e(f's_add_u32 s92, s92, {CH_CR}')
                for i in range(5):
                    e(f'buffer_store_dwordx4 {v(KA,4)}, {v(vL16)}, {WS}, s92 offen sc1')
                    if i < 4:
                        e('s_add_u32 s92, s92, 8192')
        resets(True)
        if self.diag:
            e('s_mov_b32 s100, 0')
        flagload()
        if self.opt['cdelay']:
            e(f's_sleep {self.opt["cdelay"]}')
        lcp, lco, lcx = A.lab('cp'), A.lab('co'), A.lab('cx')
        C = MEM
        e(f'{lcp}:')
        for i in range(4):
            e(f'buffer_load_dwordx4 {v(C+4*i,4)}, {v(vL16)}, {WS}, s62 offen offset:{1024*i} sc1')
        for i in range(4):
            e(f'buffer_load_dwordx4 {v(C+16+4*i,4)}, {v(vL16)}, {WS}, s63 offen offset:{1024*i} sc1')
        e('s_waitcnt vmcnt(0)')
        T = G
        if self.diag:
            e('s_cmp_lg_u32 s100, 0')
            e('s_cbranch_scc1 L_dbg1')
            self.stamp(14)
            e('s_mov_b32 s100, 1')
            e('L_dbg1:')
        for h in range(2):
            for i in range(4):
                e(f'v_pk_add_f32 {v(T+4*i+2*h,2)}, {v(C+8*i+2*h,2)}, {v(C+8*i+4+2*h,2)}')
        for h in range(2):
            e(f'v_pk_add_f32 {v(T+2*h,2)}, {v(T+2*h,2)}, {v(T+4+2*h,2)}')
            e(f'v_pk_add_f32 {v(T+8+2*h,2)}, {v(T+8+2*h,2)}, {v(T+12+2*h,2)}')
        for h in range(2):
            e(f'v_pk_add_f32 {v(T+2*h,2)}, {v(T+2*h,2)}, {v(T+8+2*h,2)}')
        e(f'v_cmp_u_f32 vcc, {v(T)}, {v(T+1)}')
        e(f'v_cmp_u_f32 {mT}, {v(T+2)}, {v(T+3)}')
        e(f's_or_b64 vcc, vcc, {mT}')
        e(f's_cbranch_vccz {lco}')
        maxtree2('v28', 'v29', C, 32)
        e('v_cmp_eq_u32 vcc, -1, v28')
        e(f's_cbranch_vccz {lco}')
        self.spin(lcp)
        e(f'{lco}:')
        self.note(10, sSPIN)
        e(f's_and_b32 s60, {sS}, 3')
        e(f's_mul_i32 s60, s60, {AG_S}')
        e(f's_add_u32 s60, s60, {sAGw}')
        e(f'v_cvt_pk_bf16_f32 {v(T+4)}, {v(T)}, {v(T+1)}')
        e(f'v_cvt_pk_bf16_f32 {v(T+5)}, {v(T+2)}, {v(T+3)}')
        e(f'v_min_u32 {v(T+4)}, -2, {v(T+4)}')
        e(f'v_min_u32 {v(T+5)}, -2, {v(T+5)}')
        self.st_mode(f'buffer_store_dwordx2 {v(T+4,2)}, {v(vTW)}, {WS}, s60 offen')
        self.stamp(6)
        flagtake()
        e('s_branch L_ch_next')
        e('L_ch_noop:')
        e('s_waitcnt vmcnt(0)')
        self.signal('v30', sPCH, sS, intra=True)
        resets(False)
        e('s_sleep 20')
        flagload()
        e('s_waitcnt vmcnt(0)')
        flagtake()
        e('L_ch_next:')
        e(f's_and_b32 s60, {sS}, {RQ-1}')
        e(f's_mul_i32 {sQ1}, s60, {QKV_SEG}')
        e(f's_add_u32 {sQ1}, {sQ1}, {QKV}')
        e(f's_sub_u32 s60, {sS}, {L}')
        e(f's_and_b32 s60, s60, {RQ-1}')
        e(f's_mul_i32 {sQ2}, s60, {QKV_SEG}')
        e(f's_add_u32 {sQ2}, {sQ2}, {QKV + QL2}')
        e(f's_add_u32 s60, {sS}, 1')
        e(f's_cmp_lt_u32 {sS}, 64')
        e(f's_cselect_b32 {sN1}, s60, 0')
        e(f's_sub_u32 s60, s60, {L}')
        e(f's_cmp_ge_u32 {sS}, {L}')
        e(f's_cselect_b32 {sN2}, s60, 0')
        lz = A.lab('z1')
        e(f's_cmp_lg_u32 {sS}, 64')
        e(f's_cbranch_scc1 {lz}')
        for r in list(range(KX, KX + 8)) + list(range(VX, VX + 4)):
            e(f'v_mov_b32 v{r}, 0')
        e(f'{lz}:')
        e(f's_cmp_lt_u32 {sS}, {self.nsteps}')
        e('s_cbranch_scc1 L_ch_step')
        e('s_endpgm')

    def build(self):
        e = self.A.e
        e(f'{NAME}_kernel:')
        e('s_cmp_ge_u32 s2, 256')
        e('s_cbranch_scc1 L_end')
        e('s_load_dwordx16 s[16:31], s[0:1], 0')
        e('s_load_dwordx8 s[32:39], s[0:1], 64')
        e('s_load_dwordx2 s[40:41], s[0:1], 96')
        e(f's_getreg_b32 {sCLS}, hwreg(HW_REG_XCC_ID, 0, 3)')
        e('v_lshrrev_b32 v1, 6, v0')
        e('v_and_b32 v0, 63, v0')
        e(f'v_readfirstlane_b32 {sW}, v1')
        e(f's_mov_b32 {sSPIN}, 0x200000')
        e(f's_mov_b32 {sFAST}, 0')
        e('s_waitcnt lgkmcnt(0)')
        e('s_mov_b32 s8, s40')
        e('s_and_b32 s9, s41, 0xffff')
        e(f's_mov_b32 s10, {WS_BYTES:#x}')
        e('s_mov_b32 s11, 0x20000')
        e('s_mov_b32 s12, s38')
        e('s_and_b32 s13, s39, 0xffff')
        e('s_mov_b32 s14, 256')
        e('s_mov_b32 s15, 0x20000')
        e('v_mov_b32 v3, 0')
        e(f's_cmp_lg_u32 {sW}, 0')
        e('s_cbranch_scc1 L_tk')
        e(f's_lshl_b32 s60, {sCLS}, 5')
        e('v_mov_b32 v2, 1')
        e('s_mov_b64 exec, 1')
        e(f'buffer_atomic_add v2, off, {DBG}, s60 sc0')
        e('s_waitcnt vmcnt(0)')
        e('ds_write_b32 v3, v2')
        e('s_waitcnt lgkmcnt(0)')
        e('s_mov_b64 exec, -1')
        e('L_tk:')
        e('s_barrier')
        e('ds_read_b32 v2, v3')
        e('s_waitcnt lgkmcnt(0)')
        e(f'v_readfirstlane_b32 {sSLOT}, v2')
        e('s_barrier')
        e(f's_cmp_ge_u32 {sSLOT}, 32')
        e('s_cbranch_scc1 L_fail')
        e(f's_cmp_lt_u32 {sSLOT}, 12')
        e('s_cbranch_scc1 L_chain')
        e(f's_cmp_lt_u32 {sSLOT}, 21')
        e('s_cbranch_scc1 L_qkv')
        self.ln1_phase()
        self.rest_roles()
        e('L_fail:')
        e('v_mov_b32 v2, 1')
        e('s_mov_b64 exec, 1')
        e(f'buffer_atomic_add v2, off, {DBG}, 0 offset:4')
        e('s_waitcnt vmcnt(0)')
        e('L_end:')
        e('s_endpgm')
        if self.on('chain'):
            self.role_chain()
        else:
            e('L_chain:')
            self.arrive()
            e('s_endpgm')
        self.role_qkv()
        n = self.A.pad()
        head = open(os.path.join(os.path.dirname(os.path.abspath(__file__)), 'head.txt')).read()
        out = head + '; @launch grid=(256,1,1) block=(256,1,1) lds=163840\n'
        out += '.amdgcn_target "amdgcn-amd-amdhsa--gfx950"\n.text\n'
        out += f'.globl {NAME}_kernel\n.p2align 8\n.type {NAME}_kernel,@function\n'
        out += self.A.text()
        out += f'''.section .rodata,"a"
.p2align 6
.amdhsa_kernel {NAME}_kernel
  .amdhsa_next_free_vgpr 512
  .amdhsa_next_free_sgpr 102
  .amdhsa_accum_offset 256
  .amdhsa_group_segment_fixed_size 0
  .amdhsa_kernarg_size 104
  .amdhsa_user_sgpr_count 2
  .amdhsa_user_sgpr_kernarg_segment_ptr 1
  .amdhsa_system_sgpr_workgroup_id_x 1
.end_amdhsa_kernel
'''
        return out, n

    def zero_word(self, soff):
        e = self.A.e
        e('v_mov_b32 v4, 0')
        e('s_mov_b64 exec, 1')
        e(f'buffer_store_dword v4, off, {WS}, {soff} sc1')
        e('s_mov_b64 exec, -1')

    def rest_roles(self):
        e = self.A.e
        e(f's_cmp_lt_u32 {sSLOT}, 26')
        e('s_cbranch_scc1 L_op')
        e(f's_cmp_lt_u32 {sSLOT}, 29')
        e('s_cbranch_scc1 L_f')
        table = [0, 1, 4, 8, 2, 5, 6, 9, 3, 7, 10, 11]
        lo = sum(t << (4 * i) for i, t in enumerate(table[:8]))
        hi = sum(t << (4 * i) for i, t in enumerate(table[8:]))
        e(f's_sub_u32 s70, {sSLOT}, 29')
        e('s_lshl_b32 s70, s70, 2')
        e(f's_add_u32 s70, s70, {sW}')
        e('s_lshl_b32 s70, s70, 2')
        e(f's_mov_b32 s72, {lo:#x}')
        e(f's_mov_b32 s73, {hi:#x}')
        e('s_lshr_b64 s[72:73], s[72:73], s70')
        e('s_and_b32 s70, s72, 15')
        e('s_lshr_b32 s71, s70, 2')
        e('s_lshl_b32 s71, s71, 10')
        e(f's_lshl_b32 s72, {sCLS}, 7')
        e('s_add_u32 s71, s71, s72')
        e('s_and_b32 s72, s70, 3')
        e('s_lshl_b32 s72, s72, 2')
        e('s_add_u32 s71, s71, s72')
        e(f's_add_u32 s71, s71, {P_AT}')
        e('s_and_b32 s72, s70, 1')
        e('s_lshl_b32 s72, s72, 8')
        e('s_bfe_u32 s73, s70, 0x10001')
        e('s_lshl_b32 s73, s73, 7')
        e('s_add_u32 s72, s72, s73')
        e(f's_lshl_b32 s73, {sCLS}, 2')
        e('s_add_u32 s72, s72, s73')
        e(f's_add_u32 s72, s72, {P_R1}')
        e('s_cmp_ge_u32 s70, 8')
        e('s_cselect_b32 s71, s72, s71')
        self.zero_word('s71')
        self.arrive()
        self.ln1_items()
        self.wait_init('v6', 'v7')
        e('s_cmp_ge_u32 s70, 8')
        e('s_cbranch_scc1 L_r')
        self.role_attn()
        self.role_r()
        self.role_op()
        self.role_f()

    def role_attn(self):
        e = self.A.e
        A = self.A
        L, RQ = self.L, self.opt['rq']
        if not self.on('attn'):
            e('s_endpgm')
            return
        sLY, sHH, sS, sB, sKB, sFQ, sFC, sT, sN = 's72', 's73', 's74', 's75', 's76', 's77', 's78', 's79', 's80'
        e(f's_lshr_b32 {sLY}, s70, 2')
        e(f's_and_b32 {sHH}, s70, 3')
        e(f's_lshl_b32 s60, {sCLS}, 2')
        e(f's_add_u32 s60, s60, {sHH}')
        e(f's_mul_i32 s81, s60, {QKV_HEAD}')
        e(f's_mul_i32 s61, {sLY}, {QL2}')
        e('s_add_u32 s81, s81, s61')
        e(f's_add_u32 s81, s81, {QKV}')
        e(f's_mul_i32 s82, s60, {KM_HEAD}')
        e(f's_mul_i32 s61, {sLY}, {KL2}')
        e('s_add_u32 s82, s82, s61')
        e(f's_add_u32 s82, s82, {KMVM}')
        e(f's_lshl_b32 {sFQ}, {sLY}, 11')
        e(f's_lshl_b32 s61, {sCLS}, 8')
        e(f's_add_u32 {sFQ}, {sFQ}, s61')
        e(f's_mul_i32 s62, {sHH}, 36')
        e(f's_add_u32 {sFQ}, {sFQ}, s62')
        e(f's_add_u32 {sFQ}, {sFQ}, {P_QKV}')
        e(f's_mul_i32 s62, {sHH}, 48')
        e(f's_add_u32 {sFC}, s61, s62')
        e(f's_add_u32 {sFC}, {sFC}, {P_CH}')
        e(f's_mul_i32 s83, {sLY}, {L}')
        vL16, vL8, vKM, vFQ, vFC = 2, 3, 5, 6, 7
        e(f'v_lshlrev_b32 {v(vL16)}, 4, v0')
        e(f'v_lshlrev_b32 {v(vL8)}, 3, v0')
        e('v_and_b32 v8, 7, v0')
        e('v_lshrrev_b32 v9, 5, v0')
        e('v_lshlrev_b32 v8, 4, v8')
        e(f'v_lshl_add_u32 {v(vKM)}, v9, 7, v8')
        e('v_min_u32 v8, 8, v0')
        e(f'v_lshlrev_b32 {v(vFQ)}, 2, v8')
        e('v_min_u32 v8, 11, v0')
        e(f'v_lshlrev_b32 {v(vFC)}, 2, v8')
        BIAS, SX, SM, KMR, VMR, P, OA, PK = 16, 32, 48, 64, 112, 124, 136, 168
        e('v_and_b32 v8, 31, v0')
        e('v_lshlrev_b32 v9, 2, v9')
        e('v_sub_u32 v8, v8, v9')
        e('v_mov_b32 v10, 0xf149f2ca')
        for j in range(4):
            for i in range(4):
                e(f'v_cmp_gt_i32 vcc, {8*j+i}, v8')
                e(f'v_cndmask_b32 {v(BIAS+4*j+i)}, 0, v10, vcc')
        e(f's_mov_b32 s84, {f2u(SCALE_LOG2E):#x}')
        e(f's_mov_b32 {sS}, 0')
        e('L_at_loop:')
        e(f's_add_u32 {sN}, {sS}, 1')
        self.poll('v4', v(vFQ), sFQ, sN)
        e(f's_and_b32 s60, {sS}, {RQ-1}')
        e(f's_mul_i32 {sB}, s60, {QKV_SEG}')
        e(f's_add_u32 {sB}, {sB}, s81')
        e(f's_mul_i32 {sKB}, s60, {KM_SEG}')
        e(f's_add_u32 {sKB}, {sKB}, s82')
        for g in range(9):
            e(f's_add_u32 {sT}, {sB}, {4096*g}')
            for i in range(4):
                e(f'buffer_load_dwordx4 {a(16*g+4*i,4)}, {v(vL16)}, {WS}, {sT} offen offset:{1024*i} sc1')
        for k in range(12):
            e(f's_waitcnt vmcnt({23-k})')
            e(f'v_mfma_f32_32x32x16_bf16 {v(SX,16)}, {a(48+4*k,4)}, {a(4*k,4)}, {v(BIAS,16) if k==0 else v(SX,16)}')
        e(f's_add_u32 {sN}, {sN}, s83')
        self.poll('v4', v(vFC), sFC, sN)
        for k in range(12):
            e(f'buffer_load_dwordx4 {v(KMR+4*k,4)}, {v(vKM)}, {WS}, {sKB} offen offset:{256*k} sc1')
        e(f's_add_u32 {sT}, {sKB}, 3072')
        for t in range(6):
            e(f'buffer_load_dwordx2 {v(VMR+2*t,2)}, {v(vL8)}, {WS}, {sT} offen offset:{512*t} sc1')
        e(f'v_max3_f32 v8, {v(SX)}, {v(SX+1)}, {v(SX+2)}')
        e(f'v_max3_f32 v9, {v(SX+3)}, {v(SX+4)}, {v(SX+5)}')
        for k in range(6, 14, 4):
            e(f'v_max3_f32 v8, v8, {v(SX+k)}, {v(SX+k+1)}')
            e(f'v_max3_f32 v9, v9, {v(SX+k+2)}, {v(SX+k+3)}')
        e(f'v_max3_f32 v8, v8, {v(SX+14)}, {v(SX+15)}')
        e('v_max_f32 v8, v8, v9')
        for k in range(12):
            e(f's_waitcnt vmcnt({17-k})')
            e(f'v_mfma_f32_32x32x16_bf16 {v(SM,16)}, {v(KMR+4*k,4)}, {a(4*k,4)}, {"0" if k==0 else v(SM,16)}')
        e(f'v_max3_f32 v8, v8, {v(SM)}, {v(SM+1)}')
        e(f'v_max3_f32 v8, v8, {v(SM+2)}, {v(SM+3)}')
        e('v_mov_b32 v9, v8')
        e('v_permlane32_swap_b32 v9, v8')
        e('v_max_f32 v8, v8, v9')
        e('v_mul_f32 v8, s84, v8')
        for i in range(20):
            e(f'v_fma_f32 {v(SX+i)}, {v(SX+i)}, s84, -v8')
        for i in range(20):
            e(f'v_exp_f32 {v(SX+i)}, {v(SX+i)}')
        e(f'v_pk_add_f32 v[8:9], {v(SX,2)}, {v(SX+2,2)}')
        e(f'v_pk_add_f32 v[10:11], {v(SX+4,2)}, {v(SX+6,2)}')
        for k in range(8, 20, 4):
            e(f'v_pk_add_f32 v[8:9], v[8:9], {v(SX+k,2)}')
            e(f'v_pk_add_f32 v[10:11], v[10:11], {v(SX+k+2,2)}')
        e('v_pk_add_f32 v[8:9], v[8:9], v[10:11]')
        e('v_add_f32 v8, v8, v9')
        e('v_mov_b32 v9, v8')
        e('v_permlane32_swap_b32 v9, v8')
        e('v_add_f32 v8, v8, v9')
        e('v_rcp_f32 v8, v8')
        e('s_nop 0')
        e('v_mov_b32 v9, v8')
        for k in range(0, 20, 2):
            e(f'v_pk_mul_f32 {v(SX+k,2)}, {v(SX+k,2)}, v[8:9]')
        for k in range(10):
            e(f'v_cvt_pk_bf16_f32 {v(P+k)}, {v(SX+2*k)}, {v(SX+2*k+1)}')
        e('s_waitcnt vmcnt(0)')

        def pv(t):
            o = v(OA + 16 * (t & 1), 16)
            e(f'v_mfma_f32_32x32x8_bf16 {o}, {v(VMR+2*t,2)}, {v(P+8,2)}, 0')
            e(f'v_mfma_f32_32x32x16_bf16 {o}, {a(96+8*t,4)}, {v(P,4)}, {o}')
            e(f'v_mfma_f32_32x32x16_bf16 {o}, {a(100+8*t,4)}, {v(P+4,4)}, {o}')

        def fin(t):
            o = OA + 16 * (t & 1)
            pk = PK + 8 * t
            for j in range(8):
                e(f'v_cvt_pk_bf16_f32 {v(pk+j)}, {v(o+2*j)}, {v(o+2*j+1)}')
            if t % 2 == 0:
                e(f's_add_u32 {sT}, {sB}, {2048*t}')
            self.st_intra([f'buffer_store_dwordx4 {v(pk+4*h,4)}, {v(vL16)}, {WS}, {sT} offen offset:{(t%2)*2048+1024*h}'
                           for h in range(2)])
        pv(0)
        for t in range(1, 6):
            pv(t)
            fin(t - 1)
        fin(5)
        e('s_waitcnt vmcnt(0)')
        e(f's_add_u32 {sS}, {sS}, 1')
        self.signal('v4', 's71', sS, intra=self.opt['intra'])
        e(f's_cmp_lt_u32 {sS}, 64')
        e('s_cbranch_scc1 L_at_loop')
        e('s_endpgm')

    def role_r(self):
        e = self.A.e
        A = self.A
        e('L_r:')
        if not self.on('r'):
            e('s_endpgm')
            return
        sK, sS, sPB, sPM, sPSt, sFl, sRB, sXB, sNB, sT, sU, sN = ['s%d' % i for i in range(72, 84)]
        e(f's_and_b32 {sK}, s70, 3')
        def pick(dst, vals):
            e(f's_mov_b32 {dst}, {vals[0]}')
            for k in range(1, 4):
                e(f's_cmp_eq_u32 {sK}, {k}')
                e(f's_cselect_b32 {dst}, {vals[k]}, {dst}')
        pick(sPB, [XP1, FP1, XP2, FP2])
        pick(sPM, [RING - 1, RING - 1, 63, 63])
        pick(sPSt, [XP_S, FP_S, XP_S, FP_S])
        pick(sFl, [P_OP, P_F, P_OP + 1024, P_F + 256])
        pick(sRB, [0, XA, XB, XC])
        pick(sXB, [XA, XB, XC, 0])
        pick(sNB, [XNA, XN2, XNC, 0])
        e(f's_mul_i32 s60, {sCLS}, 5120')
        for r in (sPB, sRB, sXB, sNB):
            e(f's_add_u32 {r}, {r}, s60')
        e(f's_cmp_eq_u32 {sK}, 0')
        e(f's_cselect_b32 s48, s{PTR["x"]}, s40')
        e(f's_cselect_b32 s49, s{PTR["x"]+1}, s41')
        e(f's_cselect_b32 s50, {NBYTES["x"]}, s10')
        e('s_and_b32 s49, s49, 0xffff')
        e('s_mov_b32 s51, 0x20000')
        e(f's_cmp_eq_u32 {sK}, 3')
        e(f's_cselect_b32 s52, s{PTR["out"]}, s40')
        e(f's_cselect_b32 s53, s{PTR["out"]+1}, s41')
        e(f's_cselect_b32 s54, {NBYTES["out"]}, s10')
        e('s_and_b32 s53, s53, 0xffff')
        e('s_mov_b32 s55, 0x20000')
        self.rowlane_addr('v2', 'v3')
        e('v_bfe_u32 v5, v0, 4, 1')
        e('v_mul_u32_u24 v5, 40960, v5')
        e('v_lshrrev_b32 v6, 5, v0')
        e('v_mul_u32_u24 v6, 1280, v6')
        e('v_and_b32 v7, 15, v0')
        e('v_lshlrev_b32 v7, 4, v7')
        e('v_add3_u32 v3, v5, v6, v7')
        e(f's_and_b32 s60, {sK}, 1')
        e('s_cmp_eq_u32 s60, 0')
        e('s_cselect_b32 s60, 159, 47')
        for i in range(3):
            e(f'v_add_u32 v12, {64*i}, v0')
            e('v_min_u32 v12, s60, v12')
            e(f'v_lshlrev_b32 {v(5+i)}, 2, v12')
        e('v_bfe_u32 v12, v0, 3, 1')
        e('v_lshrrev_b32 v13, 5, v0')
        e('v_and_b32 v14, 7, v0')
        e('v_cmp_ne_u32 vcc, v12, v13')
        e('v_cndmask_b32 v14, v14, 15, vcc')
        e('v_mov_b32 v12, 0x3f80')
        e('v_mov_b32 v13, 0x3f800000')
        for d in range(4):
            e(f'v_cmp_eq_u32 vcc, {2*d}, v14')
            e(f'v_cndmask_b32 {v(8+d)}, 0, v12, vcc')
            e(f'v_cmp_eq_u32 vcc, {2*d+1}, v14')
            e(f'v_cndmask_b32 {v(8+d)}, {v(8+d)}, v13, vcc')
        ACC, PB, RES = 16, 60, 220

        def B(j, q):
            r = 40 * j + 4 * q
            return v(PB + r, 4) if r < 160 else a(r - 160, 4)

        def loads(j):
            for q in range(10):
                e(f'buffer_load_dwordx4 {B(j,q)}, v3, {WS}, {sT} offen offset:{(q//5)*2560+(q%5)*256} sc1')
            e(f's_add_u32 {sT}, {sT}, 81920')

        def mm(j, left):
            for q in range(10):
                e(f's_waitcnt vmcnt({left + 9 - q})')
                e(f'v_mfma_f32_16x16x32_bf16 {v(ACC+4*q,4)}, v[8:11], {B(j,q)}, {"0" if j==0 else v(ACC+4*q,4)}')
        e(f's_mov_b32 {sS}, 0')
        e('L_r_loop:')
        e(f's_add_u32 {sN}, {sS}, 1')
        lp, ok = A.lab('rp'), A.lab('rok')
        e(f'{lp}:')
        for i in range(3):
            e(f'buffer_load_dword {v(12+i)}, {v(5+i)}, {WS}, {sFl} offen sc1')
        e('s_waitcnt vmcnt(0)')
        e('v_min3_u32 v12, v12, v13, v14')
        e(f'v_cmp_gt_u32 vcc, {sN}, v12')
        e(f's_cbranch_vccz {ok}')
        self.spin(lp, 1)
        e(f'{ok}:')
        e(f's_and_b32 {sT}, {sS}, {sPM}')
        e(f's_mul_i32 {sT}, {sT}, {sPSt}')
        e(f's_add_u32 {sT}, {sT}, {sPB}')
        e(f's_mul_i32 {sU}, {sS}, {SEGB}')
        e(f's_add_u32 s60, {sU}, {sRB}')
        for q in range(10):
            e(f'buffer_load_dwordx2 {v(RES+2*q,2)}, v2, {SRB}, s60 offen offset:{(q//5)*2560+(q%5)*256} sc1')
        for j in range(4):
            loads(j)
        e(f's_bitcmp1_b32 {sK}, 0')
        e('s_cbranch_scc1 L_r_six')
        for j in range(4):
            mm(j, 10 * (3 - j))
        e('s_branch L_r_sum')
        e('L_r_six:')
        loads(4)
        mm(0, 40)
        loads(5)
        for j in range(1, 6):
            mm(j, 10 * (5 - j))
        e('L_r_sum:')
        e(f's_add_u32 s60, {sU}, {sXB}')
        e(f's_add_u32 s61, {sU}, {sNB}')
        XPK, NPK, TT = 80, 100, 120
        for p in range(2):
            self.unpack(PB, RES + 10 * p, 10)
            for k in range(0, 20, 2):
                e(f'v_pk_add_f32 {v(ACC+20*p+k,2)}, {v(ACC+20*p+k,2)}, {v(PB+k,2)}')
            for k in range(10):
                e(f'v_cvt_pk_bf16_f32 {v(XPK+10*p+k)}, {v(ACC+20*p+2*k)}, {v(ACC+20*p+2*k+1)}')
        e(f's_cmp_eq_u32 {sK}, 3')
        e('s_cbranch_scc1 L_r_last')
        for p in range(2):
            self.unpack(ACC + 20 * p, XPK + 10 * p, 10)
            self.ln_pair(ACC + 20 * p, NPK + 10 * p, TT)
            for cg in range(5):
                e(f'buffer_store_dwordx2 {v(NPK+10*p+2*cg,2)}, v2, {WS}, s61 offen offset:{p*2560+cg*256} sc1')
        e('L_r_last:')
        for q in range(10):
            e(f'buffer_store_dwordx2 {v(XPK+2*q,2)}, v2, {SRC}, s60 offen offset:{(q//5)*2560+(q%5)*256} sc1')
        e('s_waitcnt vmcnt(0)')
        e(f's_add_u32 {sS}, {sS}, 1')
        self.signal('v4', 's71', sS)
        e(f's_cmp_lt_u32 {sS}, 64')
        e('s_cbranch_scc1 L_r_loop')
        e('s_endpgm')

    def role_op(self):
        e = self.A.e
        A = self.A
        L, RQ = self.L, self.opt['rq']
        e('L_op:')
        sJ, sF0, sF1, sN, sT, sO, sA0 = 's70', 's71', 's72', 's73', 's74', 's75', 's76'
        e(f's_sub_u32 {sJ}, {sSLOT}, 21')
        e(f's_mul_i32 s60, {sCLS}, 5')
        e(f's_add_u32 s60, s60, {sJ}')
        e('s_lshl_b32 s60, s60, 2')
        e(f's_add_u32 s60, s60, {sW}')
        e('s_lshl_b32 s60, s60, 2')
        e(f's_add_u32 {sF0}, s60, {P_OP}')
        e(f's_add_u32 {sF1}, {sF0}, 1024')
        self.zero_word(sF0)
        self.zero_word(sF1)
        self.arrive()
        self.ln1_items()
        if not self.on('op'):
            e('s_endpgm')
            return
        self.srd(SRA, 'wo')
        e('v_lshrrev_b32 v1, 4, v0')
        e(f's_lshl_b32 s60, {sW}, 6')
        e('v_add_u32 v1, s60, v1')
        e('v_mul_u32_u24 v1, 1280, v1')
        e('v_and_b32 v2, 15, v0')
        e('v_lshl_add_u32 v5, v2, 4, v1')
        e(f's_mul_i32 s60, {sCLS}, {768*1280}')
        e(f's_lshl_b32 s61, {sJ}, 8')
        e('s_add_u32 s60, s60, s61')
        e('v_add_u32 v5, s60, v5')
        e(f's_lshl_b32 s62, {sW}, 6')
        self.tr_lane('v6', 4, 256, 's62')

        def stage(c):
            e(f's_lshl_b32 s60, {sW}, 14')
            e(f's_add_u32 m0, s60, {(c & 1) * 65536}')
            e(f's_mov_b32 s61, {c * 256 * 1280}')
            self.dma(16, 'v5', SRA, 's61', 4 * 1280)

        def take(c, left):
            e(f's_waitcnt vmcnt({left})')
            e('s_barrier')
            self.trl([(a(4 * (16 * c + k) + 2 * u, 2), (c & 1) * 65536 + k * 4096 + u * 2048)
                      for k in range(16) for u in range(2)], 'v6', 'v7')
            e('s_waitcnt lgkmcnt(0)')
            e('s_barrier')
        stage(0)
        stage(1)
        take(0, 16)
        stage(2)
        take(1, 16)
        take(2, 0)
        vL16, vW, vR, vG, vF = 8, 9, 10, 12, 5
        e(f'v_lshlrev_b32 {v(vL16)}, 4, v0')
        self.tile_out_consts(vW, vR, vG, 98304)
        e('v_and_b32 v1, 3, v0')
        e(f'v_lshlrev_b32 {v(vF)}, 2, v1')
        e(f's_lshl_b32 s60, {sCLS}, 7')
        e(f's_add_u32 {sA0}, s60, {P_AT}')
        e(f's_lshl_b32 s60, {sCLS}, 2')
        e(f's_add_u32 s60, s60, {sW}')
        e(f's_mul_i32 s77, s60, {QKV_HEAD}')
        e(f's_add_u32 s77, s77, {QKV}')
        e(f's_mul_i32 s78, {sCLS}, {SEGB}')
        e(f's_lshl_b32 s60, {sJ}, 8')
        e('s_add_u32 s78, s78, s60')
        e(f's_lshl_b32 s60, {sW}, 6')
        e('s_add_u32 s78, s78, s60')
        self.wait_init('v6', 'v7')
        ACC, PK, BR = 16, 32, 64
        sS = 's79'

        def item(ly, sseg):
            buf = 49152 * ly
            e(f's_add_u32 {sN}, {sseg}, 1')
            self.poll('v4', v(vF), sA0, sN, imm=1024 * ly)
            e(f's_and_b32 {sT}, {sseg}, {RQ-1}')
            e(f's_mul_i32 {sT}, {sT}, {QKV_SEG}')
            e(f's_add_u32 {sT}, {sT}, s77')
            if ly:
                e(f's_add_u32 {sT}, {sT}, {QL2}')
            e(f's_mul_i32 s60, {sW}, 12288')
            e(f's_add_u32 m0, s60, {buf}')
            self.dma(12, v(vL16), WS, sT, 1024, sc1=True)
            if ly == 0:
                e(f's_and_b32 {sO}, {sseg}, {RING-1}')
                e(f's_mul_i32 {sO}, {sO}, {XP_S}')
                e(f's_add_u32 {sO}, {sO}, {XP1}')
            else:
                e(f's_mul_i32 {sO}, {sseg}, {XP_S}')
                e(f's_add_u32 {sO}, {sO}, {XP2}')
            e(f's_add_u32 {sO}, {sO}, s78')
            e('s_waitcnt vmcnt(0)')
            e('s_barrier')
            PF = 6
            x = 0 if ly == 0 else 32768
            if ly:
                e(f'v_add_u32 v7, 32768, {v(vL16)}')
            ad = v(vL16) if ly == 0 else 'v7'
            for k in range(PF):
                e(f'ds_read_b128 {v(BR+4*(k%8),4)}, {ad} offset:{buf-x+1024*k}')
            for k in range(48):
                if k + PF < 48:
                    e(f'ds_read_b128 {v(BR+4*((k+PF)%8),4)}, {ad} offset:{buf-x+1024*(k+PF)}')
                e(f's_waitcnt lgkmcnt({min(PF, 47-k)})')
                e(f'v_mfma_f32_32x32x16_bf16 {v(ACC,16)}, {a(4*k,4)}, {v(BR+4*(k%8),4)}, {"0" if k==0 else v(ACC,16)}')
            self.tile_out(ACC, PK, vW, vR, vG, sO, 0)
            e('s_waitcnt vmcnt(0)')
            self.signal('v4', sF0 if ly == 0 else sF1, sN)
        e(f's_mov_b32 {sS}, 0')
        e('L_op_loop:')
        e(f's_cmp_ge_u32 {sS}, 64')
        e('s_cbranch_scc1 L_op_2')
        item(0, sS)
        e('L_op_2:')
        e(f's_cmp_lt_u32 {sS}, {L}')
        e('s_cbranch_scc1 L_op_n')
        e(f's_sub_u32 s80, {sS}, {L}')
        item(1, 's80')
        e('L_op_n:')
        e('s_barrier')
        e(f's_add_u32 {sS}, {sS}, 1')
        e(f's_cmp_lt_u32 {sS}, {64 + L}')
        e('s_cbranch_scc1 L_op_loop')
        e('s_endpgm')

    def role_f(self):
        e = self.A.e
        A = self.A
        e('L_f:')
        sLY, sFS, sFW, sN, sT, sO, sS, sFl = 's70', 's71', 's72', 's73', 's74', 's75', 's76', 's77'
        e(f's_mul_i32 s60, {sCLS}, 3')
        e(f's_add_u32 s60, s60, {sSLOT}')
        e('s_sub_u32 s60, s60, 26')
        e('s_cmp_ge_u32 s60, 12')
        e(f's_cselect_b32 {sLY}, 1, 0')
        e(f's_mul_i32 s61, {sLY}, 12')
        e(f's_sub_u32 {sFS}, s60, s61')
        e(f's_lshl_b32 s60, {sFS}, 2')
        e(f's_add_u32 s60, s60, {sW}')
        e('s_lshl_b32 s60, s60, 2')
        e(f's_lshl_b32 s61, {sLY}, 8')
        e('s_add_u32 s60, s60, s61')
        e(f's_add_u32 {sFW}, s60, {P_F}')
        self.zero_word(sFW)
        self.arrive()
        self.ln1_items()
        if not self.on('f'):
            e('s_endpgm')
            return
        self.srd(SRA, 'w1')
        self.srd(SRB, 'w2')
        e('v_lshrrev_b32 v1, 4, v0')
        e(f's_mul_i32 s60, {sW}, 80')
        e('v_add_u32 v1, s60, v1')
        e('v_mul_u32_u24 v1, 3072, v1')
        e('v_and_b32 v2, 15, v0')
        e('v_lshl_add_u32 v5, v2, 4, v1')
        e(f's_lshl_b32 s60, {sFS}, 8')
        e('v_add_u32 v5, s60, v5')
        e(f's_mul_i32 s60, {sW}, 20480')
        e(f's_mul_i32 s61, {sFS}, 163840')
        e('s_add_u32 s60, s60, s61')
        e('v_lshlrev_b32 v8, 4, v0')
        e('v_add_u32 v8, s60, v8')
        e(f's_lshl_b32 s62, {sW}, 6')
        self.tr_lane('v6', 8, 256, 's62')
        e(f's_mul_i32 s62, {sW}, 320')
        self.tr_lane('v9', 4, 1280, 's62')

        def W2(t, k, n=4, u=0):
            r = 32 * t + 4 * k + 2 * u
            return a(160 + r, n) if r < 96 else v(192 + r - 96, n)

        def stage(voff, srd, s0, step, buf):
            e(f's_mul_i32 s60, {sW}, 20480')
            e(f's_add_u32 m0, s60, {buf}')
            e(f's_mov_b32 s61, {s0}')
            self.dma(20, voff, srd, 's61', step)

        def take(left, items, vaddr):
            e(f's_waitcnt vmcnt({left})')
            e('s_barrier')
            self.trl(sorted(items, key=lambda x: x[1]), vaddr, 'v7')
            e('s_waitcnt lgkmcnt(0)')
            e('s_barrier')
        w1i = lambda h: [(a(4 * (20 * h + k) + 2 * u, 2), 81920 * h + k * 4096 + u * 1024) for k in range(20) for u in range(2)]
        w2i = lambda h: [(W2(t, 4 * h + k, 2, u), 81920 * h + (16 * k + 8 * u) * 1280 + t * 64)
                         for t in range(5) for k in range(4) for u in range(2)]
        stage('v5', SRA, 0, 4 * 3072, 0)
        stage('v5', SRA, 320 * 3072, 4 * 3072, 81920)
        take(20, w1i(0), 'v6')
        stage('v8', SRB, 0, 1024, 0)
        take(20, w1i(1), 'v6')
        stage('v8', SRB, 81920, 1024, 81920)
        take(20, w2i(0), 'v9')
        take(0, w2i(1), 'v9')
        VD, VR, vL16, vW, vRd, vG, vF, vH = 8, 10, 9, 128, 129, 130, 5, 6
        self.xn_consts(VD, VR)
        self.tile_out_consts(vW, vRd, vG, 49152)
        e(f'v_lshlrev_b32 {v(vL16)}, 4, v0')
        e(f's_lshl_b32 s60, {sW}, 11')
        e(f'v_add_u32 {v(vH)}, s60, {v(vL16)}')
        e('v_and_b32 v1, 7, v0')
        e(f'v_lshlrev_b32 {v(vF)}, 2, v1')
        e(f's_lshl_b32 {sFl}, {sLY}, 7')
        e(f's_add_u32 {sFl}, {sFl}, {P_R1}')
        e(f's_cmp_eq_u32 {sLY}, 0')
        e(f's_mov_b32 s78, {XNC}')
        e(f's_mov_b32 s79, {FP2}')
        e(f's_cselect_b32 s78, {XNA}, s78')
        e(f's_cselect_b32 s79, {FP1}, s79')
        e(f's_cselect_b32 s80, {RING-1}, 63')
        e(f's_mul_i32 s60, {sFS}, {SEGB}')
        e('s_add_u32 s79, s79, s60')
        e(f's_mul_i32 s60, {sW}, 320')
        e('s_add_u32 s79, s79, s60')
        self.wait_init('v4', 'v7')
        ACC, PK, BR, HF = (16, 32), (48, 64), 96, 136
        e(f's_mov_b32 {sS}, 0')
        e('L_f_loop:')
        e(f's_add_u32 {sN}, {sS}, 1')
        self.poll('v4', v(vF), sFl, sN)
        e(f's_mul_i32 {sT}, {sS}, {SEGB}')
        e(f's_add_u32 {sT}, {sT}, s78')
        self.xn_dma(VD, sT, 0)
        e(f's_and_b32 {sO}, {sS}, s80')
        e(f's_mul_i32 {sO}, {sO}, {FP_S}')
        e(f's_add_u32 {sO}, {sO}, s79')
        e('s_waitcnt vmcnt(0)')
        e('s_barrier')
        PF = 6
        for k in range(PF):
            e(f'ds_read_b128 {v(BR+4*(k%8),4)}, {v(VR+(k&3))} offset:{(k>>2)*1024}')
        for k in range(40):
            if k + PF < 40:
                kk = k + PF
                e(f'ds_read_b128 {v(BR+4*(kk%8),4)}, {v(VR+(kk&3))} offset:{(kk>>2)*1024}')
            e(f's_waitcnt lgkmcnt({min(PF, 39-k)})')
            e(f'v_mfma_f32_32x32x16_bf16 {v(ACC[0],16)}, {a(4*k,4)}, {v(BR+4*(k%8),4)}, {"0" if k==0 else v(ACC[0],16)}')
        for j in range(8):
            e(f'v_cvt_pk_bf16_f32 {v(PK[0]+j)}, {v(ACC[0]+2*j)}, {v(ACC[0]+2*j+1)}')
        for j in range(8):
            e(f'v_pk_max_i16 {v(PK[0]+j)}, {v(PK[0]+j)}, 0')
        e(f'ds_write_b128 {v(vH)}, {v(PK[0],4)} offset:40960')
        e(f'ds_write_b128 {v(vH)}, {v(PK[0]+4,4)} offset:41984')
        e('s_waitcnt lgkmcnt(0)')
        e('s_barrier')
        for k in range(8):
            e(f'ds_read_b128 {v(HF+4*k,4)}, {v(vL16)} offset:{40960+1024*k}')

        def g2(t):
            d = v(ACC[t & 1], 16)
            for k in range(8):
                if t == 0:
                    e(f's_waitcnt lgkmcnt({7-k})')
                e(f'v_mfma_f32_32x32x16_bf16 {d}, {W2(t,k)}, {v(HF+4*k,4)}, {"0" if k==0 else d}')
        g2(0)
        for t in range(1, 5):
            g2(t)
            self.tile_out(ACC[(t - 1) & 1], PK[(t - 1) & 1], vW, vRd, vG, sO, 64 * (t - 1))
        self.tile_out(ACC[0], PK[0], vW, vRd, vG, sO, 256)
        e('s_waitcnt vmcnt(0)')
        self.signal('v4', sFW, sN)
        e(f's_mov_b32 {sS}, {sN}')
        e(f's_cmp_lt_u32 {sS}, 64')
        e('s_cbranch_scc1 L_f_loop')
        e('s_endpgm')

if __name__ == '__main__':
    import argparse
    ap = argparse.ArgumentParser()
    ap.add_argument('-o', default='out.s')
    ap.add_argument('--L', type=int, default=6)
    ap.add_argument('--A', type=int, default=10)
    ap.add_argument('--roles', default='all')
    ap.add_argument('--diag', action='store_true')
    ap.add_argument('--slow', action='store_true')
    ap.add_argument('--nsteps', type=int, default=None)
    ap.add_argument('--opt', default='')
    args = ap.parse_args()
    opt = {k: int(x) for k, x in (kv.split('=') for kv in args.opt.split(',') if kv)}
    g = Gen(opt=opt, L=args.L, A=args.A, roles=args.roles, diag=args.diag, nsteps=args.nsteps, force_slow=args.slow)
    txt, n = g.build()
    open(args.o, 'w').write(txt)
    print('wrote', args.o, len(txt), 'bytes; nop states inserted:', n)
```

```python
from common import *


class ChainMixin:
    def role_chain(self):
        e = self.A.e
        A = self.A
        L = self.L
        RQ = self.opt['rq']
        e('L_chain:')
        sHH, sP, sTILE, sS = 's64', 's65', 's66', 's67'
        sAGr, sAGw = 's68', 's69'
        sSw, sSa, sSb = 's71', 's73', 's74'
        sOw, sOr, sCw = 's75', 's77', 's78'
        sN1, sN2, sQ1, sQ2, sPF, sPCH = 's82', 's83', 's84', 's85', 's86', 's87'
        mL2, mINV, mT, mU = 's[88:89]', 's[90:91]', 's[92:93]', 's[94:95]'
        sHEAD = 's96'
        sK1, sK2 = 's42', 's43'
        sCR = ['s%d' % i for i in range(48, 55)]
        cAG, cAG4, cSw, cSa, cSb, cOw, cOr, cOr4, cCw, cAGw = 's55', 's56', 's57', 's58', 's59', 's70', 's72', 's76', 's79', 's80'
        sW5, sW6, sQW, sW10 = 's81', 's61', 's62', 's63'
        nAGw, cK1, cK2, rO, rS, rAG, xV0, xV1, xK = 's16', 's17', 's18', 's19', 's20', 's21', 's22', 's23', 's24'
        e(f's_mul_i32 {sHH}, {sSLOT}, 11')
        e(f's_lshr_b32 {sHH}, {sHH}, 5')
        e(f's_mul_i32 s60, {sHH}, 3')
        e(f's_sub_u32 {sP}, {sSLOT}, s60')
        e(f's_lshl_b32 {sTILE}, {sSLOT}, 2')
        e(f's_add_u32 {sTILE}, {sTILE}, {sW}')
        e(f's_lshl_b32 {sHEAD}, {sCLS}, 2')
        e(f's_add_u32 {sHEAD}, {sHEAD}, {sHH}')
        vVM, vL16, vTW, vGA, vGO, vFL, vK, SEL, vV, vKM = 1, 2, 3, 4, 5, 6, 7, 8, 12, 13
        e(f'v_lshlrev_b32 {v(vL16)}, 4, v0')
        e('v_and_b32 v16, 15, v0')
        e('v_lshrrev_b32 v17, 4, v0')
        e('v_lshlrev_b32 v18, 5, v16')
        e(f'v_lshl_add_u32 {v(vTW)}, v17, 3, v18')
        e('v_lshrrev_b32 v19, 1, v17')
        e('v_and_b32 v20, 1, v17')
        e('v_lshl_add_u32 v18, v19, 9, v18')
        e('v_lshl_add_u32 v18, v20, 4, v18')
        e(f's_mul_i32 s60, {sW}, 5120')
        e(f'v_add_u32 {v(vGA)}, s60, v18')
        e(f's_mul_i32 s60, {sW}, 6144')
        e(f'v_add_u32 {v(vGO)}, s60, v18')
        XB_ = self.opt['xb']
        if XB_:
            e(f's_mov_b32 {sAGr}, {AGG}')
        else:
            e(f's_mul_i32 s60, {sCLS}, {AG_C}')
            e(f's_add_u32 {sAGr}, s60, {CH_AG}')
        e(f's_lshl_b32 s61, {sTILE}, 9')
        e(f's_add_u32 {sAGw}, {sAGr}, s61')
        e(f's_mul_i32 s60, {sCLS}, {S_C}')
        e(f's_add_u32 s60, s60, {CH_S}')
        e(f's_lshl_b32 s61, {sW}, 10')
        e('s_add_u32 s60, s60, s61')
        e(f's_mul_i32 s61, {sSLOT}, 3072')
        e(f's_add_u32 {sSw}, s60, s61')
        e(f's_add_u32 s61, {sP}, 1')
        e('s_cmp_eq_u32 s61, 3')
        e('s_cselect_b32 s61, 0, s61')
        e(f's_mul_i32 s62, {sHH}, 3')
        e('s_add_u32 s63, s62, s61')
        e('s_mul_i32 s63, s63, 3072')
        e(f's_add_u32 {sSa}, s60, s63')
        e('s_add_u32 s61, s61, 1')
        e('s_cmp_eq_u32 s61, 3')
        e('s_cselect_b32 s61, 0, s61')
        e('s_add_u32 s63, s62, s61')
        e('s_mul_i32 s63, s63, 3072')
        e(f's_add_u32 {sSb}, s60, s63')
        e(f's_mul_i32 s60, {sCLS}, {O_C}')
        e(f's_add_u32 {sOr}, s60, {CH_O}')
        e(f's_lshl_b32 s61, {sTILE}, 9')
        e(f's_add_u32 {sOw}, {sOr}, s61')
        e(f's_lshl_b32 s60, {sTILE}, 12')
        e(f's_lshl_b32 s61, {sCLS}, 9')
        e('s_add_u32 s60, s60, s61')
        e(f's_add_u32 {sCw}, s60, {CH_CR}')
        e(f's_lshl_b32 s60, {sCLS}, 8')
        e(f's_lshl_b32 s61, {sTILE}, 2')
        e('s_add_u32 s60, s60, s61')
        e(f's_add_u32 {sPCH}, s60, {P_CH}')
        SENT = 24
        for r in range(4):
            e(f'v_mov_b32 v{SENT+r}, -1')
        e('v_mov_b32 v28, 0')
        e('s_mov_b64 exec, 1')
        e(f'buffer_store_dword v28, off, {WS}, {sPCH} sc1')
        e('s_mov_b64 exec, -1')
        for sl in range(2):
            e(f's_add_u32 s60, {sOw}, {sl*O_S}')
            e(f'buffer_store_dwordx2 {v(SENT,2)}, {v(vTW)}, {WS}, s60 offen sc1')
        l3 = A.lab('i3')
        e(f's_cmp_eq_u32 {sW}, 3')
        e(f's_cbranch_scc1 {l3}')
        for sl in range(2):
            e(f's_add_u32 s60, {sSw}, {sl*S_S}')
            e(f'buffer_store_dwordx4 {v(SENT,4)}, {v(vL16)}, {WS}, s60 offen sc1')
        e(f'{l3}:')
        l4 = A.lab('i4')
        e(f's_cmp_ge_u32 {sTILE}, 40')
        e(f's_cbranch_scc1 {l4}')
        for sl in range(2):
            e(f's_add_u32 s60, {sCw}, {sl*CR_S}')
            e(f'buffer_store_dwordx2 {v(SENT,2)}, {v(vTW)}, {WS}, s60 offen sc1')
            e(f's_add_u32 s60, {sAGw}, {(sl+1)*AG_S}')
            e(f'buffer_store_dwordx2 {v(SENT,2)}, {v(vTW)}, {WS}, s60 offen sc1')
        e(f'{l4}:')
        self.arrive()
        self.srd(SRA, 'wq')
        self.srd(SRB, 'wk')
        self.srd(SRC, 'wv')
        self.srd(SRD, 'wo')
        e('v_lshrrev_b32 v21, 3, v0')
        e('v_and_b32 v22, 7, v0')
        e(f's_mul_i32 s60, {sW}, 40')
        e('v_add_u32 v23, s60, v21')
        e('s_mov_b32 s61, 12288')
        e('v_mul_lo_u32 v30, s61, v23')
        e('v_lshl_add_u32 v30, v22, 4, v30')
        e(f's_mul_i32 s60, {sHEAD}, 384')
        e(f's_lshl_b32 s61, {sP}, 7')
        e('s_add_u32 s60, s60, s61')
        e('v_add_u32 v30, s60, v30')

        def unit(cn):
            buf = 102400 * (cn & 1)
            for m, srd in enumerate((SRA, SRB, SRC)):
                e(f's_mul_i32 s60, {sW}, 5120')
                e(f's_add_u32 m0, s60, {buf + 20480 * m}')
                e(f's_mov_b32 s61, {cn * 160 * 12288}')
                self.dma(5, 'v30', srd, 's61', 8 * 12288)
        unit(0)
        unit(1)
        self.stamp(2, real=True)
        e(f's_min_u32 s61, {sSLOT}, 9')
        e('s_lshl_b32 s61, s61, 7')
        e(f's_mul_i32 s60, {sCLS}, {768*1280}')
        e('s_add_u32 s60, s60, s61')
        e(f's_mul_i32 s61, {sW}, 192')
        e('v_add_u32 v23, s61, v21')
        e('v_mul_u32_u24 v31, 1280, v23')
        e('v_lshl_add_u32 v31, v22, 4, v31')
        e('v_add_u32 v31, s60, v31')
        e('v_bfe_u32 v21, v0, 2, 2')
        e('v_lshl_add_u32 v21, v17, 3, v21')
        e('v_lshlrev_b32 v21, 7, v21')
        e('v_bfe_u32 v22, v0, 1, 1')
        e('v_lshl_add_u32 v33, v22, 5, v21')
        e('v_and_b32 v22, 1, v0')
        e('v_lshl_add_u32 v33, v22, 3, v33')
        e(f's_lshr_b32 s60, {sW}, 1')
        e('s_lshl_b32 s60, s60, 6')
        e(f's_and_b32 s61, {sW}, 1')
        e('s_lshl_b32 s61, s61, 4')
        e('s_add_u32 s60, s60, s61')
        e('v_add_u32 v33, s60, v33')
        e('v_and_b32 v22, 3, v0')
        e('v_lshl_add_u32 v34, v22, 3, v21')
        e(f's_lshl_b32 s60, {sW}, 5')
        e('v_add_u32 v34, s60, v34')
        e('v_add_u32 v32, 102400, v33')
        e('v_add_u32 v35, 102400, v34')

        def Wo(k, n=4, u=0):
            r = 4 * k + 2 * u
            return a(240 + r, n) if r < 16 else v(176 + r - 16, n)

        def take(cn, n_left):
            e(f's_waitcnt vmcnt({n_left})')
            e('s_barrier')
            done = A.lab('tk')
            for w in range(4):
                nx = A.lab('tw')
                if w < 3:
                    e(f's_cmp_lg_u32 {sW}, {w}')
                    e(f's_cbranch_scc1 {nx}')
                gj = (cn - w) & 3
                for m in range(3):
                    ad = (('v33', 'v33', 'v34'), ('v32', 'v32', 'v35'))[cn & 1][m]
                    for j in range(5):
                        for u in range(2):
                            e(f'ds_read_b64_tr_b16 {a(80*m + 4*(5*gj+j) + 2*u, 2)}, {ad} offset:{20480*m + j*4096 + u*512}')
                if w < 3:
                    e(f's_branch {done}')
                    e(f'{nx}:')
            e(f'{done}:')
            e('s_waitcnt lgkmcnt(0)')
            e('s_barrier')

        def take_wo():
            e('s_waitcnt vmcnt(0)')
            e('s_barrier')
            for gj in range(4):
                e(f's_add_u32 s60, {sW}, {gj}')
                e('s_and_b32 s60, s60, 3')
                e('s_mul_i32 s60, s60, 24576')
                e('v_add_u32 v35, s60, v34')
                for j in range(6):
                    for u in range(2):
                        e(f'ds_read_b64_tr_b16 {Wo(6*gj+j, 2, u)}, v35 offset:{j*4096+u*512}')
            e('s_waitcnt lgkmcnt(0)')
            e('s_barrier')
        e('v_lshrrev_b32 v21, 3, v16')
        e('v_lshlrev_b32 v21, 4, v21')
        e('v_bfe_u32 v22, v16, 2, 1')
        e('v_lshl_add_u32 v21, v22, 2, v21')
        e('v_and_b32 v22, 3, v16')
        e('v_add_u32 v21, v21, v22')
        e(f's_and_b32 s60, {sW}, 1')
        e('s_lshl_b32 s60, s60, 3')
        e('v_add_u32 v21, s60, v21')
        e('v_lshl_add_u32 v21, v20, 5, v21')
        e('v_lshlrev_b32 v21, 4, v21')
        e('v_lshl_add_u32 v21, v19, 10, v21')
        e(f's_mul_i32 s60, {sHEAD}, {QKV_HEAD}')
        e(f's_lshl_b32 s61, {sP}, 12')
        e('s_add_u32 s60, s60, s61')
        e('s_add_u32 s61, s60, 12288')
        e(f'v_add_u32 {v(vK)}, s61, v21')
        e(f's_and_b32 s62, {sW}, 1')
        e('s_lshl_b32 s62, s62, 4')
        e('v_add_u32 v21, s62, v16')
        e('v_lshl_add_u32 v22, v20, 5, v21')
        e('v_lshlrev_b32 v22, 4, v22')
        e('v_lshl_add_u32 v22, v19, 10, v22')
        e(f's_lshr_b32 s63, {sW}, 1')
        e('s_lshl_b32 s61, s63, 11')
        e('s_add_u32 s61, s61, s60')
        e('s_add_u32 s61, s61, 24576')
        e(f'v_add_u32 {v(vV)}, s61, v22')
        l2off = KL2
        e('v_lshlrev_b32 v21, 3, v21')
        e('v_lshl_add_u32 v21, v20, 8, v21')
        e(f's_mov_b32 s61, {l2off}')
        e('v_mul_lo_u32 v22, s61, v19')
        e('v_add_u32 v21, v21, v22')
        e(f's_mul_i32 s60, {sHEAD}, {KM_HEAD}')
        e(f's_lshl_b32 s62, {sP}, 10')
        e('s_add_u32 s60, s60, s62')
        e(f's_add_u32 s60, s60, {KMVM}')
        e('s_lshl_b32 s62, s63, 9')
        e('s_add_u32 s62, s62, s60')
        e('s_add_u32 s62, s62, 3072')
        e(f'v_add_u32 {v(vVM)}, s62, v21')
        e('v_lshrrev_b32 v21, 3, v16')
        e('v_mul_lo_u32 v21, s61, v21')
        e('v_and_b32 v22, 7, v16')
        e('v_lshl_add_u32 v21, v22, 4, v21')
        e('v_lshl_add_u32 v21, v17, 7, v21')
        e(f'v_add_u32 {v(vKM)}, s60, v21')
        e(f's_mul_i32 s60, {sHH}, 9')
        e(f's_add_u32 s60, s60, {sP}')
        e('s_add_u32 s60, s60, 3')
        e('v_and_b32 v21, 1, v0')
        e('v_mul_u32_u24 v21, 3, v21')
        e('v_add_u32 v21, s60, v21')
        e(f'v_lshlrev_b32 {v(vFL)}, 2, v21')
        e(f's_lshl_b32 s60, {sCLS}, 8')
        e(f's_add_u32 {sPF}, s60, {P_QKV}')
        e('s_mov_b32 s88, 0xff00ff00')
        e('s_mov_b32 s89, 0xff00ff00')
        e('s_mov_b32 s90, 0xff00ff00')
        e('s_mov_b32 s91, 0x00ff00ff')
        e('v_lshrrev_b32 v21, 2, v16')
        e('v_and_b32 v22, 3, v16')
        e('v_cmp_ne_u32 vcc, v21, v17')
        e('v_cndmask_b32 v22, v22, 15, vcc')
        e('v_mov_b32 v21, 0x3f80')
        e('v_mov_b32 v23, 0x3f800000')
        for d in range(2):
            e(f'v_cmp_eq_u32 vcc, {2*d}, v22')
            e(f'v_cndmask_b32 {v(SEL+d)}, 0, v21, vcc')
            e(f'v_cmp_eq_u32 vcc, {2*d+1}, v22')
            e(f'v_cndmask_b32 {v(SEL+d)}, {v(SEL+d)}, v23, vcc')
            e(f'v_mov_b32 {v(SEL+2+d)}, {v(SEL+d)}')
        take(0, 15)
        unit(2)
        self.stamp(3, real=True)
        take(1, 15)
        unit(3)
        self.stamp(4, real=True)
        take(2, 15)
        e(f's_mul_i32 s60, {sW}, 24576')
        e('s_mov_b32 m0, s60')
        e('s_mov_b32 s61, 0')
        self.dma(24, 'v31', SRD, 's61', 8 * 1280)
        self.stamp(5, real=True)
        take(3, 24)
        QA, KA, VA_, VMP = 16, 20, 24, 28
        KX, VX, QF, KF, G, MEM = 32, 48, 56, 64, 72, 96
        ONESQ = G + 20
        QX, KXL, SL, OL = 45056, 47104, 49152, 20480
        e('v_mov_b32 v58, 0')
        e('v_mov_b32 v59, 0')
        self.srd(SRA, 'mem0')
        for i in range(7):
            e(f's_add_u32 s60, {sCLS}, {i+1}')
            e('s_and_b32 s60, s60, 7')
            e('s_lshl_b32 s60, s60, 9')
            e(f's_lshl_b32 {sCR[i]}, {sTILE}, 12')
            e(f's_add_u32 {sCR[i]}, {sCR[i]}, s60')
            e(f's_add_u32 {sCR[i]}, {sCR[i]}, {CH_CR}')
        e(f's_mul_i32 s32, {sTILE}, 52')
        e('s_lshr_b32 s32, s32, 8')
        e(f's_cmp_eq_u32 s32, {sCLS}')
        e('s_cselect_b32 s32, 1, 0')
        for g in range(3):
            e(f's_add_u32 s60, {sW}, {g+1}')
            e('s_and_b32 s60, s60, 3')
            e(f's_mul_i32 s{33+g}, s60, 5120')
            e(f's_mul_i32 s{36+g}, s60, 6144')
        e(f's_mul_i32 s27, {sCLS}, 12')
        e(f's_add_u32 s27, s27, {sSLOT}')
        e('s_lshl_b32 s27, s27, 10')
        e(f's_add_u32 s27, s27, {SCRATCH}')
        e(f's_mul_i32 {sW5}, {sW}, 5120')
        e(f's_mul_i32 {sW6}, {sW}, 6144')
        e(f's_lshl_b32 {sW10}, {sW}, 10')
        e(f's_lshr_b32 {sQW}, {sW}, 1')
        e(f's_lshl_b32 {sQW}, {sQW}, 10')
        e(f's_and_b32 s60, {sW}, 1')
        e('s_lshl_b32 s60, s60, 3')
        e(f's_add_u32 {sQW}, {sQW}, s60')
        take_wo()
        self.stamp(6, real=True)
        self.wait_init('v21', 'v22', 's92')
        self.stamp(1, real=True)
        self.flush()
        e(f's_mov_b32 {sS}, 0')
        e(f's_mov_b32 {sK1}, 0')
        e(f's_mov_b32 {sK2}, 0')
        e(f's_cmp_eq_u32 {sFAST}, 0')
        e('s_cbranch_scc1 L_ch_init_s')

        def maxtree(dst, first, n):
            e(f'v_max3_u32 {dst}, {v(first)}, {v(first+1)}, {v(first+2)}')
            k = 3
            while k < n:
                if k + 1 < n:
                    e(f'v_max3_u32 {dst}, {dst}, {v(first+k)}, {v(first+k+1)}')
                    k += 2
                else:
                    e(f'v_max_u32 {dst}, {dst}, {v(first+k)}')
                    k += 1

        def maxtree2(d0, d1, first, n):
            h = n // 2
            maxtree(d0, first, h)
            maxtree(d1, first + h, n - h)
            e(f'v_max_u32 {d0}, {d0}, {d1}')

        def flagload():
            e(f'buffer_load_dword v58, {v(vFL)}, {WS}, {sPF} offen sc1')
            e(f'buffer_load_dword v59, {v(vFL)}, {WS}, {sPF} offen offset:2048 sc1')

        def flagtake():
            e(f'v_readlane_b32 {sK1}, v58, 0')
            e('v_readlane_b32 s92, v58, 1')
            e(f'v_readlane_b32 {sK2}, v59, 0')
            e('v_readlane_b32 s93, v59, 1')
            e(f's_min_u32 {sK1}, {sK1}, s92')
            e(f's_min_u32 {sK2}, {sK2}, s93')

        def Wo(k, n=4):
            r = 4 * k
            return a(240 + r, n) if r < 16 else v(176 + r - 16, n)

        def loop(md):
            X_ = '' if md == 'f' else ' sc1'
            tails = []

            def gather(tag, n, vsrc, s0, s4, vlds, ldsoff, young=None, ny=0, G=G, after=None):
                def ld(i):
                    so, im = (s0, 1024 * i) if i < 4 else (s4, 1024 * (i - 4))
                    e(f'buffer_load_dwordx4 {v(G+4*i,4)}, {v(vsrc)}, {WS}, {so} offen offset:{im} sc1')

                def chk(i):
                    e(f'v_max3_u32 v30, {v(G+4*i)}, {v(G+4*i+1)}, {v(G+4*i+2)}')
                    e(f'v_max_u32 v30, v30, {v(G+4*i+3)}')
                    e('v_cmp_eq_u32 vcc, -1, v30')
                for i in range(n):
                    ld(i)
                if young:
                    young()
                for i in range(n):
                    e(f's_waitcnt vmcnt({n-1-i+ny})')
                    e(f'L_{tag}c{i}_{md}:')
                    chk(i)
                    e(f's_cbranch_vccnz L_{tag}r{i}_{md}')
                    e(f'L_{tag}p{i}_{md}:')
                    e(f'ds_write_b128 {vlds}, {v(G+4*i,4)} offset:{ldsoff+1024*i}')
                    if after:
                        after(i)

                def tail():
                    for i in range(n):
                        e(f'L_{tag}r{i}_{md}:')
                        for j in range(i, n):
                            ld(j)
                        if self.opt['lean']:
                            e(f's_waitcnt vmcnt({n-1-i})')
                            e(f'L_{tag}l{i}_{md}:')
                            chk(i)
                            e(f's_cbranch_vccz L_{tag}p{i}_{md}')
                            ld(i)
                            e(f's_sub_u32 {sSPIN}, {sSPIN}, 1')
                            e('s_cbranch_scc1 L_fail')
                            e('s_waitcnt vmcnt(0)')
                            e(f's_branch L_{tag}l{i}_{md}')
                        else:
                            e(f's_sub_u32 {sSPIN}, {sSPIN}, 1')
                            e('s_cbranch_scc1 L_fail')
                            e(f's_waitcnt vmcnt({n-1-i})')
                            e(f's_branch L_{tag}c{i}_{md}')
                tails.append(tail)

            def nextkv_steps():
                yield lambda: (e(f's_add_u32 s92, {sS}, 1'), e(f's_and_b32 s60, {sS}, {RQ-1}'))
                yield lambda: (e(f's_mul_i32 {sQ1}, s60, {QKV_SEG}'), e(f's_add_u32 {sQ1}, {sQ1}, {QKV}'))
                yield lambda: (e(f's_cmp_lt_u32 {sS}, 64'), e(f's_cselect_b32 {sN1}, s92, 0'),
                               e(f's_cselect_b32 {sQ1}, {sQ1}, s10'))
                yield lambda: (e(f's_sub_u32 s60, {sS}, {L}'), e(f's_and_b32 s60, s60, {RQ-1}'))
                yield lambda: (e(f's_mul_i32 {sQ2}, s60, {QKV_SEG}'), e(f's_add_u32 {sQ2}, {sQ2}, {QKV + QL2}'))
                yield lambda: (e(f's_sub_u32 s92, s92, {L}'), e(f's_cmp_ge_u32 {sS}, {L}'))
                yield lambda: (e(f's_cselect_b32 {sN2}, s92, 0'), e(f's_cselect_b32 {sQ2}, {sQ2}, s10'))
                yield lambda: (e(f's_cmp_ge_u32 {sS}, {64 + L}'), e(f's_cselect_b32 {sN2}, 0, {sN2}'),
                               e(f's_cselect_b32 {sQ2}, s10, {sQ2}'))

            def ready():
                e(f's_cmp_gt_u32 {sN1}, {sK1}')
                e('s_cselect_b32 s30, 1, 0')
                e(f's_cmp_gt_u32 {sN2}, {sK2}')
                e('s_cselect_b32 s30, 1, s30')

            kvl = [f'buffer_load_dwordx4 {v(KX,4)}, {v(vK)}, {WS}, {sQ1} offen sc1',
                   f'buffer_load_dwordx4 {v(KX+4,4)}, {v(vK)}, {WS}, {sQ1} offen offset:2048 sc1',
                   f'buffer_load_dwordx4 {v(KX+8,4)}, {v(vK)}, {WS}, {sQ2} offen sc1',
                   f'buffer_load_dwordx4 {v(KX+12,4)}, {v(vK)}, {WS}, {sQ2} offen offset:2048 sc1',
                   f'buffer_load_dwordx4 {v(VX,4)}, {v(vV)}, {WS}, {sQ1} offen sc1',
                   f'buffer_load_dwordx4 {v(VX+4,4)}, {v(vV)}, {WS}, {sQ2} offen sc1']

            def scalars():
                e(f's_and_b32 s60, {sS}, 3')
                e(f's_mul_i32 s92, {sS if XB_ else "s60"}, {AG_S}')
                e(f's_add_u32 {cAG}, s92, {sAGr}')
                e(f's_add_u32 {cAG4}, {cAG}, 4096')
                e(f's_mul_i32 s92, s60, {S_S}')
                e(f's_add_u32 {cSw}, s92, {sSw}')
                e(f's_add_u32 {cSa}, s92, {sSa}')
                e(f's_add_u32 {cSb}, s92, {sSb}')
                e(f's_mul_i32 s92, s60, {O_S}')
                e(f's_add_u32 {cOw}, s92, {sOw}')
                e(f's_add_u32 {cOr}, s92, {sOr}')
                e(f's_add_u32 {cOr4}, {cOr}, 4096')
                e('s_xor_b32 s60, s60, 2')
                e(f's_mul_i32 s92, s60, {O_S}')
                e(f's_add_u32 {rO}, s92, {sOw}')
                e(f's_mul_i32 s92, s60, {S_S}')
                e(f's_add_u32 {rS}, s92, {sSw}')
                e(f's_cmp_eq_u32 {sW}, 3')
                e(f's_cselect_b32 {rS}, s27, {rS}')
                e(f's_and_b32 s60, {sS}, {self.opt["crring"]-1}')
                e(f's_mul_i32 {cCw}, s60, {CR_S}')
                e(f's_add_u32 s92, {sS}, 1')
                e('s_and_b32 s93, s92, 3')
                e(f's_mul_i32 s94, {"s92" if XB_ else "s93"}, {AG_S}')
                e(f's_add_u32 {nAGw}, s94, {sAGw}')
                e('s_xor_b32 s93, s93, 2')
                e(f's_mul_i32 s94, s93, {AG_S}')
                e(f's_add_u32 {rAG}, s94, {sAGw}')
                e(f's_cmp_lt_u32 {sS}, 64')
                e(f's_cselect_b32 {xV0}, -1, 0')
                e(f's_cselect_b32 {xK}, 0x00ff00ff, 0')
                e(f's_cmp_ge_u32 {sS}, {L}')
                e(f's_cselect_b32 {xV1}, -1, 0')
                e('s_cselect_b32 s92, 0xff00ff00, 0')
                e(f's_or_b32 {xK}, {xK}, s92')
                e(f's_mov_b32 s25, {xK}')
                e(f's_and_b32 s60, {sS}, {RQ-1}')
                e(f's_mul_i32 {cK1}, s60, {KM_SEG}')
                e(f's_sub_u32 s60, {sS}, {L}')
                e(f's_and_b32 s60, s60, {RQ-1}')
                e(f's_mul_i32 {cK2}, s60, {KM_SEG}')
                e(f's_cmp_eq_u32 {sS}, 0')
                e('s_cselect_b32 s26, 1, 0')
                e(f's_cmp_eq_u32 {sS}, {L}')
                e('s_cselect_b32 s26, 1, s26')
                e(f'v_add_u32 v29, {sW5}, {v(vL16)}')

            e(f'L_ch_init_{md}:')
            for x in nextkv_steps():
                x()
            e('s_mov_b32 s30, 1')
            e('s_mov_b32 s31, 16')
            scalars()
            e(f'L_ch_step_{md}:')
            e('s_cmp_lg_u32 s26, 0')
            e(f's_cbranch_scc1 L_ch_sp_{md}')
            if self.opt['agdelay']:
                e(f's_sleep {self.opt["agdelay"]}')

            def qk(k):
                e(f'v_mfma_f32_16x16x32_bf16 {v(QA,4)}, {a(4*k,4)}, {v(MEM+4*k,4)}, {"0" if k==0 else v(QA,4)}')
                e(f'v_mfma_f32_16x16x32_bf16 {v(KA,4)}, {a(80+4*k,4)}, {v(MEM+4*k,4)}, {"0" if k==0 else v(KA,4)}')

            def agyoung():
                flagtake()
                ready()
                for g in range(3):
                    e(f'v_add_u32 {v(G+g)}, s{33+g}, {v(vL16)}')
            NPRE = self.opt['npre']
            gather('ag', 5, vGA, cAG, cAG4, 'v29', 0, agyoung, 0, MEM, lambda i: qk(i) if i < NPRE else None)
            e(f'L_ch_ag_{md}:')

            def special():
                e(f'L_ch_sp_{md}:')
                e('v_and_b32 v28, 7, v0')
                e('v_mul_u32_u24 v28, 1280, v28')
                e('v_lshrrev_b32 v30, 4, v0')
                e('v_lshl_add_u32 v28, v30, 4, v28')
                e(f's_mul_i32 s60, {sW}, 320')
                e('v_add_u32 v28, s60, v28')
                for i in range(5):
                    e(f'buffer_load_dwordx4 {v(G+4*i,4)}, v28, {SRA}, 0 offen offset:{64*i}')
                e(f's_mov_b64 {mT}, -1')
                e(f's_cmp_eq_u32 {sS}, 0')
                e(f's_cbranch_scc1 L_ch_sq_{md}')
                e(f's_mov_b64 {mT}, {mL2}')
                e(f'L_ch_sr_{md}:')
                for i in range(5):
                    so, im = (cAG, 1024 * i) if i < 4 else (cAG4, 0)
                    e(f'buffer_load_dwordx4 {v(MEM+4*i,4)}, {v(vGA)}, {WS}, {so} offen offset:{im} sc1')
                e('s_waitcnt vmcnt(0)')
                maxtree2('v28', 'v30', MEM, 20)
                e('v_cmp_eq_u32 vcc, -1, v28')
                e(f's_cbranch_vccz L_ch_sq_{md}')
                self.spin(f'L_ch_sr_{md}')
                e(f'L_ch_sq_{md}:')
                e('s_waitcnt vmcnt(0)')
                for i in range(20):
                    e(f'v_cndmask_b32 {v(MEM+i)}, {v(MEM+i)}, {v(G+i)}, {mT}')
                for i in range(5):
                    e(f'ds_write_b128 v29, {v(MEM+4*i,4)} offset:{1024*i}')
                agyoung()
                for i in range(NPRE):
                    qk(i)
                e(f's_branch L_ch_ag_{md}')
                e(f'L_ch_fl_{md}:')
                flagload()
                e('s_waitcnt vmcnt(0)')
                flagtake()
                ready()
                e('s_cmp_eq_u32 s30, 0')
                e(f's_cbranch_scc1 L_ch_fc_{md}')
                self.spin(f'L_ch_fl_{md}', 2)
            tails.append(special)
            self.stamp(7)
            self.note(11, sSPIN)
            self.flush()
            self.stamp(0)
            self.stamp(15, real=True)
            e('s_waitcnt lgkmcnt(0)')
            e('s_barrier')
            PF = 8

            def mrd(k):
                e(f'ds_read_b128 {v(MEM+4*k,4)}, {v(G + k//5 - 1)} offset:{1024*(k%5)}')
            for k in range(5, 5 + PF):
                mrd(k)
            e(f's_mov_b32 {cAGw}, {nAGw}')
            e('s_cmp_lg_u32 s30, 0')
            e(f's_cbranch_scc1 L_ch_fl_{md}')
            e(f'L_ch_fc_{md}:')
            kq = list(kvl)
            for k in range(NPRE, 5):
                qk(k)
                for _ in range(2):
                    if len(kq) > 2:
                        e(kq.pop(0))
            for k in range(5, 20):
                if k + PF < 20:
                    mrd(k + PF)
                e(f's_waitcnt lgkmcnt({min(PF, 19-k)})')
                qk(k)
                if kq and (len(kq) > 2 or k >= self.opt['vat']):
                    e(kq.pop(0))
                if 13 <= k < 17:
                    e(f'v_mov_b32 {v(ONESQ+k-13)}, 0x3f803f80')
                if k == 17:
                    e(f'v_add_u32 v30, {sQW}, {v(vL16)}')
                if k == 18:
                    e(f'v_add_u32 v31, {sW10}, {v(vL16)}')
            vk = [0]

            def vm(n):
                for _ in range(n):
                    k = vk[0]
                    if k < 20:
                        e(f'v_mfma_f32_16x16x32_bf16 {v(VA_,4)}, {v(MEM+4*k,4)}, {a(160+4*k,4)}, {"0" if k==0 else v(VA_,4)}')
                        vk[0] += 1
            vm(1)
            e(f'v_cvt_pk_bf16_f32 {v(G)}, {v(QA)}, {v(QA+1)}')
            e(f'v_cvt_pk_bf16_f32 {v(G+1)}, {v(QA+2)}, {v(QA+3)}')
            e(f'ds_write_b64 v30, {v(G,2)} offset:{QX}')
            e(f'v_cvt_pk_bf16_f32 {v(G+2)}, {v(KA)}, {v(KA+1)}')
            e(f'v_cvt_pk_bf16_f32 {v(G+3)}, {v(KA+2)}, {v(KA+3)}')
            e(f'ds_write_b64 v30, {v(G+2,2)} offset:{KXL}')
            vm(3)
            e('s_waitcnt lgkmcnt(0)')
            e('s_barrier')
            self.stamp(1)
            S4 = G + 4
            e(f'ds_read_b128 {v(QF,4)}, {v(vL16)} offset:{QX}')
            e(f'ds_read_b128 {v(QF+4,4)}, {v(vL16)} offset:{QX+1024}')
            e(f'ds_read_b128 {v(KF,4)}, {v(vL16)} offset:{KXL}')
            e(f'ds_read_b128 {v(KF+4,4)}, {v(vL16)} offset:{KXL+1024}')
            vm(4)
            save = vk[0]
            R0, R1 = MEM + 16, MEM
            lw2, lw3, lwe = A.lab('w2'), A.lab('w3'), A.lab('we')

            def ld2(r):
                e(f'buffer_load_dwordx4 {v(r,4)}, {v(vL16)}, {WS}, {cSa} offen sc1')
                e(f'buffer_load_dwordx4 {v(r+4,4)}, {v(vL16)}, {WS}, {cSb} offen sc1')

            def exchange(mm):
                lsp, lso = A.lab('sp'), A.lab('so')
                e(f'buffer_store_dwordx4 {v(S4,4)}, {v(vL16)}, {WS}, {cSw} offen{X_}')
                self.xstamp(8)
                vm(self.opt['sv1'])
                ld2(R1)
                vm(20)
                if mm:
                    e('v_mov_b32 v28, 0xff800000')
                    for i in range(4):
                        e(f'v_cndmask_b32 {v(S4+4+i)}, {v(S4+i)}, v28, {mINV}')
                own = S4 + 4 if mm else S4
                ld2(R0)

                def add(r):
                    e(f'v_pk_add_f32 {v(r+8,2)}, {v(r,2)}, {v(r+4,2)}')
                    e(f'v_pk_add_f32 {v(r+10,2)}, {v(r+2,2)}, {v(r+6,2)}')
                    e(f'v_cmp_u_f32 vcc, {v(r+8)}, {v(r+9)}')
                    e(f'v_cmp_u_f32 {mT}, {v(r+10)}, {v(r+11)}')
                    e(f'v_pk_add_f32 {v(QA,2)}, {v(own,2)}, {v(r+8,2)}')
                    e(f'v_pk_add_f32 {v(QA+2,2)}, {v(own+2,2)}, {v(r+10,2)}')
                    e(f's_or_b64 vcc, vcc, {mT}')
                e(f'v_cvt_pk_bf16_f32 {v(VMP)}, {v(VA_)}, {v(VA_+1)}')
                e(f'v_cvt_pk_bf16_f32 {v(VMP+1)}, {v(VA_+2)}, {v(VA_+3)}')
                e('s_waitcnt vmcnt(2)')
                self.xstamp(9)
                add(R1)
                e(f's_cbranch_vccnz {lsp}')
                e(f'{lso}:')
                self.stamp(12)
                self.note(8, sSPIN)
                e(f'ds_write_b128 v31, {v(QA,4)} offset:{SL}')

                def stail():
                    e(f'{lsp}:')
                    for r in (R1, R0):
                        maxtree2('v30', v(KA), r, 8)
                        e('v_cmp_eq_u32 vcc, -1, v30')
                        e(f's_cbranch_vccz {lso}')
                        ld2(r)
                        e('s_waitcnt vmcnt(2)')
                        add(R0 if r == R1 else R1)
                        e(f's_cbranch_vccz {lso}')
                    self.spin(lsp)
                tails.append(stail)
            e(f's_cmp_ge_u32 {sW}, 2')
            e(f's_cbranch_scc1 {lw2}')
            e('s_waitcnt vmcnt(2) lgkmcnt(2)')
            self.xstamp(10)
            e(f'v_mfma_f32_16x16x32_bf16 {v(QA,4)}, {v(KX,4)}, {v(QF,4)}, 0')
            e(f'v_mfma_f32_16x16x32_bf16 {v(KA,4)}, {v(KX+8,4)}, {v(QF,4)}, 0')
            e(f'v_mfma_f32_16x16x32_bf16 {v(QA,4)}, {v(KX+4,4)}, {v(QF+4,4)}, {v(QA,4)}')
            e(f'v_mfma_f32_16x16x32_bf16 {v(KA,4)}, {v(KX+12,4)}, {v(QF+4,4)}, {v(KA,4)}')
            vm(1)
            for i in range(4):
                e(f'v_cndmask_b32 {v(S4+i)}, {v(QA+i)}, {v(KA+i)}, {mL2}')
            exchange(False)
            e(f'{lwe}:')

            def others():
                e(f'{lw2}:')
                e(f's_cmp_eq_u32 {sW}, 3')
                e(f's_cbranch_scc1 {lw3}')
                e('s_waitcnt lgkmcnt(0)')
                e(f'v_mfma_f32_16x16x32_bf16 {v(S4,4)}, {v(KF,4)}, {v(QF,4)}, 0')
                e(f'v_mfma_f32_16x16x32_bf16 {v(S4,4)}, {v(KF+4,4)}, {v(QF+4,4)}, {v(S4,4)}')
                vk[0] = save
                vm(1)
                exchange(True)
                e(f's_branch {lwe}')
                e(f'{lw3}:')
                vk[0] = save
                vm(20)
                e(f'v_cvt_pk_bf16_f32 {v(VMP)}, {v(VA_)}, {v(VA_+1)}')
                e(f'v_cvt_pk_bf16_f32 {v(VMP+1)}, {v(VA_+2)}, {v(VA_+3)}')
                e(f's_branch {lwe}')
            tails.append(others)
            e(f's_mov_b32 s60, {f2u(SCALE_LOG2E):#x}')
            e('s_waitcnt lgkmcnt(0)')
            e('s_barrier')
            self.stamp(2)
            X = G
            for t in range(3):
                e(f'ds_read_b128 {v(X+4*t,4)}, {v(vL16)} offset:{SL+1024*t}')
            e('s_waitcnt lgkmcnt(1)')
            e(f'v_max3_f32 v30, {v(X)}, {v(X+1)}, {v(X+2)}')
            e(f'v_max3_f32 v31, {v(X+3)}, {v(X+4)}, {v(X+5)}')
            e(f'v_max3_f32 v30, v30, {v(X+6)}, {v(X+7)}')
            e('s_waitcnt lgkmcnt(0)')
            e(f'v_max3_f32 v31, v31, {v(X+8)}, {v(X+9)}')
            e(f'v_max3_f32 v30, v30, {v(X+10)}, {v(X+11)}')
            e('v_max_f32 v30, v30, v31')
            e('v_mov_b32 v31, v30')
            e('v_permlane32_swap_b32 v31, v30')
            e('v_max_f32 v30, v30, v31')
            e('v_mov_b32 v31, v30')
            e('v_permlane16_swap_b32 v31, v30')
            e('v_max_f32 v30, v30, v31')
            e('v_mul_f32 v30, s60, v30')
            order = [8, 9, 10, 11, 0, 1, 2, 3, 4, 5, 6, 7]
            PX, PM = QF, QF + 4
            for i in order[:4]:
                e(f'v_fma_f32 {v(X+i)}, {v(X+i)}, s60, -v30')
            for n, i in enumerate(order):
                e(f'v_exp_f32 {v(X+i)}, {v(X+i)}')
                if n + 4 < 12:
                    j = order[n + 4]
                    e(f'v_fma_f32 {v(X+j)}, {v(X+j)}, s60, -v30')
                if n == 4:
                    e(f'v_cvt_pk_bf16_f32 {v(PM)}, {v(X+8)}, {v(X+9)}')
                    e(f'v_cvt_pk_bf16_f32 {v(PM+1)}, {v(X+10)}, {v(X+11)}')
                if n == 6:
                    e(f'v_mfma_f32_16x16x16_bf16 {v(VA_,4)}, {v(ONESQ,2)}, {v(PM,2)}, 0')
                if n == 7:
                    e(f'v_mfma_f32_16x16x16_bf16 {v(QA,4)}, {v(VMP,2)}, {v(PM,2)}, 0')
                    e(f'v_cvt_pk_bf16_f32 {v(PX)}, {v(X)}, {v(X+1)}')
                if n == 8:
                    e(f'v_mfma_f32_16x16x16_bf16 {v(KA,4)}, {v(VMP,2)}, {v(PM,2)}, 0')
                    e(f'v_cvt_pk_bf16_f32 {v(PX+1)}, {v(X+2)}, {v(X+3)}')
                if n == 10:
                    e(f'v_cvt_pk_bf16_f32 {v(PX+2)}, {v(X+4)}, {v(X+5)}')
            e(f'v_cvt_pk_bf16_f32 {v(PX+3)}, {v(X+6)}, {v(X+7)}')
            e('s_waitcnt vmcnt(0)')
            e(f'v_mfma_f32_16x16x32_bf16 {v(VA_,4)}, {v(ONESQ,4)}, {v(PX,4)}, {v(VA_,4)}')
            e(f'v_mfma_f32_16x16x32_bf16 {v(QA,4)}, {v(VX,4)}, {v(PX,4)}, {v(QA,4)}')
            e(f'v_mfma_f32_16x16x32_bf16 {v(KA,4)}, {v(VX+4,4)}, {v(PX,4)}, {v(KA,4)}')
            e(f'v_add_u32 v31, {sW6}, {v(vL16)}')
            e(f's_add_u32 {sS}, {sS}, 1')
            e(f'v_rcp_f32 v30, {v(VA_)}')
            for i in range(4):
                e(f'v_cndmask_b32 {v(X+i)}, {v(QA+i)}, {v(KA+i)}, {mL2}')
            for i in range(4):
                e(f'v_mul_f32 {v(X+i)}, {v(X+i)}, v30')
            e(f'v_cvt_pk_bf16_f32 {v(QF+6)}, {v(X)}, {v(X+1)}')
            e(f'v_cvt_pk_bf16_f32 {v(QF+7)}, {v(X+2)}, {v(X+3)}')
            e(f'v_min_u32 {v(QF+6)}, -2, {v(QF+6)}')
            e(f'v_min_u32 {v(QF+7)}, -2, {v(QF+7)}')
            e(f'buffer_store_dwordx2 {v(QF+6,2)}, {v(vTW)}, {WS}, {cOw} offen{X_}')
            self.stamp(3)

            def export_addr():
                e(f'v_mov_b32 v30, {cK1}')
                e(f'v_mov_b32 {v(QF+2)}, {cK2}')
                e('s_mov_b32 s92, 0')
                e('s_mov_b32 s93, -1')
                e(f'v_cndmask_b32 {v(QF)}, v30, {v(QF+2)}, {mL2}')
                e(f'v_cndmask_b32 {v(QF+1)}, v30, {v(QF+2)}, {mT}')
                e(f'v_add_u32 {v(QF)}, {v(QF)}, {v(vKM)}')
                e(f'v_add_u32 {v(QF+1)}, {v(QF+1)}, {v(vVM)}')

            def export_v():
                e('s_mov_b64 exec, s[22:23]')
                e(f'buffer_store_dwordx2 {v(VMP,2)}, {v(QF+1)}, {WS}, 0 offen{X_}')
                e('s_mov_b64 exec, -1')

            def export_k():
                l = A.lab('nk')
                e(f's_cbranch_scc1 {l}')
                e('s_mov_b64 exec, s[24:25]')
                e(f'buffer_store_dwordx4 {v(KF,4)}, {v(QF)}, {WS}, 0 offen{X_}')
                e(f'buffer_store_dwordx4 {v(KF+4,4)}, {v(QF)}, {WS}, 0 offen offset:512{X_}')
                e('s_mov_b64 exec, -1')
                e(f'{l}:')

            def sig():
                e(f'v_mov_b32 v29, {sS}')
                e('s_mov_b64 exec, 1')
                e(f'buffer_store_dword v29, off, {WS}, {sPCH}{X_}')
                e('s_mov_b64 exec, -1')
            e(f's_cmp_ge_u32 {sSLOT}, 10')
            e(f's_cbranch_scc1 L_ch_noop_{md}')
            if self.opt['odelay']:
                e(f's_sleep {self.opt["odelay"]}')

            def op(k):
                b = v(G + 4 * k, 4) if k < 6 else v(MEM + 4 * (k - 6), 4)
                e(f'v_mfma_f32_16x16x32_bf16 {v(QA,4)}, {Wo(k)}, {b}, {"0" if k==0 else v(QA,4)}')

            def ogyoung():
                export_addr()
                for g in range(3):
                    e(f'v_add_u32 {v(QF+3+g)}, s{36+g}, {v(vL16)}')
            OPRE = self.opt['opre']
            gather('og', 6, vGO, cOr, cOr4, 'v31', OL, ogyoung, 0, G, lambda i: op(i) if i < OPRE else None)
            self.stamp(13)
            self.note(9, sSPIN)
            e('s_waitcnt lgkmcnt(0)')
            e('s_barrier')
            self.stamp(4)

            def ord_(k):
                e(f'ds_read_b128 {v(MEM+4*(k-6),4)}, {v(QF + 3 + k//6 - 1)} offset:{OL+1024*(k%6)}')
            for k in range(6, 6 + PF):
                ord_(k)
            export_v()
            for k in range(OPRE, 6):
                op(k)
            e(f's_cmp_lg_u32 {sW}, 2')
            export_k()
            for k in range(6, 24):
                if k + PF < 24:
                    ord_(k + PF)
                e(f's_waitcnt lgkmcnt({min(PF, 23-k)})')
                op(k)
                if k == 16:
                    e(f'v_add_u32 v28, {cCw}, {v(vTW)}')
                    e(f'v_mov_b32 v29, {sS}')
                if 17 <= k < 21:
                    e(f'v_mov_b32 {v(KA+k-17)}, -1')
            C = G
            e('s_waitcnt vmcnt(0)')
            e(f'v_cvt_pk_bf16_f32 {v(C)}, {v(QA)}, {v(QA+1)}')
            e(f'v_cvt_pk_bf16_f32 {v(C+1)}, {v(QA+2)}, {v(QA+3)}')
            e(f'v_min_u32 {v(C)}, -2, {v(C)}')
            e(f'v_min_u32 {v(C+1)}, -2, {v(C+1)}')
            e(f'buffer_store_dwordx2 {v(C,2)}, v28, {WS}, {sCw} offen sc1')
            self.stamp(5)

            def resets(full):
                e(f'buffer_store_dwordx2 {v(KA,2)}, {v(vTW)}, {WS}, {rO} offen{X_}')
                if full and not XB_:
                    e(f'buffer_store_dwordx2 {v(KA,2)}, {v(vTW)}, {WS}, {rAG} offen{X_}')
                e(f'buffer_store_dwordx4 {v(KA,4)}, {v(vL16)}, {WS}, {rS} offen{X_}')
                if not full:
                    e(f's_add_u32 s92, {sS}, 1')
                    e(f's_and_b32 s92, s92, {self.opt["crring"]-1}')
                    e(f's_mul_i32 s92, s92, {CR_S}')
                    e(f's_sub_u32 s93, {sTILE}, 40')
                    e('s_mul_i32 s93, s93, 20480')
                    e('s_add_u32 s92, s92, s93')
                    e(f's_lshl_b32 s93, {sCLS}, 9')
                    e('s_add_u32 s92, s92, s93')
                    e(f's_add_u32 s92, s92, {CH_CR}')
                    for i in range(5):
                        e(f'buffer_store_dwordx2 {v(KA,2)}, {v(vTW)}, {WS}, s92 offen sc1')
                        if i < 4:
                            e('s_add_u32 s92, s92, 4096')
                    if XB_:
                        lh = A.lab('h5')
                        e(f's_cmp_ge_u32 {sTILE}, 45')
                        e(f's_cbranch_scc1 {lh}')
                        e(f's_add_u32 s92, {sS}, 2')
                        e(f's_mul_i32 s92, s92, {AG_S}')
                        e(f's_mul_i32 s93, {sCLS}, 5')
                        e(f's_add_u32 s93, s93, {sTILE}')
                        e('s_sub_u32 s93, s93, 40')
                        e('s_lshl_b32 s93, s93, 9')
                        e('s_add_u32 s92, s92, s93')
                        e(f's_add_u32 s92, s92, {AGG}')
                        e(f'buffer_store_dwordx2 {v(KA,2)}, {v(vTW)}, {WS}, s92 offen sc1')
                        e(f'{lh}:')
            if self.diag:
                e('s_mov_b32 s100, 0')
            e('s_mov_b64 exec, 1')
            e(f'buffer_store_dword v29, off, {WS}, {sPCH}{X_}')
            e('s_mov_b64 exec, -1')
            resets(True)
            flagload()
            for x in nextkv_steps():
                x()
            scalars()
            if XB_:
                e('s_cmp_eq_u32 s32, 0')
                e(f's_cbranch_scc1 L_ch_no_{md}')

                def notowner():
                    e(f'L_ch_no_{md}:')
                    e(f's_sleep {self.opt["xwait"]}')
                    e('s_waitcnt vmcnt(0)')
                    e(f's_branch L_ch_next_{md}')
                tails.append(notowner)
            if self.opt['adapt']:
                la, lb_ = A.lab('ad'), A.lab('ae')
                e('s_lshr_b32 s60, s31, 2')
                e(f'{la}:')
                e('s_sub_u32 s60, s60, 1')
                e(f's_cbranch_scc1 {lb_}')
                e('s_sleep 1')
                e(f's_branch {la}')
                e(f'{lb_}:')
            elif self.opt['cdelay']:
                e(f's_sleep {self.opt["cdelay"]}')
            lcp, lco = A.lab('cp'), A.lab('co')

            def cld():
                for i in range(7):
                    e(f'buffer_load_dwordx2 {v(C+2+2*i,2)}, v28, {WS}, {sCR[i]} offen sc1')

            def csum(extra):
                for j in range(4):
                    e(f's_waitcnt vmcnt({6-2*j+extra})')
                    e(f'v_mfma_f32_16x16x32_bf16 {v(QA,4)}, {v(SEL,4)}, {v(C+4*j,4)}, {"0" if j==0 else v(QA,4)}')
            cld()
            if self.opt['adapt']:
                e('s_sub_u32 s31, s31, 1')
                e('s_max_i32 s31, s31, 0')
            csum(0)
            self.stamp(14)
            e(f'{lcp}:')
            e(f'v_cmp_u_f32 vcc, {v(QA)}, {v(QA+1)}')
            e(f'v_cvt_pk_bf16_f32 {v(VA_)}, {v(QA)}, {v(QA+1)}')
            e(f'v_cvt_pk_bf16_f32 {v(VA_+1)}, {v(QA+2)}, {v(QA+3)}')
            e(f's_cbranch_vccnz {lcp}x')
            e(f'{lco}:')

            def ctail():
                e(f'{lcp}x:')
                maxtree2(v(VA_ + 2), v(VA_ + 3), C + 2, 14)
                e(f'v_cmp_eq_u32 vcc, -1, {v(VA_+2)}')
                e(f's_cbranch_vccz {lco}')
                cld()
                if self.opt['adapt']:
                    e(f's_add_u32 s31, s31, {self.opt["adapt"]}')
                    e('s_min_u32 s31, s31, 48')
                csum(0)
                self.spin(lcp)
            tails.append(ctail)
            self.note(10, sSPIN)
            e(f'v_min_u32 {v(VA_)}, -2, {v(VA_)}')
            e(f'v_min_u32 {v(VA_+1)}, -2, {v(VA_+1)}')
            e(f'buffer_store_dwordx2 {v(VA_,2)}, {v(vTW)}, {WS}, {cAGw} offen{" sc1" if XB_ else X_}')
            self.stamp(6)
            e(f'L_ch_next_{md}:')
            e(f's_cmp_lt_u32 {sS}, {self.nsteps}')
            e(f's_cbranch_scc1 L_ch_step_{md}')
            e('s_endpgm')
            e(f'L_ch_noop_{md}:')
            export_addr()
            export_v()
            e(f's_cmp_lg_u32 {sW}, 2')
            export_k()
            for i in range(4):
                e(f'v_mov_b32 {v(KA+i)}, -1')
            for x in nextkv_steps():
                x()
            e('s_waitcnt vmcnt(0)')
            sig()
            resets(False)
            scalars()
            if self.opt['warm']:
                e(f's_sub_u32 s92, {sTILE}, 40')
                e('s_lshr_b32 s93, s92, 1')
                e(f's_lshl_b32 s94, {sCLS}, 2')
                e('s_add_u32 s93, s93, s94')
                e(f's_mul_i32 s93, s93, {QKV_HEAD}')
                e('s_and_b32 s92, s92, 1')
                e('s_add_u32 s92, s92, 1')
                e('s_mul_i32 s92, s92, 12288')
                e('s_add_u32 s92, s92, s93')
                e(f's_add_u32 s92, s92, {sQ1}')
                for i in range(12):
                    e(f'buffer_load_dwordx4 {v(MEM+4*i,4)}, {v(vL16)}, {WS}, s92 offen offset:{1024*(i%4)} sc1')
                    if i % 4 == 3:
                        e('s_add_u32 s92, s92, 4096')
            e(f's_sleep {self.opt["hdelay"]}')
            flagload()
            e('s_waitcnt vmcnt(0)')
            e(f's_branch L_ch_next_{md}')
            k = 0
            while k < len(tails):
                tails[k]()
                k += 1
        loop('f')
        loop('s')
```

```python
NAME = 'interleave_layers__memory_aug_recurrent_mem_tr__dense_activation_relu__prompt'

P_LN1 = 0x0000
P_R1 = 0x5000
P_R2 = 0x5800
P_F = 0x6000
P_OP = 0x7000
P_AT = 0x2000
P_QKV = 0x3000
P_CH = 0x4000
CH_AG, AG_C, AG_S = 0x10000, 0x14000, 20480
CH_S, S_C, S_S = 0xB0000, 0x24000, 36864
CH_O, O_C, O_S = 0x1D0000, 0x18000, 24576
CH_CR, CR_S = 0x4A00000, 163840
XN1, XA, XNA, XB, XN2, XC, XNC = 0x400000, 0x680000, 0x900000, 0xB80000, 0xE00000, 0x1080000, 0x1300000
XP1, XP2, XP_S = 0x1600000, 0x2A00000, 327680
FP1, FP2, FP_S = 0xE000000, 0x3E00000, 163840
SCRATCH = 0x290000
AGG = 0x4800000
HB, HB_C, HB_S = 0x340000, 98304, 24576
RING = 64
KMVM, KM_SEG, KM_HEAD = 0x5700000, 196608, 6144
QKV, QKV_SEG, QKV_HEAD = 0x6F00000, 1179648, 36864
QL2 = 64 * QKV_SEG
KL2 = 64 * KM_SEG
TS = QKV + 20 * QKV_SEG
WS_BYTES = 0x10000000
SEGB = 40960

sCLS, sW, sSLOT, sSPIN, sFAST = 's3', 's4', 's5', 's6', 's7'
WS, DBG = 's[8:11]', 's[12:15]'
SRA, SRB, SRC, SRD = 's[44:47]', 's[48:51]', 's[52:55]', 's[56:59]'
PTR = dict(x=16, mem0=18, wq=20, wk=22, wv=24, wo=26, w1=32, w2=34, out=36, dbg=38, ws=40)
NBYTES = dict(x=2621440, mem0=10240, wq=7864320, wk=7864320, wv=7864320, wo=7864320,
              w1=1966080, w2=1966080, out=2621440)
SCALE_LOG2E = (192 ** -0.5) * 1.4426950408889634


def f2u(x):
    import struct
    return struct.unpack('<I', struct.pack('<f', x))[0]


def v(i, n=1):
    return 'v%d' % i if n == 1 else 'v[%d:%d]' % (i, i + n - 1)


def a(i, n=1):
    return 'a%d' % i if n == 1 else 'a[%d:%d]' % (i, i + n - 1)


def s(i, n=1):
    return 's%d' % i if n == 1 else 's[%d:%d]' % (i, i + n - 1)
```

```python
from common import *


class QkvMixin:
    def role_qkv(self):
        e = self.A.e
        A = self.A
        e('L_qkv:')
        e(f's_sub_u32 s64, {sSLOT}, 12')
        e('s_lshl_b32 s64, s64, 2')
        e(f's_add_u32 s64, s64, {sW}')
        e(f's_lshl_b32 s65, {sCLS}, 8')
        e('s_lshl_b32 s66, s64, 2')
        e('s_add_u32 s65, s65, s66')
        e(f's_add_u32 s65, s65, {P_QKV}')
        e('s_add_u32 s66, s65, 2048')
        e('v_mov_b32 v4, 0')
        e('s_mov_b64 exec, 1')
        e(f'buffer_store_dword v4, off, {WS}, s65 sc1')
        e(f'buffer_store_dword v4, off, {WS}, s66 sc1')
        e('s_mov_b64 exec, -1')
        self.arrive()
        e('s_mul_i32 s67, s64, 57')
        e('s_lshr_b32 s67, s67, 9')
        e('s_mul_i32 s68, s67, 9')
        e('s_sub_u32 s68, s64, s68')
        e('s_mul_i32 s69, s68, 11')
        e('s_lshr_b32 s69, s69, 5')
        e('s_mul_i32 s70, s69, 3')
        e('s_sub_u32 s70, s68, s70')
        e(f's_lshl_b32 s71, {sCLS}, 2')
        e('s_add_u32 s71, s71, s67')
        e('s_cmp_eq_u32 s69, 1')
        e(f's_cselect_b32 s44, s{PTR["wk"]}, s{PTR["wq"]}')
        e(f's_cselect_b32 s45, s{PTR["wk"]+1}, s{PTR["wq"]+1}')
        e('s_cmp_eq_u32 s69, 2')
        e(f's_cselect_b32 s44, s{PTR["wv"]}, s44')
        e(f's_cselect_b32 s45, s{PTR["wv"]+1}, s45')
        e('s_and_b32 s45, s45, 0xffff')
        e(f's_mov_b32 s46, {NBYTES["wq"]}')
        e('s_mov_b32 s47, 0x20000')
        e('s_mul_i32 s72, s71, 384')
        e('s_lshl_b32 s73, s70, 7')
        e('s_add_u32 s72, s72, s73')
        e('v_lshrrev_b32 v1, 3, v0')
        e('v_mul_u32_u24 v1, 12288, v1')
        e('v_and_b32 v2, 7, v0')
        e('v_lshl_add_u32 v5, v2, 4, v1')
        e('v_add_u32 v5, s72, v5')
        e(f's_mul_i32 s73, {sW}, 40960')
        self.tr_lane('v6', 8, 128, 's73')

        def W(tl, k, u):
            r = 160 * tl + 4 * k + 2 * u
            return a(r, 2) if r < 256 else v(192 + r - 256, 2)

        def Wf(tl, k):
            r = 160 * tl + 4 * k
            return a(r, 4) if r < 256 else v(192 + r - 256, 4)

        def chunk_dma(q):
            e(f's_add_u32 m0, s73, {(q & 1) * 20480}')
            e(f's_mov_b32 s74, {q * 160 * 12288}')
            self.dma(20, 'v5', SRA, 's74', 8 * 12288)

        chunk_dma(0)
        chunk_dma(1)
        for q in range(4):
            e(f's_waitcnt vmcnt({20 if q < 3 else 0})')
            items = []
            for k in range(10):
                for tl in range(2):
                    for u in range(2):
                        items.append((W(tl, 10 * q + k, u), (q & 1) * 20480 + k * 2048 + u * 512 + tl * 64))
            self.trl(items, 'v6', 'v7')
            e('s_waitcnt lgkmcnt(0)')
            if q < 2:
                chunk_dma(q + 2)
        VD, VR = 8, 10
        self.xn_consts(VD, VR)
        e('v_lshlrev_b32 v9, 4, v0')
        e('v_and_b32 v5, 7, v0')
        e('v_lshlrev_b32 v5, 2, v5')
        e(f's_mul_i32 s72, s71, {QKV_HEAD}')
        e('s_mul_i32 s73, s69, 12288')
        e('s_add_u32 s72, s72, s73')
        e('s_lshl_b32 s73, s70, 12')
        e('s_add_u32 s72, s72, s73')
        e(f's_add_u32 s72, s72, {QKV}')
        self.wait_init('v6', 'v7')
        e('s_barrier')
        self.stamp(1, real=True)
        self.flush()
        RQ = self.opt['rq']
        intra = self.opt['intra']
        assert RQ >= self.L + 1 or self.L >= 64
        assert self.AH <= RQ
        e(f's_mul_i32 s83, {sW}, 10240')
        e(f's_mov_b32 s84, {P_R2}')
        ACC, PK, BR = (16, 48), 80, 96
        sP1, sP2, sO, sX1, sX2, sD, sNR, sNB = 's75', 's76', 's77', 's79', 's81', 's85', 's80', 's86'
        e('v_lshlrev_b32 v6, 2, v0')
        l0, l1 = A.lab('ln'), A.lab('lnok')
        e(f'{l0}:')
        for i in range(8):
            e(f'buffer_load_dword {v(16+i)}, v6, {WS}, 0 offen offset:{P_LN1 + 256*i} sc1')
        e('s_waitcnt vmcnt(0)')
        e('v_min3_u32 v16, v16, v17, v18')
        e('v_min3_u32 v19, v19, v20, v21')
        e('v_min3_u32 v16, v16, v22, v23')
        e('v_min_u32 v16, v16, v19')
        e('v_cmp_eq_u32 vcc, 0, v16')
        e(f's_cbranch_vccz {l1}')
        self.spin(l0, 2)
        e(f'{l1}:')

        def dma_one(i, ssrc, buf):
            if i == 0:
                e(f's_add_u32 m0, s83, {buf}')
            else:
                e('s_add_u32 m0, m0, 896')
            e(f'buffer_load_dwordx4 {v(VD)}, {WS}, {ssrc} offen offset:{i*128} sc1 lds')

        def dma_if(i, ssrc, buf, val):
            l = A.lab('nd')
            e(f's_cmp_eq_u32 {sD}, {val}')
            e(f's_cbranch_scc0 {l}')
            dma_one(i, ssrc, buf)
            e(f'{l}:')

        def compute(buf, acc, isV, hooks):
            PF = 4
            for k in range(PF):
                e(f'ds_read_b128 {v(BR+4*(k%8),4)}, {v(VR+(k&3))} offset:{buf+(k>>2)*1024}')
            for k in range(40):
                if k + PF < 40:
                    kk = k + PF
                    e(f'ds_read_b128 {v(BR+4*(kk%8),4)}, {v(VR+(kk&3))} offset:{buf+(kk>>2)*1024}')
                e(f's_waitcnt lgkmcnt({min(PF, 39-k)})')
                b = v(BR + 4 * (k % 8), 4)
                for tl in range(2):
                    d = v(acc + 16 * tl, 16)
                    c = '0' if k == 0 else d
                    if isV:
                        e(f'v_mfma_f32_32x32x16_bf16 {d}, {b}, {Wf(tl,k)}, {c}')
                    else:
                        e(f'v_mfma_f32_32x32x16_bf16 {d}, {Wf(tl,k)}, {b}, {c}')
                for h in hooks.get(k, []):
                    h()
            for tl in range(2):
                for j in range(8):
                    e(f'v_cvt_pk_bf16_f32 {v(PK+8*tl+j)}, {v(acc+16*tl+2*j)}, {v(acc+16*tl+2*j+1)}')
                self.st_intra([f'buffer_store_dwordx4 {v(PK+8*tl+4*h,4)}, v9, {WS}, {sO} offen offset:{tl*2048+h*1024}'
                               for h in range(2)])

        def out1():
            e(f's_and_b32 {sO}, {sP1}, {RQ-1}')
            e(f's_mul_i32 {sO}, {sO}, {QKV_SEG}')
            e(f's_add_u32 {sO}, {sO}, s72')

        def sig_after(n, word, val):
            def h():
                e(f's_waitcnt vmcnt({n})')
                self.signal('v4', word, val, intra=intra)
            return h

        def flags_ld():
            e(f'buffer_load_dword v5, v6, {WS}, s84 offen sc1')

        def flags_ck():
            e(f'v_cmp_gt_u32 vcc, {sNR}, v5')

        def body(isV):
            tag = 'v' if isV else 'q'
            e('v_and_b32 v6, 7, v0')
            e('v_lshlrev_b32 v6, 7, v6')
            e(f's_mov_b32 {sP1}, 0')
            e(f's_mov_b32 {sP2}, 0')
            e(f's_mov_b32 {sX1}, {XN1}')
            for i in range(10):
                dma_one(i, sX1, 0)
            e('s_waitcnt vmcnt(0)')
            e('s_barrier')
            lp = f'L_qkv_a_{tag}'
            e(f'{lp}:')
            for half in range(2):
                e(f's_add_u32 {sX1}, {sX1}, {SEGB}')
                out1()
                hk = {9 + i: [lambda i=i: dma_one(i, sX1, 40960 * (1 - half))] for i in range(10)}
                hk[8] = [sig_after(0, 's65', sP1)]
                compute(40960 * half, ACC[half], isV, hk)
                e(f's_add_u32 {sP1}, {sP1}, 1')
                if half == 0:
                    lq = A.lab('first')
                    e(f's_cmp_lg_u32 {sP1}, 1')
                    e(f's_cbranch_scc1 {lq}')
                    sig_after(0, 's65', sP1)()
                    e(f'{lq}:')
                e('s_waitcnt vmcnt(4)')
                e('s_barrier')
            e(f's_cmp_lt_u32 {sP1}, {self.AH}')
            e(f's_cbranch_scc1 {lp}')
            sig_after(0, 's65', sP1)()
            lp2, nop1, blk, got2, nop1b = f'L_qkv_b_{tag}', A.lab('nop1'), A.lab('blk'), A.lab('got2'), A.lab('nop1b')
            e(f'{lp2}:')
            self.flush()
            e(f's_add_u32 {sNR}, {sP2}, 1')
            e(f's_mul_i32 {sX2}, {sP2}, {SEGB}')
            e(f's_add_u32 {sX2}, {sX2}, {XN2}')
            e(f's_mov_b32 {sD}, 0')
            e(f's_cmp_ge_u32 {sP1}, 64')
            e(f's_cbranch_scc1 {blk}')
            out1()

            def ck(val, n):
                def h():
                    l = A.lab('ck')
                    e(f's_cmp_lg_u32 {sD}, 0')
                    e(f's_cbranch_scc1 {l}')
                    e(f's_waitcnt vmcnt({n})')
                    flags_ck()
                    e(f's_cbranch_vccnz {l}')
                    e(f's_mov_b32 {sD}, {val}')
                    e(f'{l}:')
                return h

            def reld():
                l = A.lab('rl')
                e(f's_cmp_lg_u32 {sD}, 0')
                e(f's_cbranch_scc1 {l}')
                flags_ld()
                e(f'{l}:')
            hk = {0: [flags_ld], 8: [sig_after(0, 's66', sP2)], 9: [ck(1, 63)], 13: [reld], 22: [ck(2, 0)]}
            for i in range(10):
                hk.setdefault(10 + i, []).append(lambda i=i: dma_if(i, sX2, 40960, 1))
                hk.setdefault(23 + i, []).append(lambda i=i: dma_if(i, sX2, 40960, 2))
            compute(0, ACC[0], isV, hk)
            e(f's_add_u32 {sP1}, {sP1}, 1')
            self.stamp(4, real=True)
            e(f's_cmp_eq_u32 {sD}, 0')
            e(f's_cbranch_scc1 {blk}')
            e('s_waitcnt vmcnt(4)')
            e(f's_branch {got2}')
            e(f'{blk}:')
            if self.on('r'):
                flags_ld()
                e('s_waitcnt vmcnt(0)')
                flags_ck()
                lb = A.lab('bok')
                e(f's_cbranch_vccz {lb}')
                self.spin(blk, self.opt['psleep'])
                e(f'{lb}:')
            self.stamp(0, real=True)
            for i in range(10):
                dma_one(i, sX2, 40960)
            e('s_waitcnt vmcnt(0)')
            e(f'{got2}:')
            e('s_barrier')
            self.stamp(1, real=True)
            e(f's_and_b32 {sO}, {sP2}, {RQ-1}')
            e(f's_add_u32 {sO}, {sO}, 64')
            e(f's_mul_i32 {sO}, {sO}, {QKV_SEG}')
            e(f's_add_u32 {sO}, {sO}, s72')
            e(f's_add_u32 {sX1}, {sX1}, {SEGB}')
            e(f's_cmp_lt_u32 {sP1}, 64')
            e(f's_cselect_b32 {sD}, 1, 0')
            hk = {9 + i: [lambda i=i: dma_if(i, sX1, 0, 1)] for i in range(10)}
            hk[8] = [sig_after(0, 's65', sP1)]
            compute(40960, ACC[1], isV, hk)
            e(f's_add_u32 {sP2}, {sP2}, 1')
            self.stamp(2, real=True)
            e(f's_cmp_eq_u32 {sD}, 0')
            e(f's_cbranch_scc1 {nop1b}')
            e('s_waitcnt vmcnt(4)')
            e('s_barrier')
            e(f's_branch {lp2}')
            e(f'{nop1b}:')
            sig_after(0, 's66', sP2)()
            self.stamp(3, real=True)
            e('s_barrier')
            e(f's_cmp_lt_u32 {sP2}, 64')
            e(f's_cbranch_scc1 {lp2}')
            e('s_endpgm')

        e('s_cmp_eq_u32 s69, 2')
        e('s_cbranch_scc1 L_qkv_v')
        body(False)
        e('L_qkv_v:')
        body(True)
```

```python
from common import *


class WorkersMixin:
    def zero_word(self, soff):
        e = self.A.e
        e('v_mov_b32 v4, 0')
        e('s_mov_b64 exec, 1')
        e(f'buffer_store_dword v4, off, {WS}, {soff} sc1')
        e('s_mov_b64 exec, -1')

    def rest_roles(self):
        e = self.A.e
        e(f's_cmp_lt_u32 {sSLOT}, 26')
        e('s_cbranch_scc1 L_op')
        e(f's_cmp_lt_u32 {sSLOT}, 29')
        e('s_cbranch_scc1 L_f')
        table = [0, 1, 4, 8, 2, 5, 6, 9, 3, 7, 10, 11]
        lo = sum(t << (4 * i) for i, t in enumerate(table[:8]))
        hi = sum(t << (4 * i) for i, t in enumerate(table[8:]))
        e(f's_sub_u32 s70, {sSLOT}, 29')
        e('s_lshl_b32 s70, s70, 2')
        e(f's_add_u32 s70, s70, {sW}')
        e('s_lshl_b32 s70, s70, 2')
        e(f's_mov_b32 s72, {lo:#x}')
        e(f's_mov_b32 s73, {hi:#x}')
        e('s_lshr_b64 s[72:73], s[72:73], s70')
        e('s_and_b32 s70, s72, 15')
        e('s_lshr_b32 s71, s70, 2')
        e('s_lshl_b32 s71, s71, 10')
        e(f's_lshl_b32 s72, {sCLS}, 7')
        e('s_add_u32 s71, s71, s72')
        e('s_and_b32 s72, s70, 3')
        e('s_lshl_b32 s72, s72, 2')
        e('s_add_u32 s71, s71, s72')
        e(f's_add_u32 s71, s71, {P_AT}')
        e('s_and_b32 s72, s70, 1')
        e('s_lshl_b32 s72, s72, 11')
        e('s_bfe_u32 s73, s70, 0x10001')
        e('s_lshl_b32 s73, s73, 10')
        e('s_add_u32 s72, s72, s73')
        e(f's_lshl_b32 s73, {sCLS}, 7')
        e('s_add_u32 s72, s72, s73')
        e(f's_add_u32 s72, s72, {P_R1}')
        e('s_cmp_ge_u32 s70, 8')
        e('s_cselect_b32 s71, s72, s71')
        self.zero_word('s71')
        self.arrive()
        self.ln1_items()
        self.wait_init('v6', 'v7')
        e('s_cmp_ge_u32 s70, 8')
        e('s_cbranch_scc1 L_r')
        self.role_attn()
        self.role_r()
        self.role_op()
        self.role_f()

    def role_attn(self):
        e = self.A.e
        A = self.A
        L, RQ = self.L, self.opt['rq']
        if not self.on('attn'):
            e('s_endpgm')
            return
        sLY, sHH, sS, sB, sKB, sFQ, sFC, sT, sN = 's72', 's73', 's74', 's75', 's76', 's77', 's78', 's79', 's80'
        e(f's_lshr_b32 {sLY}, s70, 2')
        e(f's_and_b32 {sHH}, s70, 3')
        e(f's_lshl_b32 s60, {sCLS}, 2')
        e(f's_add_u32 s60, s60, {sHH}')
        e(f's_mul_i32 s81, s60, {QKV_HEAD}')
        e(f's_mul_i32 s61, {sLY}, {QL2}')
        e('s_add_u32 s81, s81, s61')
        e(f's_add_u32 s81, s81, {QKV}')
        e(f's_mul_i32 s82, s60, {KM_HEAD}')
        e(f's_mul_i32 s61, {sLY}, {KL2}')
        e('s_add_u32 s82, s82, s61')
        e(f's_add_u32 s82, s82, {KMVM}')
        e(f's_lshl_b32 {sFQ}, {sLY}, 11')
        e(f's_lshl_b32 s61, {sCLS}, 8')
        e(f's_add_u32 {sFQ}, {sFQ}, s61')
        e(f's_mul_i32 s62, {sHH}, 36')
        e(f's_add_u32 {sFQ}, {sFQ}, s62')
        e(f's_add_u32 {sFQ}, {sFQ}, {P_QKV}')
        e(f's_mul_i32 s62, {sHH}, 48')
        e(f's_add_u32 {sFC}, s61, s62')
        e(f's_add_u32 {sFC}, {sFC}, {P_CH}')
        e(f's_mul_i32 s83, {sLY}, {L}')
        vL16, vL8, vKM, vFQ, vFC = 2, 3, 5, 6, 7
        e(f'v_lshlrev_b32 {v(vL16)}, 4, v0')
        e(f'v_lshlrev_b32 {v(vL8)}, 3, v0')
        e('v_and_b32 v8, 7, v0')
        e('v_lshrrev_b32 v9, 5, v0')
        e('v_lshlrev_b32 v8, 4, v8')
        e(f'v_lshl_add_u32 {v(vKM)}, v9, 7, v8')
        e('v_min_u32 v8, 8, v0')
        e(f'v_lshlrev_b32 {v(vFQ)}, 2, v8')
        e('v_min_u32 v8, 11, v0')
        e(f'v_lshlrev_b32 {v(vFC)}, 2, v8')
        BIAS, SX, SM, KMR, VMR, P, OA, PK = 16, 32, 48, 64, 112, 124, 136, 168
        e('v_and_b32 v8, 31, v0')
        e('v_lshlrev_b32 v9, 2, v9')
        e('v_sub_u32 v8, v8, v9')
        e('v_mov_b32 v10, 0xf149f2ca')
        for j in range(4):
            for i in range(4):
                e(f'v_cmp_gt_i32 vcc, {8*j+i}, v8')
                e(f'v_cndmask_b32 {v(BIAS+4*j+i)}, 0, v10, vcc')
        e(f's_mov_b32 s84, {f2u(SCALE_LOG2E):#x}')
        e(f's_mov_b32 {sS}, 0')
        e(f's_mov_b32 {sN}, 1')
        e('L_at_loop:')
        self.poll('v4', v(vFQ), sFQ, sN)
        e('L_at_go:')
        self.flush()
        self.stamp(0, real=True)
        e(f's_and_b32 s60, {sS}, {RQ-1}')
        e(f's_mul_i32 {sB}, s60, {QKV_SEG}')
        e(f's_add_u32 {sB}, {sB}, s81')
        e(f's_mul_i32 {sKB}, s60, {KM_SEG}')
        e(f's_add_u32 {sKB}, {sKB}, s82')
        for g in range(9):
            e(f's_add_u32 {sT}, {sB}, {4096*g}')
            for i in range(4):
                e(f'buffer_load_dwordx4 {a(16*g+4*i,4)}, {v(vL16)}, {WS}, {sT} offen offset:{1024*i} sc1')
        for k in range(12):
            e(f's_waitcnt vmcnt({23-k})')
            e(f'v_mfma_f32_32x32x16_bf16 {v(SX,16)}, {a(48+4*k,4)}, {a(4*k,4)}, {v(BIAS,16) if k==0 else v(SX,16)}')
        e(f's_add_u32 {sN}, {sN}, s83')
        self.stamp(1, real=True)
        self.poll('v4', v(vFC), sFC, sN)
        self.stamp(2, real=True)
        if self.opt['at2delay']:
            e(f's_cmp_eq_u32 {sLY}, 0')
            e('s_cbranch_scc1 L_at_nd')
            e(f's_sleep {self.opt["at2delay"]}')
            e('L_at_nd:')
        for k in range(12):
            e(f'buffer_load_dwordx4 {v(KMR+4*k,4)}, {v(vKM)}, {WS}, {sKB} offen offset:{256*k} sc1')
        e(f's_add_u32 {sT}, {sKB}, 3072')
        for t in range(6):
            e(f'buffer_load_dwordx2 {v(VMR+2*t,2)}, {v(vL8)}, {WS}, {sT} offen offset:{512*t} sc1')
        e(f'v_max3_f32 v8, {v(SX)}, {v(SX+1)}, {v(SX+2)}')
        e(f'v_max3_f32 v9, {v(SX+3)}, {v(SX+4)}, {v(SX+5)}')
        for k in range(6, 14, 4):
            e(f'v_max3_f32 v8, v8, {v(SX+k)}, {v(SX+k+1)}')
            e(f'v_max3_f32 v9, v9, {v(SX+k+2)}, {v(SX+k+3)}')
        e(f'v_max3_f32 v8, v8, {v(SX+14)}, {v(SX+15)}')
        e('v_max_f32 v8, v8, v9')
        for k in range(12):
            e(f's_waitcnt vmcnt({17-k})')
            e(f'v_mfma_f32_32x32x16_bf16 {v(SM,16)}, {v(KMR+4*k,4)}, {a(4*k,4)}, {"0" if k==0 else v(SM,16)}')
        e(f'v_max3_f32 v8, v8, {v(SM)}, {v(SM+1)}')
        e(f'v_max3_f32 v8, v8, {v(SM+2)}, {v(SM+3)}')
        e('v_mov_b32 v9, v8')
        e('v_permlane32_swap_b32 v9, v8')
        e('v_max_f32 v8, v8, v9')
        e('v_mul_f32 v8, s84, v8')
        for i in range(20):
            e(f'v_fma_f32 {v(SX+i)}, {v(SX+i)}, s84, -v8')
        for i in range(20):
            e(f'v_exp_f32 {v(SX+i)}, {v(SX+i)}')
        e(f'v_pk_add_f32 v[8:9], {v(SX,2)}, {v(SX+2,2)}')
        e(f'v_pk_add_f32 v[10:11], {v(SX+4,2)}, {v(SX+6,2)}')
        for k in range(8, 20, 4):
            e(f'v_pk_add_f32 v[8:9], v[8:9], {v(SX+k,2)}')
            e(f'v_pk_add_f32 v[10:11], v[10:11], {v(SX+k+2,2)}')
        e('v_pk_add_f32 v[8:9], v[8:9], v[10:11]')
        e('v_add_f32 v8, v8, v9')
        e('v_mov_b32 v9, v8')
        e('v_permlane32_swap_b32 v9, v8')
        e('v_add_f32 v8, v8, v9')
        e('v_rcp_f32 v8, v8')
        e('s_nop 0')
        e('v_mov_b32 v9, v8')
        for k in range(0, 20, 2):
            e(f'v_pk_mul_f32 {v(SX+k,2)}, {v(SX+k,2)}, v[8:9]')
        for k in range(10):
            e(f'v_cvt_pk_bf16_f32 {v(P+k)}, {v(SX+2*k)}, {v(SX+2*k+1)}')
        e('s_waitcnt vmcnt(0)')

        def pv(t):
            o = v(OA + 16 * (t & 1), 16)
            e(f'v_mfma_f32_32x32x8_bf16 {o}, {v(VMR+2*t,2)}, {v(P+8,2)}, 0')
            e(f'v_mfma_f32_32x32x16_bf16 {o}, {a(96+8*t,4)}, {v(P,4)}, {o}')
            e(f'v_mfma_f32_32x32x16_bf16 {o}, {a(100+8*t,4)}, {v(P+4,4)}, {o}')

        def fin(t):
            o = OA + 16 * (t & 1)
            pk = PK + 8 * t
            for j in range(8):
                e(f'v_cvt_pk_bf16_f32 {v(pk+j)}, {v(o+2*j)}, {v(o+2*j+1)}')
            if t % 2 == 0:
                e(f's_add_u32 {sT}, {sB}, {2048*t}')
            self.st_intra([f'buffer_store_dwordx4 {v(pk+4*h,4)}, {v(vL16)}, {WS}, {sT} offen offset:{(t%2)*2048+1024*h}'
                           for h in range(2)])
        self.stamp(3, real=True)
        pv(0)
        for t in range(1, 6):
            pv(t)
            fin(t - 1)
        fin(5)
        self.stamp(4, real=True)
        e(f'buffer_load_dword v12, {v(vFQ)}, {WS}, {sFQ} offen sc1')
        e(f's_add_u32 {sS}, {sS}, 1')
        e(f's_add_u32 {sN}, {sS}, 1')
        e('s_waitcnt vmcnt(0)')
        self.signal('v4', 's71', sS, intra=self.opt['intra'])
        self.stamp(5, real=True)
        e(f's_cmp_ge_u32 {sS}, 64')
        e('s_cbranch_scc1 L_end')
        e(f'v_cmp_gt_u32 vcc, {sN}, v12')
        e('s_cbranch_vccz L_at_go')
        e('s_branch L_at_loop')

    def role_r(self):
        e = self.A.e
        A = self.A
        e('L_r:')
        if not self.on('r'):
            e('s_endpgm')
            return
        sK, sS, sPB, sPM, sPSt, sFl, sRB, sXB, sNB, sT, sU, sN = ['s%d' % i for i in range(72, 84)]
        e(f's_and_b32 {sK}, s70, 3')

        def pick(dst, vals):
            e(f's_mov_b32 {dst}, {vals[0]}')
            for k in range(1, 4):
                e(f's_cmp_eq_u32 {sK}, {k}')
                e(f's_cselect_b32 {dst}, {vals[k]}, {dst}')
        pick(sPB, [XP1, FP1, XP2, FP2])
        pick(sPM, [self.opt['ring'] - 1, self.opt['ring'] - 1, 63, 63])
        pick(sPSt, [XP_S, FP_S, XP_S, FP_S])
        pick(sFl, [P_OP, P_F, P_OP + 8192, P_F + 2048])
        pick(sRB, [0, XA, XB, XC])
        pick(sXB, [XA, XB, XC, 0])
        pick(sNB, [XNA, XN2, XNC, 0])
        e(f's_mul_i32 s60, {sCLS}, 5120')
        for r in (sPB, sRB, sXB, sNB):
            e(f's_add_u32 {r}, {r}, s60')
        e(f's_cmp_eq_u32 {sK}, 0')
        e(f's_cselect_b32 s48, s{PTR["x"]}, s40')
        e(f's_cselect_b32 s49, s{PTR["x"]+1}, s41')
        e(f's_cselect_b32 s50, {NBYTES["x"]}, s10')
        e('s_and_b32 s49, s49, 0xffff')
        e('s_mov_b32 s51, 0x20000')
        e(f's_cmp_eq_u32 {sK}, 3')
        e(f's_cselect_b32 s52, s{PTR["out"]}, s40')
        e(f's_cselect_b32 s53, s{PTR["out"]+1}, s41')
        e(f's_cselect_b32 s54, {NBYTES["out"]}, s10')
        e('s_and_b32 s53, s53, 0xffff')
        e('s_mov_b32 s55, 0x20000')
        e('v_bfe_u32 v5, v0, 4, 1')
        e('v_lshrrev_b32 v6, 5, v0')
        e('v_mul_u32_u24 v6, 1280, v6')
        e('v_and_b32 v7, 15, v0')
        e('v_lshl_add_u32 v6, v7, 4, v6')
        e('v_lshl_add_u32 v2, v5, 8, v6')
        e('v_mul_u32_u24 v1, 2560, v5')
        e('v_add_u32 v1, v1, v6')
        e('v_mul_u32_u24 v5, 40960, v5')
        e('v_add_u32 v3, v5, v6')
        e(f's_and_b32 s60, {sK}, 1')
        e('s_cmp_eq_u32 s60, 0')
        e('s_cselect_b32 s60, 39, 11')
        e('v_min_u32 v12, s60, v0')
        e('v_lshlrev_b32 v5, 7, v12')
        e('v_cmp_ge_u32 s[84:85], s60, v0')
        e('v_bfe_u32 v12, v0, 3, 1')
        e('v_lshrrev_b32 v13, 5, v0')
        e('v_and_b32 v56, 7, v0')
        e('v_cmp_ne_u32 vcc, v12, v13')
        e('v_cndmask_b32 v56, v56, 15, vcc')
        e('v_mov_b32 v12, 0x3f80')
        e('v_mov_b32 v13, 0x3f800000')
        for d in range(4):
            e(f'v_cmp_eq_u32 vcc, {2*d}, v56')
            e(f'v_cndmask_b32 {v(8+d)}, 0, v12, vcc')
            e(f'v_cmp_eq_u32 vcc, {2*d+1}, v56')
            e(f'v_cndmask_b32 {v(8+d)}, {v(8+d)}, v13, vcc')
        ACC, PB, RES = 16, 60, 220
        def pk_of(base, p, cg):
            return base + (12 * p + 2 * cg if cg < 4 else 8 + 2 * p)
        wide = [(0, 'v2', 0), (4, 'v2', 512), (8, 'v1', 1024), (12, 'v2', 2560), (16, 'v2', 3072)]

        def swaps(base):
            for o, _, _ in wide:
                e(f'v_permlane16_swap_b32 {v(base+o)}, {v(base+o+2)}')
                e(f'v_permlane16_swap_b32 {v(base+o+1)}, {v(base+o+3)}')

        def loads(j):
            for q in range(10):
                e(f'buffer_load_dwordx4 {v(PB+40*j+4*q,4)}, v3, {WS}, {sT} offen offset:{(q//5)*2560+(q%5)*256} sc1')
            e(f's_add_u32 {sT}, {sT}, 81920')

        def mm(j, left):
            for q in range(10):
                e(f's_waitcnt vmcnt({left + 9 - q})')
                e(f'v_mfma_f32_16x16x32_bf16 {v(ACC+4*q,4)}, v[8:11], {v(PB+40*j+4*q,4)}, {"0" if j==0 else v(ACC+4*q,4)}')

        def flags():
            if self.opt['ratom']:
                e('v_mov_b32 v56, -1')
                e('s_mov_b64 exec, s[84:85]')
                e('v_mov_b32 v56, 0')
                e(f'buffer_atomic_add v56, v5, {WS}, {sFl} offen sc0')
                e('s_mov_b64 exec, -1')
            else:
                e(f'buffer_load_dword v56, v5, {WS}, {sFl} offen sc1')

        def check(ok):
            e(f'v_cmp_gt_u32 vcc, {sN}, v56')
            e(f's_cbranch_vccz {ok}')
        e(f's_mov_b32 {sS}, 0')
        e(f's_mov_b32 {sN}, 1')
        e('L_r_poll:')
        flags()
        e('s_waitcnt vmcnt(0)')
        check('L_r_go')
        self.spin('L_r_poll', self.opt['psleep'])
        e('L_r_go:')
        self.flush()
        self.stamp(0, real=True)
        e(f's_and_b32 {sT}, {sS}, {sPM}')
        e(f's_mul_i32 {sT}, {sT}, {sPSt}')
        e(f's_add_u32 {sT}, {sT}, {sPB}')
        e(f's_mul_i32 {sU}, {sS}, {SEGB}')
        e(f's_add_u32 s60, {sU}, {sRB}')
        for o, va, im in wide:
            e(f'buffer_load_dwordx4 {v(RES+o,4)}, {va}, {SRB}, s60 offen offset:{im} sc1')
        loads(0)
        loads(1)
        e(f's_bitcmp1_b32 {sK}, 0')
        e('s_cbranch_scc1 L_r_two')
        loads(2)
        loads(3)
        for j in range(4):
            mm(j, 10 * (3 - j))
        e('s_branch L_r_sum')
        e('L_r_two:')
        for j in range(2):
            mm(j, 10 * (1 - j))
        e('L_r_sum:')
        self.stamp(1, real=True)
        e(f's_add_u32 s60, {sU}, {sXB}')
        e(f's_add_u32 s61, {sU}, {sNB}')
        XPK, NPK, NT, TT = 80, 100, 120, 132
        swaps(RES)
        exact = self.opt['exact']
        for p in range(2):
            for cg in range(5):
                r = pk_of(RES, p, cg)
                for h in range(2):
                    x = ACC + 20 * p + 4 * cg + 2 * h
                    e(f'v_lshlrev_b32 {v(PB)}, 16, {v(r+h)}')
                    e(f'v_and_b32 {v(PB+1)}, 0xffff0000, {v(r+h)}')
                    if exact:
                        e(f'v_cvt_pk_bf16_f32 {v(PB+2)}, {v(x)}, {v(x+1)}')
                        e(f'v_lshlrev_b32 {v(x)}, 16, {v(PB+2)}')
                        e(f'v_and_b32 {v(x+1)}, 0xffff0000, {v(PB+2)}')
                    e(f'v_pk_add_f32 {v(x,2)}, {v(x,2)}, {v(PB,2)}')
                    e(f'v_cvt_pk_bf16_f32 {v(pk_of(XPK,p,cg)+h)}, {v(x)}, {v(x+1)}')
        e(f's_cmp_eq_u32 {sK}, 3')
        e('s_cbranch_scc1 L_r_last')
        for p in range(2):
            for cg in range(5):
                self.unpack(ACC + 20 * p + 4 * cg, pk_of(XPK, p, cg), 2)
        for p in range(2):
            self.ln_pair(ACC + 20 * p, [pk_of(NPK, p, k // 2) + (k & 1) for k in range(10)], TT + 8 * p)
        swaps(NPK)
        for o, va, im in wide:
            e(f'buffer_store_dwordx4 {v(NPK+o,4)}, {va}, {WS}, s61 offen offset:{im} sc1')
        e('L_r_last:')
        swaps(XPK)
        for o, va, im in wide:
            e(f'buffer_store_dwordx4 {v(XPK+o,4)}, {va}, {SRC}, s60 offen offset:{im} sc1')
        self.stamp(2, real=True)
        flags()
        e(f's_add_u32 {sS}, {sS}, 1')
        e(f's_add_u32 {sN}, {sS}, 1')
        e('s_waitcnt vmcnt(0)')
        self.signal('v4', 's71', sS)
        self.stamp(3, real=True)
        self.dbgtime(7)
        e(f's_cmp_ge_u32 {sS}, 64')
        e('s_cbranch_scc1 L_end')
        check('L_r_go')
        e('s_branch L_r_poll')

    def role_op(self):
        e = self.A.e
        A = self.A
        L, RQ = self.L, self.opt['rq']
        e('L_op:')
        sJ, sF0, sF1, sN, sT, sO, sA0 = 's70', 's71', 's72', 's73', 's74', 's75', 's76'
        e(f's_sub_u32 {sJ}, {sSLOT}, 21')
        e(f's_mul_i32 s60, {sCLS}, 5')
        e(f's_add_u32 s60, s60, {sJ}')
        e('s_lshl_b32 s60, s60, 7')
        e(f's_add_u32 {sF0}, s60, {P_OP}')
        e(f's_add_u32 {sF1}, {sF0}, 8192')
        self.zero_word(sF0)
        self.zero_word(sF1)
        self.arrive()
        self.ln1_items()
        if not self.on('op'):
            e('s_endpgm')
            return
        if self.opt['hold']:
            self.wait_init('v6', 'v7')
            e(f's_lshl_b32 s60, {sCLS}, 8')
            e(f's_add_u32 s60, s60, {P_QKV}')
            e('v_mov_b32 v6, 12')
            self.poll('v4', 'v6', 's60', 1, sleep=8)
        self.srd(SRA, 'wo')
        e('v_lshrrev_b32 v1, 4, v0')
        e(f's_lshl_b32 s60, {sW}, 6')
        e('v_add_u32 v1, s60, v1')
        e('v_mul_u32_u24 v1, 1280, v1')
        e('v_and_b32 v2, 15, v0')
        e('v_lshl_add_u32 v5, v2, 4, v1')
        e(f's_mul_i32 s60, {sCLS}, {768*1280}')
        e(f's_lshl_b32 s61, {sJ}, 8')
        e('s_add_u32 s60, s60, s61')
        e('v_add_u32 v5, s60, v5')
        e(f's_lshl_b32 s62, {sW}, 6')
        self.tr_lane('v6', 4, 256, 's62')

        def stage(c):
            e(f's_lshl_b32 s60, {sW}, 14')
            e(f's_add_u32 m0, s60, {(c & 1) * 65536}')
            e(f's_mov_b32 s61, {c * 256 * 1280}')
            self.dma(16, 'v5', SRA, 's61', 4 * 1280)

        def take(c, left):
            e(f's_waitcnt vmcnt({left})')
            e('s_barrier')
            self.trl([(a(4 * (16 * c + k) + 2 * u, 2), (c & 1) * 65536 + k * 4096 + u * 2048)
                      for k in range(16) for u in range(2)], 'v6', 'v7')
            e('s_waitcnt lgkmcnt(0)')
            e('s_barrier')
        stage(0)
        stage(1)
        take(0, 16)
        stage(2)
        take(1, 16)
        take(2, 0)
        self.lds_zero([110592, 110596])
        vL16, vW, vR, vG, vF = 8, 9, 10, 12, 5
        e(f'v_lshlrev_b32 {v(vL16)}, 4, v0')
        self.tile_out_consts(vW, vR, vG, 98304)
        e('v_and_b32 v1, 3, v0')
        e(f'v_lshlrev_b32 {v(vF)}, 2, v1')
        e(f's_lshl_b32 s60, {sCLS}, 7')
        e(f's_add_u32 {sA0}, s60, {P_AT}')
        e(f's_lshl_b32 s60, {sCLS}, 2')
        e(f's_add_u32 s60, s60, {sW}')
        e(f's_mul_i32 s77, s60, {QKV_HEAD}')
        e(f's_add_u32 s77, s77, {QKV}')
        e(f's_mul_i32 s78, {sCLS}, {SEGB}')
        e(f's_lshl_b32 s60, {sJ}, 8')
        e('s_add_u32 s78, s78, s60')
        e(f's_lshl_b32 s60, {sW}, 6')
        e('s_add_u32 s78, s78, s60')
        self.wait_init('v6', 'v7')
        e(f'v_add_u32 v7, 32768, {v(vL16)}')
        e(f's_mul_i32 s81, {sW}, 12288')
        ACC, PK, BR = 16, 32, 64
        sS, sS2, sN2, sT2, sD = 's79', 's80', 's82', 's83', 's84'

        def src(dst, sseg, ly):
            e(f's_and_b32 {dst}, {sseg}, {RQ-1}')
            e(f's_mul_i32 {dst}, {dst}, {QKV_SEG}')
            e(f's_add_u32 {dst}, {dst}, s77')
            if ly:
                e(f's_add_u32 {dst}, {dst}, {QL2}')

        def dma_one(i, st, ly):
            if i % 4 == 0:
                e(f's_add_u32 m0, s81, {49152 * ly + 1024 * i}')
                if i:
                    e(f's_add_u32 {st}, {st}, 4096')
                else:
                    e('s_nop 0')
            e(f'buffer_load_dwordx4 {v(vL16)}, {WS}, {st} offen offset:{1024 * (i % 4)} sc1 lds')

        def dma_if(i, val):
            l = A.lab('nd')
            e(f's_cmp_eq_u32 {sD}, {val}')
            e(f's_cbranch_scc0 {l}')
            dma_one(i, sT2, 1)
            e(f'{l}:')

        def dst(sseg, ly):
            if ly == 0:
                e(f's_and_b32 {sO}, {sseg}, {self.opt["ring"]-1}')
                e(f's_mul_i32 {sO}, {sO}, {XP_S}')
                e(f's_add_u32 {sO}, {sO}, {XP1}')
            else:
                e(f's_mul_i32 {sO}, {sseg}, {XP_S}')
                e(f's_add_u32 {sO}, {sO}, {XP2}')
            e(f's_add_u32 {sO}, {sO}, s78')

        def compute(ly, hooks):
            PF = 6
            buf = 49152 * ly
            x = 0 if ly == 0 else 32768
            ad = v(vL16) if ly == 0 else 'v7'
            for k in range(PF):
                e(f'ds_read_b128 {v(BR+4*(k%8),4)}, {ad} offset:{buf-x+1024*k}')
            for k in range(48):
                if k + PF < 48:
                    e(f'ds_read_b128 {v(BR+4*((k+PF)%8),4)}, {ad} offset:{buf-x+1024*(k+PF)}')
                e(f's_waitcnt lgkmcnt({min(PF, 47-k)})')
                e(f'v_mfma_f32_32x32x16_bf16 {v(ACC,16)}, {a(4*k,4)}, {v(BR+4*(k%8),4)}, {"0" if k==0 else v(ACC,16)}')
                for h in hooks.get(k, []):
                    h()
            self.tile_out(ACC, PK, vW, vR, vG, sO, 0)

        def single(ly, tag, n0, n1):
            e(f's_mov_b32 {sS}, {n0}')
            e(f'L_op_{tag}:')
            self.flush()
            e(f's_add_u32 {sN}, {sS}, 1')
            self.poll('v4', v(vF), sA0, sN, imm=1024 * ly)
            self.stamp(4 * ly, real=True)
            src(sT, sS, ly)
            for i in range(12):
                dma_one(i, sT, ly)
            dst(sS, ly)
            e('s_waitcnt vmcnt(0)')
            e('s_barrier')
            self.stamp(4 * ly + 1, real=True)
            compute(ly, {})
            self.stamp(4 * ly + 2, real=True)
            e('s_waitcnt vmcnt(0)')
            self.signal_cu('v4', 'v6', 110592 + 4 * ly, sF1 if ly else sF0, sN)
            self.stamp(4 * ly + 3, real=True)
            e('s_barrier')
            e(f's_mov_b32 {sS}, {sN}')
            e(f's_cmp_lt_u32 {sS}, {n1}')
            e(f's_cbranch_scc1 L_op_{tag}')
        single(0, 'a', 0, L)
        e(f's_mov_b32 {sS2}, 0')
        e('L_op_b:')
        self.flush()
        e(f's_add_u32 {sN}, {sS}, 1')
        e(f's_add_u32 {sN2}, {sS2}, 1')
        e(f'buffer_load_dword v4, {v(vF)}, {WS}, {sA0} offen sc1')
        e('s_waitcnt vmcnt(0)')
        e(f's_cmp_eq_u32 {sS2}, 0')
        e('s_cbranch_scc1 L_op_b0')
        self.signal_cu('v6', 'v11', 110596, sF1, sS2)
        e('L_op_b0:')
        self.stamp(7, real=True)
        e(f'v_cmp_gt_u32 vcc, {sN}, v4')
        e('s_cbranch_vccz L_op_b1')
        self.poll('v4', v(vF), sA0, sN)
        e('L_op_b1:')
        self.stamp(0, real=True)
        src(sT, sS, 0)
        for i in range(12):
            dma_one(i, sT, 0)
        e(f'buffer_load_dword v4, {v(vF)}, {WS}, {sA0} offen offset:1024 sc1')
        dst(sS, 0)
        src(sT2, sS2, 1)
        e('s_waitcnt vmcnt(0)')
        e(f'v_cmp_gt_u32 vcc, {sN2}, v4')
        e('s_cmp_eq_u64 vcc, 0')
        e(f's_cselect_b32 {sD}, 1, 0')
        e('s_barrier')
        self.stamp(1, real=True)

        def reld():
            l = A.lab('rl')
            e(f's_cmp_lg_u32 {sD}, 0')
            e(f's_cbranch_scc1 {l}')
            e(f'buffer_load_dword v4, {v(vF)}, {WS}, {sA0} offen offset:1024 sc1')
            e(f'{l}:')

        def ck():
            l = A.lab('ck')
            e(f's_cmp_lg_u32 {sD}, 0')
            e(f's_cbranch_scc1 {l}')
            e('s_waitcnt vmcnt(0)')
            e(f'v_cmp_gt_u32 vcc, {sN2}, v4')
            e(f's_cbranch_vccnz {l}')
            e(f's_mov_b32 {sD}, 2')
            e(f'{l}:')
        hk = {10: [reld], 22: [ck]}
        for i in range(12):
            hk.setdefault(2 * i, []).append(lambda i=i: dma_if(i, 1))
            hk.setdefault(23 + 2 * i, []).append(lambda i=i: dma_if(i, 2))
        compute(0, hk)
        self.stamp(2, real=True)
        e(f's_cmp_eq_u32 {sD}, 0')
        e('s_cbranch_scc1 L_op_b2')
        e('s_waitcnt vmcnt(2)')
        e('s_branch L_op_b3')
        e('L_op_b2:')
        e('s_waitcnt vmcnt(0)')
        self.signal_cu('v6', 'v11', 110592, sF0, sN)
        self.poll('v4', v(vF), sA0, sN2, imm=1024)
        for i in range(12):
            dma_one(i, sT2, 1)
        e('s_waitcnt vmcnt(0)')
        e('L_op_b3:')
        dst(sS2, 1)
        e('s_barrier')
        self.stamp(5, real=True)

        def sig0():
            e(f's_cmp_eq_u32 {sD}, 0')
            e('s_cbranch_scc1 L_op_b4')
            e('s_waitcnt vmcnt(0)')
            self.signal_cu('v6', 'v11', 110592, sF0, sN)
            self.stamp(3, real=True)
            e('L_op_b4:')
        compute(1, {self.opt['opsig']: [sig0]})
        self.stamp(6, real=True)
        e(f's_mov_b32 {sS}, {sN}')
        e(f's_mov_b32 {sS2}, {sN2}')
        e(f's_cmp_lt_u32 {sS}, 64')
        e('s_cbranch_scc1 L_op_b')
        e('s_waitcnt vmcnt(0)')
        self.signal_cu('v6', 'v11', 110596, sF1, sS2)
        e('s_barrier')
        single(1, 'c', 64 - L, 64)
        e('s_endpgm')

    def role_f(self):
        e = self.A.e
        A = self.A
        e('L_f:')
        sLY, sI, sFW, sN, sT, sO, sS, sFl, sU, sHw, sHa, sHb, sD = ['s%d' % i for i in range(70, 83)]
        e(f's_lshr_b32 {sLY}, {sCLS}, 2')
        e(f's_sub_u32 {sI}, {sSLOT}, 26')
        e(f's_lshl_b32 {sU}, {sI}, 2')
        e(f's_add_u32 {sU}, {sU}, {sW}')
        e(f's_and_b32 s83, {sCLS}, 3')
        e('s_mul_i32 s60, s83, 384')
        e(f's_lshl_b32 s61, {sI}, 7')
        e('s_add_u32 s60, s60, s61')
        e(f's_lshl_b32 s61, {sLY}, 11')
        e('s_add_u32 s60, s60, s61')
        e(f's_add_u32 {sFW}, s60, {P_F}')
        self.zero_word(sFW)
        e(f's_mul_i32 s60, {sCLS}, {HB_C}')
        e(f's_add_u32 s60, s60, {HB}')
        e(f's_lshl_b32 s61, {sU}, 11')
        e(f's_add_u32 {sHw}, s60, s61')
        e(f's_lshl_b32 s62, {sW}, 11')
        e('s_add_u32 s60, s60, s62')
        for d, dst in ((1, sHa), (2, sHb)):
            e(f's_add_u32 s61, {sI}, {d}')
            e('s_cmp_ge_u32 s61, 3')
            e('s_cselect_b32 s62, 3, 0')
            e('s_sub_u32 s61, s61, s62')
            e('s_lshl_b32 s61, s61, 13')
            e(f's_add_u32 {dst}, s60, s61')
        e('v_lshlrev_b32 v5, 4, v0')
        for r in range(16, 20):
            e(f'v_mov_b32 v{r}, -1')
        for sl in range(2):
            e(f's_add_u32 s60, {sHw}, {sl * HB_S}')
            for h in range(2):
                e(f'buffer_store_dwordx4 v[16:19], v5, {WS}, s60 offen offset:{1024*h} sc1')
        self.arrive()
        self.ln1_items()
        if not self.on('f'):
            e('s_endpgm')
            return
        if self.opt['hold']:
            self.wait_init('v6', 'v7')
            e(f's_lshl_b32 s60, {sCLS}, 8')
            e(f's_add_u32 s60, s60, {P_QKV}')
            e('v_mov_b32 v6, 12')
            self.poll('v4', 'v6', 's60', 1, sleep=8)
        self.srd(SRA, 'w1')
        self.srd(SRB, 'w2')
        e('s_mul_i32 s84, s83, 3')
        e(f's_add_u32 s84, s84, {sI}')
        e('v_lshrrev_b32 v1, 4, v0')
        e(f's_mul_i32 s60, {sW}, 80')
        e('v_add_u32 v1, s60, v1')
        e('v_mul_u32_u24 v1, 3072, v1')
        e('v_and_b32 v2, 15, v0')
        e('v_lshl_add_u32 v5, v2, 4, v1')
        e('s_lshl_b32 s60, s84, 8')
        e('v_add_u32 v5, s60, v5')
        e(f's_lshl_b32 s62, {sW}, 6')
        self.tr_lane('v6', 8, 256, 's62')
        e(f's_lshl_b32 s85, {sU}, 7')
        e(f's_lshl_b32 s60, {sU}, 6')
        e('s_add_u32 s60, s60, 512')
        e(f's_cmp_ge_u32 {sU}, 8')
        e('s_cselect_b32 s85, s60, s85')
        e('s_min_u32 s86, s85, 1152')
        e('v_lshrrev_b32 v1, 3, v0')
        e('v_mul_u32_u24 v1, 1280, v1')
        e('v_and_b32 v2, 7, v0')
        e('v_lshl_add_u32 v8, v2, 4, v1')
        e('v_add_u32 v8, s86, v8')
        e(f's_mul_i32 s87, {sW}, 16384')
        e('s_sub_u32 s60, s85, s86')
        e('s_add_u32 s60, s60, s87')
        self.tr_lane('v9', 4, 128, 's60')

        def W2(t, k, n=4, u=0):
            r = 96 * t + 4 * k + 2 * u
            return a(160 + r, n) if r < 96 else v(160 + r - 96, n)

        def stage(voff, srd, s0, step, buf):
            e(f's_mul_i32 s60, {sW}, 20480')
            e(f's_add_u32 m0, s60, {buf}')
            e(f's_mov_b32 s61, {s0}')
            self.dma(20, voff, srd, 's61', step)

        def take(left, items, vaddr):
            e(f's_waitcnt vmcnt({left})')
            e('s_barrier')
            self.trl(sorted(items, key=lambda x: x[1]), vaddr, 'v7')
            e('s_waitcnt lgkmcnt(0)')
            e('s_barrier')
        w1i = lambda h: [(a(4 * (20 * h + k) + 2 * u, 2), 81920 * h + k * 4096 + u * 1024) for k in range(20) for u in range(2)]
        stage('v5', SRA, 0, 4 * 3072, 0)
        stage('v5', SRA, 320 * 3072, 4 * 3072, 81920)
        take(20, w1i(0), 'v6')
        take(0, w1i(1), 'v6')
        def w2_stage(j):
            e(f's_add_u32 s61, {sI}, {j}')
            e('s_cmp_ge_u32 s61, 3')
            e('s_cselect_b32 s62, 3, 0')
            e('s_sub_u32 s61, s61, s62')
            e('s_mul_i32 s62, s83, 3')
            e('s_add_u32 s61, s61, s62')
            e('s_mul_i32 s61, s61, 163840')
            e(f's_add_u32 m0, s87, {65536 * (j & 1)}')
            self.dma(16, 'v8', SRB, 's61', 8 * 1280)

        def w2_take(j, left):
            e(f's_waitcnt vmcnt({left})')
            self.trl([(W2(t, 8 * j + k, 2, u), 65536 * (j & 1) + (16 * k + 8 * u) * 128 + t * 64)
                      for t in range(2) for k in range(8) for u in range(2)], 'v9', 'v7')
            e('s_waitcnt lgkmcnt(0)')
        w2_stage(0)
        w2_stage(1)
        w2_take(0, 16)
        w2_stage(2)
        w2_take(1, 16)
        w2_take(2, 0)
        e('s_barrier')
        self.lds_zero([86016])
        VD, VR, vL16, vW, vRd, vG, vF, vH = 8, 10, 9, 128, 129, 130, 5, 6
        HXL, TOL = 40960, 65536
        self.xn_consts(VD, VR)
        e(f's_mul_i32 s60, {sW}, 4608')
        e(f's_add_u32 s60, s60, {TOL}')
        e('v_and_b32 v1, 31, v0')
        e('v_mul_u32_u24 v1, 144, v1')
        e('v_lshrrev_b32 v2, 5, v0')
        e('v_lshl_add_u32 v1, v2, 3, v1')
        e(f'v_add_u32 {v(vW)}, s60, v1')
        e('v_lshrrev_b32 v1, 3, v0')
        e('v_and_b32 v2, 7, v0')
        e('v_mul_u32_u24 v3, 144, v1')
        e('v_lshl_add_u32 v3, v2, 4, v3')
        e(f'v_add_u32 {v(vRd)}, s60, v3')
        e('v_mul_u32_u24 v3, 1280, v1')
        e(f'v_lshl_add_u32 {v(vG)}, v2, 4, v3')
        for q in range(1, 4):
            e(f'v_add_u32 {v(vG+q)}, {10240*q}, {v(vG)}')
        e(f's_cmp_ge_u32 {sU}, 8')
        e('s_cselect_b32 s88, 0x0f0f0f0f, -1')
        e('s_mov_b32 s89, s88')
        e(f'v_lshlrev_b32 {v(vL16)}, 4, v0')
        e(f's_lshl_b32 s60, {sW}, 11')
        e(f'v_add_u32 {v(vH)}, s60, {v(vL16)}')
        e('v_and_b32 v1, 7, v0')
        e(f'v_lshlrev_b32 {v(vF)}, 7, v1')
        e(f's_lshl_b32 {sFl}, {sLY}, 10')
        e(f's_add_u32 {sFl}, {sFl}, {P_R1}')
        e(f's_cmp_eq_u32 {sLY}, 0')
        e(f's_mov_b32 s90, {XNC}')
        e(f's_mov_b32 s91, {FP2}')
        e(f's_cselect_b32 s90, {XNA}, s90')
        e(f's_cselect_b32 s91, {FP1}, s91')
        e(f's_cselect_b32 s92, {self.opt["ring"]-1}, 63')
        e(f's_mul_i32 s60, s83, {SEGB}')
        e('s_add_u32 s91, s91, s60')
        e('s_add_u32 s91, s91, s85')
        e(f's_mul_i32 s93, {sW}, 10240')
        self.wait_init('v4', 'v7')
        ACC, PK, BR, GR = (16, 32), 48, 96, 64

        def dma_one(i):
            if i == 0:
                e('s_mov_b32 m0, s93')
                e('s_nop 0')
            else:
                e('s_add_u32 m0, m0, 896')
            e(f'buffer_load_dwordx4 {v(VD)}, {WS}, {sT} offen offset:{i*128} sc1 lds')

        def dma_if(i):
            l = A.lab('nd')
            e(f's_cmp_eq_u32 {sD}, 1')
            e(f's_cbranch_scc0 {l}')
            dma_one(i)
            e(f'{l}:')
        e(f's_mov_b32 {sS}, 0')
        e(f's_mov_b32 {sN}, 1')
        e(f's_mov_b32 {sT}, s90')
        e('L_f_poll:')
        self.poll('v4', v(vF), sFl, sN)
        e('L_f_dma:')
        self.stamp(0, real=True)
        for i in range(10):
            dma_one(i)
        e('s_waitcnt vmcnt(0)')
        e('L_f_go:')
        e('s_barrier')
        self.stamp(1, real=True)
        e(f's_and_b32 {sO}, {sS}, s92')
        e(f's_mul_i32 {sO}, {sO}, {FP_S}')
        e(f's_add_u32 {sO}, {sO}, s91')
        e(f's_and_b32 s60, {sS}, 3')
        e(f's_mul_i32 s60, s60, {HB_S}')
        e(f's_add_u32 s61, s60, {sHw}')
        e(f's_add_u32 s62, s60, {sHa}')
        e(f's_add_u32 s63, s60, {sHb}')
        PF = 6
        for k in range(PF):
            e(f'ds_read_b128 {v(BR+4*(k%8),4)}, {v(VR+(k&3))} offset:{(k>>2)*1024}')
        for k in range(40):
            if k + PF < 40:
                kk = k + PF
                e(f'ds_read_b128 {v(BR+4*(kk%8),4)}, {v(VR+(kk&3))} offset:{(kk>>2)*1024}')
            e(f's_waitcnt lgkmcnt({min(PF, 39-k)})')
            e(f'v_mfma_f32_32x32x16_bf16 {v(ACC[0],16)}, {a(4*k,4)}, {v(BR+4*(k%8),4)}, {"0" if k==0 else v(ACC[0],16)}')
        for j in range(8):
            e(f'v_cvt_pk_bf16_f32 {v(PK+j)}, {v(ACC[0]+2*j)}, {v(ACC[0]+2*j+1)}')
        for j in range(8):
            e(f'v_pk_max_i16 {v(PK+j)}, {v(PK+j)}, 0')
        self.st_mode([f'buffer_store_dwordx4 {v(PK+4*h,4)}, {v(vL16)}, {WS}, s61 offen offset:{1024*h}' for h in range(2)])
        e(f'ds_write_b128 {v(vH)}, {v(PK,4)} offset:{HXL}')
        e(f'ds_write_b128 {v(vH)}, {v(PK+4,4)} offset:{HXL+1024}')
        e('s_waitcnt lgkmcnt(0)')
        e('s_barrier')
        self.stamp(2, real=True)

        def g2(k0, k1, hooks):
            for k in range(k0, min(k0 + PF, k1)):
                e(f'ds_read_b128 {v(BR+4*(k%8),4)}, {v(vL16)} offset:{HXL+1024*k}')
            for k in range(k0, k1):
                if k + PF < k1:
                    e(f'ds_read_b128 {v(BR+4*((k+PF)%8),4)}, {v(vL16)} offset:{HXL+1024*(k+PF)}')
                e(f's_waitcnt lgkmcnt({min(PF, k1-1-k)})')
                for t in range(2):
                    d = v(ACC[t], 16)
                    e(f'v_mfma_f32_32x32x16_bf16 {d}, {W2(t,k)}, {v(BR+4*(k%8),4)}, {"0" if k==0 else d}')
                for h in hooks.get(k, []):
                    h()

        def hld(i):
            e(f'buffer_load_dwordx4 {v(GR+4*i,4)}, {v(vL16)}, {WS}, {"s62" if i < 2 else "s63"} offen offset:{1024*(i&1)} sc1')
        g2(0, 8, {3: [lambda: [hld(i) for i in range(4)]]})
        for i in range(4):
            e(f'L_f_c{i}:')
            e(f's_waitcnt vmcnt({3-i})')
            e(f'v_max3_u32 v4, {v(GR+4*i)}, {v(GR+4*i+1)}, {v(GR+4*i+2)}')
            e(f'v_max_u32 v4, v4, {v(GR+4*i+3)}')
            e('v_cmp_eq_u32 vcc, -1, v4')
            e(f's_cbranch_vccnz L_f_r{i}')
            e(f'ds_write_b128 {v(vH)}, {v(GR+4*i,4)} offset:{HXL + 8192*(1 + i//2) + 1024*(i&1)}')
        for r in range(4):
            e(f'v_mov_b32 {v(GR+r)}, -1')
        e(f's_add_u32 s60, {sS}, 2')
        e('s_and_b32 s60, s60, 3')
        e(f's_mul_i32 s60, s60, {HB_S}')
        e(f's_add_u32 s60, s60, {sHw}')
        self.st_mode([f'buffer_store_dwordx4 {v(GR,4)}, {v(vL16)}, {WS}, s60 offen offset:{1024*h}' for h in range(2)])
        e(f'buffer_load_dword v4, {v(vF)}, {WS}, {sFl} offen sc1')
        e(f's_add_u32 {sT}, {sT}, {SEGB}')
        e(f's_add_u32 s94, {sN}, 1')
        e('s_waitcnt lgkmcnt(0)')
        e('s_barrier')
        self.stamp(5, real=True)

        def ck():
            e('s_waitcnt vmcnt(0)')
            e('v_cmp_gt_u32 vcc, s94, v4')
            e('s_cmp_eq_u64 vcc, 0')
            e(f's_cselect_b32 {sD}, 1, 0')
        hk = {13: [ck]}
        for i in range(10):
            hk.setdefault(14 + i, []).append(lambda i=i: dma_if(i))
        g2(8, 24, hk)
        for t in range(2):
            for j in range(8):
                e(f'v_cvt_pk_bf16_f32 {v(PK+8*t+j)}, {v(ACC[t]+2*j)}, {v(ACC[t]+2*j+1)}')
            for j in range(4):
                e(f'ds_write_b64 {v(vW)}, {v(PK+8*t+2*j,2)} offset:{64*t+16*j}')
        e('s_waitcnt lgkmcnt(0)')
        for q in range(4):
            e(f'ds_read_b128 {v(GR+4*q,4)}, {v(vRd)} offset:{1152*q}')
        e('s_mov_b64 exec, s[88:89]')
        for q in range(4):
            e(f's_waitcnt lgkmcnt({3-q})')
            e(f'buffer_store_dwordx4 {v(GR+4*q,4)}, {v(vG+q)}, {WS}, {sO} offen sc1')
        e('s_mov_b64 exec, -1')
        self.stamp(3, real=True)
        e(f'buffer_load_dword v4, {v(vF)}, {WS}, {sFl} offen sc1')
        e('s_waitcnt vmcnt(0)')
        self.signal_cu('v7', 'v3', 86016, sFW, sN)
        self.stamp(4, real=True)
        self.flush()
        e(f's_mov_b32 {sS}, {sN}')
        e(f's_mov_b32 {sN}, s94')
        e(f's_cmp_ge_u32 {sS}, 64')
        e('s_cbranch_scc1 L_end')
        e(f's_cmp_eq_u32 {sD}, 1')
        e('s_cbranch_scc1 L_f_go')
        e(f'v_cmp_gt_u32 vcc, {sN}, v4')
        e('s_cbranch_vccz L_f_dma')
        e('s_branch L_f_poll')
        for i in range(4):
            e(f'L_f_r{i}:')
            for j in range(i, 4):
                hld(j)
            self.spin(f'L_f_c{i}')
```

```python
import sys, os
sys.path.insert(0, os.path.dirname(os.path.abspath(__file__)))
from asmlib import Asm

from common import *
from chain import ChainMixin
from qkv import QkvMixin
from workers import WorkersMixin


class Gen(ChainMixin, QkvMixin, WorkersMixin):
    def __init__(self, L=6, A=10, roles='all', diag=False, nsteps=None, force_slow=False, opt=None):
        self.A = Asm()
        self.L = L
        self.AH = A
        self.roles = roles
        self.diag = diag
        self.nsteps = nsteps if nsteps is not None else 64 + L
        self.force_slow = force_slow
        self.opt = dict(cdelay=4, agdelay=0, sdelay=0, odelay=0, hdelay=20, rq=8, intra=1, at2delay=6, exact=0, opsig=26, psleep=1, crring=128, ring=64, ratom=1, earlysig=1, svm=11, sgap=2, lite=0, wnt=1, hold=1, npre=3, opre=4, vat=8, sv1=4, warm=0, xb=0, xwait=14, lean=0, adapt=0, probe=0, fake16=0, keep=0)
        self.opt.update(opt or {})
        self.opt_keep = [i for i in range(16) if self.opt['keep'] >> i & 1]

    def on(self, r):
        return self.roles == 'all' or r in self.roles.split(',')

    def srd(self, dst, name):
        e = self.A.e
        b = int(dst[2:dst.index(':')])
        p = PTR[name]
        e(f's_mov_b32 s{b}, s{p}')
        e(f's_and_b32 s{b+1}, s{p+1}, 0xffff')
        e(f's_mov_b32 s{b+2}, {NBYTES[name]}')
        e(f's_mov_b32 s{b+3}, 0x20000')

    def spin(self, back, sleep=0):
        e = self.A.e
        if sleep:
            e(f's_sleep {sleep}')
        e(f's_sub_u32 {sSPIN}, {sSPIN}, 1')
        e(f's_cbranch_scc0 {back}')
        e('s_branch L_fail')

    def poll(self, vt, voff, soff, need, sleep=None, imm=0):
        e = self.A.e
        l0, l1 = self.A.lab('poll'), self.A.lab('pok')
        e(f'{l0}:')
        e(f'buffer_load_dword {vt}, {voff}, {WS}, {soff} offen offset:{imm} sc1')
        e('s_waitcnt vmcnt(0)')
        e(f'v_cmp_gt_u32 vcc, {need}, {vt}')
        e(f's_cbranch_vccz {l1}')
        self.spin(l0, self.opt['psleep'] if sleep is None else sleep)
        e(f'{l1}:')

    def st_mode(self, text):
        e = self.A.e
        lines = text if isinstance(text, list) else [text]
        l0, l1 = self.A.lab('sl'), self.A.lab('sd')
        e(f's_cmp_eq_u32 {sFAST}, 0')
        e(f's_cbranch_scc1 {l0}')
        for t in lines:
            e(t)
        e(f's_branch {l1}')
        e(f'{l0}:')
        for t in lines:
            e(t + (' sc1' if t.startswith('buffer_store') else ''))
        e(f'{l1}:')

    def st_intra(self, lines):
        if self.opt['intra']:
            self.st_mode(lines)
        else:
            for t in lines:
                self.A.e(t + ' sc1')

    def signal(self, vt, soff, val, intra=False):
        e = self.A.e
        e(f'v_mov_b32 {vt}, {val}')
        e('s_mov_b64 exec, 1')
        if intra:
            self.st_mode(f'buffer_store_dword {vt}, off, {WS}, {soff}')
        else:
            e(f'buffer_store_dword {vt}, off, {WS}, {soff} sc1')
        e('s_mov_b64 exec, -1')

    def signal_cu(self, vt, vz, ldsaddr, soff, val):
        e = self.A.e
        l = self.A.lab('nl')
        e(f'v_mov_b32 {vt}, 1')
        e(f'v_mov_b32 {vz}, {ldsaddr}')
        e('s_mov_b64 exec, 1')
        e(f'ds_add_rtn_u32 {vt}, {vz}, {vt}')
        e('s_waitcnt lgkmcnt(0)')
        e(f'v_readfirstlane_b32 s60, {vt}')
        e(f'v_mov_b32 {vt}, {val}')
        e('s_and_b32 s60, s60, 3')
        e('s_cmp_lg_u32 s60, 3')
        e(f's_cbranch_scc1 {l}')
        e(f'buffer_store_dword {vt}, off, {WS}, {soff} sc1')
        e(f'{l}:')
        e('s_mov_b64 exec, -1')

    def lds_zero(self, addrs):
        e = self.A.e
        e('v_mov_b32 v1, 0')
        for ad in addrs:
            e(f'v_mov_b32 v2, {ad}')
            e('ds_write_b32 v2, v1')
        e('s_waitcnt lgkmcnt(0)')
        e('s_barrier')

    def arrive(self):
        e = self.A.e
        l = self.A.lab('arr')
        e('s_waitcnt vmcnt(0)')
        e('s_barrier')
        e(f's_cmp_lg_u32 {sW}, 0')
        e(f's_cbranch_scc1 {l}')
        e('s_and_b32 s60, s2, 7')
        e('s_lshl_b32 s60, s60, 5')
        e('s_add_u32 s60, s60, 16')
        e('v_mov_b32 v1, 1')
        e('s_mov_b64 exec, 1')
        e(f'buffer_atomic_add v1, off, {DBG}, s60')
        e('s_mov_b64 exec, -1')
        e(f'{l}:')

    def wait_init(self, vt, vt2, st='s60'):
        e = self.A.e
        b = int(st[1:])
        l0, l1 = self.A.lab('wi'), self.A.lab('wid')
        e(f'v_lshlrev_b32 {vt2}, 2, v0')
        e(f'{l0}:')
        e(f'buffer_load_dword {vt}, {vt2}, {DBG}, 0 offen sc1')
        e('s_waitcnt vmcnt(0)')
        e(f'v_cmp_ne_u32 vcc, 32, {vt}')
        e(f's_mov_b32 s{b}, 0x10101010')
        e(f's_mov_b32 s{b+1}, 0x10101010')
        e(f's_and_b64 s[{b+2}:{b+3}], vcc, s[{b}:{b+1}]')
        e(f's_cbranch_scc0 {l1}')
        self.spin(l0, 2)
        e(f'{l1}:')
        e(f's_mov_b32 s{b}, 0x01010101')
        e(f's_mov_b32 s{b+1}, 0x01010101')
        e(f's_and_b64 s[{b+2}:{b+3}], vcc, s[{b}:{b+1}]')
        e(f's_cselect_b32 {sFAST}, 0, 1')
        if self.force_slow:
            e(f's_mov_b32 {sFAST}, 0')

    def trl(self, items, vaddr, vtmp):
        e = self.A.e
        base = None
        for dst, off in items:
            b = (off // 65536) * 65536 if off >= 65536 else 0
            if off - b > 65535:
                raise ValueError
            if b == 0:
                e(f'ds_read_b64_tr_b16 {dst}, {vaddr} offset:{off}')
            else:
                if base != b:
                    e(f'v_add_u32 {vtmp}, {b}, {vaddr}')
                    base = b
                e(f'ds_read_b64_tr_b16 {dst}, {vtmp} offset:{off - b}')

    def dma(self, n, voff, srd, ssoff, sstep, m0step=1024, sc1=False):
        e = self.A.e
        for i in range(n):
            e(f'buffer_load_dwordx4 {voff}, {srd}, {ssoff} offen{" sc1" if sc1 else ""}{" nt" if self.opt["wnt"] and not sc1 else ""} lds')
            if i + 1 < n:
                e(f's_add_u32 m0, m0, {m0step}')
                e(f's_add_u32 {ssoff}, {ssoff}, {sstep}')

    def stamp(self, idx, real=False):
        if not self.diag or (self.opt['lite'] and not real and idx not in self.opt_keep):
            return
        e = self.A.e
        e('s_memrealtime s[98:99]' if real else 's_memtime s[98:99]')
        e('s_waitcnt lgkmcnt(0)')
        e(f'v_writelane_b32 v14, s98, {idx}')

    def xstamp(self, idx):
        if self.diag and self.opt['probe'] == 4:
            e = self.A.e
            e('s_memtime s[98:99]')
            e('s_waitcnt lgkmcnt(0)')
            e(f'v_writelane_b32 v14, s98, {idx}')

    def note(self, idx, sreg):
        if self.diag and self.opt['probe'] != 4:
            self.A.e(f'v_writelane_b32 v14, {sreg}, {idx}')

    def flush(self):
        if not self.diag:
            return
        e = self.A.e
        e('v_lshlrev_b32 v15, 2, v0')
        e('s_mov_b64 exec, 0xffff')
        e(f'buffer_store_dword v14, v15, {WS}, s97 offen')
        e('s_mov_b64 exec, -1')
        e('s_add_u32 s97, s97, 64')

    def rowstat(self, val, tmp):
        e = self.A.e
        for r in (8, 4, 2, 1):
            e(f'v_add_f32_dpp {val}, {val}, {val} row_ror:{r} row_mask:0xf bank_mask:0xf')
        e(f'v_mov_b32 {tmp}, {val}')
        e(f'v_permlane16_swap_b32 {tmp}, {val}')
        e(f'v_add_f32 {val}, {val}, {tmp}')

    def bfround(self, r, ):
        e = self.A.e
        e(f'v_cvt_pk_bf16_f32 {r}, {r}, {r}')
        e(f'v_and_b32 {r}, 0xffff0000, {r}')

    def ln_pair(self, X, OUT, T):
        e = self.A.e
        t0, t2, t4 = T, T + 2, T + 4
        e(f'v_pk_add_f32 {v(t0,2)}, {v(X,2)}, {v(X+2,2)}')
        e(f'v_pk_add_f32 {v(t2,2)}, {v(X+4,2)}, {v(X+6,2)}')
        for k in range(8, 20, 4):
            e(f'v_pk_add_f32 {v(t0,2)}, {v(t0,2)}, {v(X+k,2)}')
            e(f'v_pk_add_f32 {v(t2,2)}, {v(t2,2)}, {v(X+k+2,2)}')
        e(f'v_pk_add_f32 {v(t0,2)}, {v(t0,2)}, {v(t2,2)}')
        e(f'v_add_f32 {v(t0)}, {v(t0)}, {v(t0+1)}')
        self.rowstat(v(t0), v(t0 + 1))
        e(f'v_mul_f32 {v(t0)}, {f2u(-1.0/640):#x}, {v(t0)}')
        e(f'v_mov_b32 {v(t0+1)}, {v(t0)}')
        e(f'v_pk_add_f32 {v(t4,2)}, {v(X,2)}, {v(t0,2)}')
        e(f'v_pk_mul_f32 {v(t2,2)}, {v(t4,2)}, {v(t4,2)}')
        for k in range(2, 20, 2):
            e(f'v_pk_add_f32 {v(t4,2)}, {v(X+k,2)}, {v(t0,2)}')
            e(f'v_pk_fma_f32 {v(t2,2)}, {v(t4,2)}, {v(t4,2)}, {v(t2,2)}')
        e(f'v_add_f32 {v(t2)}, {v(t2)}, {v(t2+1)}')
        self.rowstat(v(t2), v(t2 + 1))
        e(f'v_mul_f32 {v(t2)}, {f2u(1.0/640):#x}, {v(t2)}')
        self.bfround(v(t2))
        e(f'v_add_f32 {v(t2)}, {f2u(1e-5):#x}, {v(t2)}')
        self.bfround(v(t2))
        e(f'v_sqrt_f32 {v(t2)}, {v(t2)}')
        self.bfround(v(t2))
        e(f'v_rcp_f32 {v(t2)}, {v(t2)}')
        self.bfround(v(t0))
        e(f'v_mov_b32 {v(t0+1)}, {v(t0)}')
        e(f'v_mov_b32 {v(t2+1)}, {v(t2)}')
        outs = OUT if isinstance(OUT, list) else list(range(OUT, OUT + 10))
        for k in range(0, 20, 2):
            e(f'v_pk_add_f32 {v(X+k,2)}, {v(X+k,2)}, {v(t0,2)}')
        if self.opt['exact']:
            for k in range(0, 20, 2):
                e(f'v_cvt_pk_bf16_f32 {v(X+k+1)}, {v(X+k)}, {v(X+k+1)}')
            for k in range(0, 20, 2):
                e(f'v_lshlrev_b32 {v(X+k)}, 16, {v(X+k+1)}')
                e(f'v_and_b32 {v(X+k+1)}, 0xffff0000, {v(X+k+1)}')
        for k in range(0, 20, 2):
            e(f'v_pk_mul_f32 {v(X+k,2)}, {v(X+k,2)}, {v(t2,2)}')
        for k in range(0, 20, 2):
            e(f'v_cvt_pk_bf16_f32 {v(outs[k//2])}, {v(X+k)}, {v(X+k+1)}')

    def rowlane_addr(self, dst, tmp):
        e = self.A.e
        e(f'v_lshrrev_b32 {dst}, 5, v0')
        e(f'v_mul_u32_u24 {dst}, 1280, {dst}')
        e(f'v_and_b32 {tmp}, 15, v0')
        e(f'v_lshl_add_u32 {dst}, {tmp}, 4, {dst}')
        e(f'v_bfe_u32 {tmp}, v0, 4, 1')
        e(f'v_lshl_add_u32 {dst}, {tmp}, 3, {dst}')

    def unpack(self, dst, src, n):
        e = self.A.e
        for k in range(n):
            e(f'v_lshlrev_b32 {v(dst+2*k)}, 16, {v(src+k)}')
            e(f'v_and_b32 {v(dst+2*k+1)}, 0xffff0000, {v(src+k)}')

    def ln1_phase(self):
        e = self.A.e
        self.srd(SRA, 'x')
        e(f's_sub_u32 s64, {sSLOT}, 21')
        e('s_lshl_b32 s64, s64, 2')
        e(f's_add_u32 s64, s64, {sW}')
        self.rowlane_addr('v2', 'v3')
        e('v_mov_b32 v4, 0')
        e('s_mov_b64 exec, 1')
        e('s_lshl_b32 s65, s64, 5')
        e(f's_lshl_b32 s66, {sCLS}, 2')
        e('s_add_u32 s65, s65, s66')
        e(f'buffer_store_dword v4, off, {WS}, s65 offset:{P_LN1} sc1')
        e('s_cmp_ge_u32 s64, 20')
        l = self.A.lab('z2')
        e(f's_cbranch_scc1 {l}')
        e(f'buffer_store_dword v4, off, {WS}, s65 offset:{P_LN1 + 44*32} sc1')
        e(f'{l}:')
        e('s_mov_b64 exec, -1')

    def ln1_items(self):
        e = self.A.e
        lp, done = self.A.lab('ln1'), self.A.lab('ln1d')
        e(f's_mul_i32 s66, {sCLS}, 5120')
        e(f'{lp}:')
        e(f's_mul_i32 s67, s64, {SEGB}')
        e('s_add_u32 s67, s67, s66')
        for p in range(2):
            for cg in range(5):
                e(f'buffer_load_dwordx2 {v(16+10*p+2*cg,2)}, v2, {SRA}, s67 offen offset:{p*2560+cg*256}')
        e(f's_add_u32 s68, s67, {XN1}')
        for p in range(2):
            e(f's_waitcnt vmcnt({5 if p == 0 else 5})')
            if p == 1:
                e('s_waitcnt vmcnt(5)')
            self.unpack(40, 16 + 10 * p, 10)
            self.ln_pair(40, 60 + 10 * p, 8)
            for cg in range(5):
                e(f'buffer_store_dwordx2 {v(60+10*p+2*cg,2)}, v2, {WS}, s68 offen offset:{p*2560+cg*256} sc1')
        e('s_waitcnt vmcnt(0)')
        e(f's_add_u32 s68, s65, {P_LN1}')
        self.signal('v4', 's68', 1)
        e('s_cmp_ge_u32 s64, 20')
        e(f's_cbranch_scc1 {done}')
        e('s_add_u32 s64, s64, 44')
        e(f's_add_u32 s65, s65, {44*32}')
        e(f's_branch {lp}')
        e(f'{done}:')

    def xn_consts(self, vdma, vrd):
        e = self.A.e
        e('v_lshrrev_b32 v1, 3, v0')
        e('v_and_b32 v2, 7, v0')
        e('v_xor_b32 v2, v2, v1')
        e(f's_and_b32 s60, {sW}, 1')
        e('v_xor_b32 v2, s60, v2')
        e(f's_lshl_b32 s60, {sW}, 3')
        e('v_add_u32 v1, s60, v1')
        e('v_mul_u32_u24 v1, 1280, v1')
        e(f'v_lshl_add_u32 {v(vdma)}, v2, 4, v1')
        e('v_bfe_u32 v1, v0, 3, 2')
        e('v_and_b32 v2, 7, v0')
        e('v_mul_u32_u24 v3, 10240, v1')
        e('v_lshl_add_u32 v3, v2, 7, v3')
        e('v_and_b32 v1, 1, v1')
        e('v_xor_b32 v2, v2, v1')
        e('v_lshrrev_b32 v1, 5, v0')
        e('v_xor_b32 v2, v2, v1')
        for q in range(4):
            e(f'v_xor_b32 v1, {2*q}, v2')
            e(f'v_lshl_add_u32 {v(vrd+q)}, v1, 4, v3')

    def xn_dma(self, vdma, ssoff, ldsbase):
        e = self.A.e
        e(f's_mul_i32 s60, {sW}, 10240')
        e(f's_add_u32 m0, s60, {ldsbase}')
        for cb in range(10):
            if cb:
                e('s_add_u32 m0, m0, 896')
            e(f'buffer_load_dwordx4 {v(vdma)}, {WS}, {ssoff} offen offset:{cb*128} sc1 lds')

    def tile_out(self, acc, pk, vw, vr, vg, soff, imm, relu=False):
        e = self.A.e
        for j in range(8):
            e(f'v_cvt_pk_bf16_f32 {v(pk+j)}, {v(acc+2*j)}, {v(acc+2*j+1)}')
        for j in range(4):
            e(f'ds_write_b64 {v(vw)}, {v(pk+2*j,2)} offset:{16*j}')
        e('s_waitcnt lgkmcnt(0)')
        e(f'ds_read_b128 {v(pk+8,4)}, {v(vr)}')
        e(f'ds_read_b128 {v(pk+12,4)}, {v(vr)} offset:1280')
        e('s_waitcnt lgkmcnt(1)')
        e(f'buffer_store_dwordx4 {v(pk+8,4)}, {v(vg)}, {WS}, {soff} offen offset:{imm} sc1')
        e('s_waitcnt lgkmcnt(0)')
        e(f'buffer_store_dwordx4 {v(pk+12,4)}, {v(vg+1)}, {WS}, {soff} offen offset:{imm} sc1')

    def tile_out_consts(self, vw, vr, vg, ldsbase):
        e = self.A.e
        e(f's_mul_i32 s60, {sW}, 2560')
        e(f's_add_u32 s60, s60, {ldsbase}')
        e('v_and_b32 v1, 31, v0')
        e('v_mul_u32_u24 v1, 80, v1')
        e('v_lshrrev_b32 v2, 5, v0')
        e('v_lshl_add_u32 v1, v2, 3, v1')
        e(f'v_add_u32 {v(vw)}, s60, v1')
        e('v_lshrrev_b32 v1, 2, v0')
        e('v_and_b32 v2, 3, v0')
        e('v_mul_u32_u24 v3, 80, v1')
        e('v_lshl_add_u32 v3, v2, 4, v3')
        e(f'v_add_u32 {v(vr)}, s60, v3')
        e('v_mul_u32_u24 v3, 1280, v1')
        e(f'v_lshl_add_u32 {v(vg)}, v2, 4, v3')
        e(f'v_add_u32 {v(vg+1)}, 20480, {v(vg)}')

    def tr_lane(self, dst, rowmul_hf, pitch, extra_s=None):
        e = self.A.e
        e('v_lshrrev_b32 v1, 5, v0')
        e(f'v_mul_u32_u24 v1, {rowmul_hf}, v1')
        e('v_bfe_u32 v2, v0, 2, 2')
        e('v_add_u32 v1, v1, v2')
        e(f'v_mul_u32_u24 v1, {pitch}, v1')
        e('v_bfe_u32 v2, v0, 4, 1')
        e('v_lshl_add_u32 v1, v2, 5, v1')
        e('v_and_b32 v2, 3, v0')
        e(f'v_lshl_add_u32 {dst}, v2, 3, v1')
        if extra_s:
            e(f'v_add_u32 {dst}, {extra_s}, {dst}')

    def build(self):
        e = self.A.e
        e(f'{NAME}_kernel:')
        e('s_cmp_ge_u32 s2, 256')
        e('s_cbranch_scc1 L_end')
        e('s_load_dwordx16 s[16:31], s[0:1], 0')
        e('s_load_dwordx8 s[32:39], s[0:1], 64')
        e('s_load_dwordx2 s[40:41], s[0:1], 96')
        e(f's_getreg_b32 {sCLS}, hwreg(HW_REG_XCC_ID, 0, 3)')
        e('v_lshrrev_b32 v1, 6, v0')
        e('v_and_b32 v0, 63, v0')
        e(f'v_readfirstlane_b32 {sW}, v1')
        e(f's_mov_b32 {sSPIN}, 0x200000')
        e(f's_mov_b32 {sFAST}, 0')
        e('s_waitcnt lgkmcnt(0)')
        e('s_mov_b32 s8, s40')
        e('s_and_b32 s9, s41, 0xffff')
        e(f's_mov_b32 s10, {WS_BYTES:#x}')
        e('s_mov_b32 s11, 0x20000')
        e('s_mov_b32 s12, s38')
        e('s_and_b32 s13, s39, 0xffff')
        e('s_mov_b32 s14, 256')
        e('s_mov_b32 s15, 0x20000')
        e('v_mov_b32 v3, 0')
        e(f's_cmp_lg_u32 {sW}, 0')
        e('s_cbranch_scc1 L_tk')
        e(f's_lshl_b32 s60, {sCLS}, 5')
        e('v_mov_b32 v2, 1')
        e('s_mov_b64 exec, 1')
        e(f'buffer_atomic_add v2, off, {DBG}, s60 sc0')
        e('s_waitcnt vmcnt(0)')
        e('ds_write_b32 v3, v2')
        e('s_waitcnt lgkmcnt(0)')
        e('s_mov_b64 exec, -1')
        e('L_tk:')
        e('s_barrier')
        e('ds_read_b32 v2, v3')
        e('s_waitcnt lgkmcnt(0)')
        e(f'v_readfirstlane_b32 {sSLOT}, v2')
        e('s_barrier')
        e(f's_cmp_ge_u32 {sSLOT}, 32')
        e('s_cbranch_scc1 L_fail')
        if self.diag:
            e(f's_lshl_b32 s97, {sCLS}, 5')
            e(f's_add_u32 s97, s97, {sSLOT}')
            e('s_lshl_b32 s97, s97, 2')
            e(f's_add_u32 s97, s97, {sW}')
            e('s_lshl_b32 s97, s97, 13')
            e(f's_add_u32 s97, s97, {TS if self.roles == "all" else XP2}')
            self.stamp(0, real=True)
        e(f's_cmp_lt_u32 {sSLOT}, 12')
        e('s_cbranch_scc1 L_chain')
        e(f's_cmp_lt_u32 {sSLOT}, 21')
        e('s_cbranch_scc1 L_qkv')
        self.ln1_phase()
        self.rest_roles()
        e('L_fail:')
        e('v_mov_b32 v2, 1')
        e('s_mov_b64 exec, 1')
        e(f'buffer_atomic_add v2, off, {DBG}, 0 offset:4')
        e('s_waitcnt vmcnt(0)')
        e('L_end:')
        e('s_endpgm')
        if self.on('chain'):
            self.role_chain()
        else:
            e('L_chain:')
            self.arrive()
            e('s_endpgm')
        self.role_qkv()
        if self.opt['fake16']:
            import re
            out = []
            cnt = {}
            inattn = False
            for l in self.A.lines:
                if l.startswith('L_at_loop'):
                    inattn = True
                if l.startswith('L_r:'):
                    inattn = False
                m = re.match(r'v_mfma_f32_32x32x16_bf16 v\[(\d+):(\d+)\], (\S+), (\S+), (\S+)', l)
                if m and not inattn:
                    d = int(m.group(1))
                    if m.group(5) == '0':
                        cnt[d] = 0
                    k = cnt[d]
                    cnt[d] += 1
                    for h in range(2):
                        r = d + 4 * h + 8 * (k & 1)
                        c = '0' if k < 2 else v(r, 4)
                        out.append(f'v_mfma_f32_16x16x32_bf16 {v(r,4)}, {m.group(3)}, {m.group(4)}, {c}')
                else:
                    out.append(l)
            self.A.lines = out
        n = self.A.pad()
        head = open(os.path.join(os.path.dirname(os.path.abspath(__file__)), 'head.txt')).read()
        out = head + '; @launch grid=(256,1,1) block=(256,1,1) lds=163840\n'
        out += '.amdgcn_target "amdgcn-amd-amdhsa--gfx950"\n.text\n'
        out += f'.globl {NAME}_kernel\n.p2align 8\n.type {NAME}_kernel,@function\n'
        out += self.A.text()
        out += f'''.section .rodata,"a"
.p2align 6
.amdhsa_kernel {NAME}_kernel
  .amdhsa_next_free_vgpr 512
  .amdhsa_next_free_sgpr 102
  .amdhsa_accum_offset 256
  .amdhsa_group_segment_fixed_size 0
  .amdhsa_kernarg_size 104
  .amdhsa_user_sgpr_count 2
  .amdhsa_user_sgpr_kernarg_segment_ptr 1
  .amdhsa_system_sgpr_workgroup_id_x 1
.end_amdhsa_kernel
'''
        return out, n


if __name__ == '__main__':
    import argparse
    ap = argparse.ArgumentParser()
    ap.add_argument('-o', default='out.s')
    ap.add_argument('--L', type=int, default=6)
    ap.add_argument('--A', type=int, default=10)
    ap.add_argument('--roles', default='all')
    ap.add_argument('--diag', action='store_true')
    ap.add_argument('--slow', action='store_true')
    ap.add_argument('--nsteps', type=int, default=None)
    ap.add_argument('--opt', default='')
    args = ap.parse_args()
    opt = {k: int(x) for k, x in (kv.split('=') for kv in args.opt.split(',') if kv)}
    g = Gen(opt=opt, L=args.L, A=args.A, roles=args.roles, diag=args.diag, nsteps=args.nsteps, force_slow=args.slow)
    txt, n = g.build()
    open(args.o, 'w').write(txt)
    print('wrote', args.o, len(txt), 'bytes; nop states inserted:', n)
```

```python
from common import *


class ChainMixin:
    def role_chain(self):
        e = self.A.e
        A = self.A
        L = self.L
        RQ = self.opt['rq']
        e('L_chain:')
        sHH, sP, sTILE, sS = 's64', 's65', 's66', 's67'
        sAGr, sAGw = 's68', 's69'
        sSw, sSa, sSb = 's71', 's73', 's74'
        sOw, sOr, sCw = 's75', 's77', 's78'
        sN1, sN2, sQ1, sQ2, sPF, sPCH = 's82', 's83', 's84', 's85', 's86', 's87'
        mL2, mINV, mT, mU = 's[88:89]', 's[90:91]', 's[92:93]', 's[94:95]'
        sHEAD = 's96'
        sK1, sK2 = 's42', 's43'
        sCR = ['s%d' % i for i in range(48, 55)]
        cAG, cAG4, cSw, cSa, cSb, cOw, cOr, cOr4, cCw, cAGw = 's55', 's56', 's57', 's58', 's59', 's70', 's72', 's76', 's79', 's80'
        sW5, sW6, sQW, sW10 = 's81', 's61', 's62', 's63'
        nAGw, cK1, cK2, rO, rS, rAG, xV0, xV1, xK = 's16', 's17', 's18', 's19', 's20', 's21', 's22', 's23', 's24'
        e(f's_mul_i32 {sHH}, {sSLOT}, 11')
        e(f's_lshr_b32 {sHH}, {sHH}, 5')
        e(f's_mul_i32 s60, {sHH}, 3')
        e(f's_sub_u32 {sP}, {sSLOT}, s60')
        e(f's_lshl_b32 {sTILE}, {sSLOT}, 2')
        e(f's_add_u32 {sTILE}, {sTILE}, {sW}')
        e(f's_lshl_b32 {sHEAD}, {sCLS}, 2')
        e(f's_add_u32 {sHEAD}, {sHEAD}, {sHH}')
        vVM, vL16, vTW, vGA, vGO, vFL, vK, SEL, vV, vKM = 1, 2, 3, 4, 5, 6, 7, 8, 12, 13
        e(f'v_lshlrev_b32 {v(vL16)}, 4, v0')
        e('v_and_b32 v16, 15, v0')
        e('v_lshrrev_b32 v17, 4, v0')
        e('v_lshlrev_b32 v18, 5, v16')
        e(f'v_lshl_add_u32 {v(vTW)}, v17, 3, v18')
        e('v_lshrrev_b32 v19, 1, v17')
        e('v_and_b32 v20, 1, v17')
        e('v_lshl_add_u32 v18, v19, 9, v18')
        e('v_lshl_add_u32 v18, v20, 4, v18')
        e(f's_mul_i32 s60, {sW}, 5120')
        e(f'v_add_u32 {v(vGA)}, s60, v18')
        e(f's_mul_i32 s60, {sW}, 6144')
        e(f'v_add_u32 {v(vGO)}, s60, v18')
        XB_ = self.opt['xb']
        if XB_:
            e(f's_mov_b32 {sAGr}, {AGG}')
        else:
            e(f's_mul_i32 s60, {sCLS}, {AG_C}')
            e(f's_add_u32 {sAGr}, s60, {CH_AG}')
        e(f's_lshl_b32 s61, {sTILE}, 9')
        e(f's_add_u32 {sAGw}, {sAGr}, s61')
        e(f's_mul_i32 s60, {sCLS}, {S_C}')
        e(f's_add_u32 s60, s60, {CH_S}')
        e(f's_lshl_b32 s61, {sW}, 10')
        e('s_add_u32 s60, s60, s61')
        e(f's_mul_i32 s61, {sSLOT}, 3072')
        e(f's_add_u32 {sSw}, s60, s61')
        e(f's_add_u32 s61, {sP}, 1')
        e('s_cmp_eq_u32 s61, 3')
        e('s_cselect_b32 s61, 0, s61')
        e(f's_mul_i32 s62, {sHH}, 3')
        e('s_add_u32 s63, s62, s61')
        e('s_mul_i32 s63, s63, 3072')
        e(f's_add_u32 {sSa}, s60, s63')
        e('s_add_u32 s61, s61, 1')
        e('s_cmp_eq_u32 s61, 3')
        e('s_cselect_b32 s61, 0, s61')
        e('s_add_u32 s63, s62, s61')
        e('s_mul_i32 s63, s63, 3072')
        e(f's_add_u32 {sSb}, s60, s63')
        e(f's_mul_i32 s60, {sCLS}, {O_C}')
        e(f's_add_u32 {sOr}, s60, {CH_O}')
        e(f's_lshl_b32 s61, {sTILE}, 9')
        e(f's_add_u32 {sOw}, {sOr}, s61')
        e(f's_lshl_b32 s60, {sTILE}, 12')
        e(f's_lshl_b32 s61, {sCLS}, 9')
        e('s_add_u32 s60, s60, s61')
        e(f's_add_u32 {sCw}, s60, {CH_CR}')
        e(f's_lshl_b32 s60, {sCLS}, 8')
        e(f's_lshl_b32 s61, {sTILE}, 2')
        e('s_add_u32 s60, s60, s61')
        e(f's_add_u32 {sPCH}, s60, {P_CH}')
        SENT = 24
        for r in range(4):
            e(f'v_mov_b32 v{SENT+r}, -1')
        e('v_mov_b32 v28, 0')
        e('s_mov_b64 exec, 1')
        e(f'buffer_store_dword v28, off, {WS}, {sPCH} sc1')
        e('s_mov_b64 exec, -1')
        for sl in range(2):
            e(f's_add_u32 s60, {sOw}, {sl*O_S}')
            e(f'buffer_store_dwordx2 {v(SENT,2)}, {v(vTW)}, {WS}, s60 offen sc1')
        l3 = A.lab('i3')
        e(f's_cmp_eq_u32 {sW}, 3')
        e(f's_cbranch_scc1 {l3}')
        for sl in range(2):
            e(f's_add_u32 s60, {sSw}, {sl*S_S}')
            e(f'buffer_store_dwordx4 {v(SENT,4)}, {v(vL16)}, {WS}, s60 offen sc1')
        e(f'{l3}:')
        l4 = A.lab('i4')
        e(f's_cmp_ge_u32 {sTILE}, 40')
        e(f's_cbranch_scc1 {l4}')
        for sl in range(2):
            e(f's_add_u32 s60, {sCw}, {sl*CR_S}')
            e(f'buffer_store_dwordx2 {v(SENT,2)}, {v(vTW)}, {WS}, s60 offen sc1')
            e(f's_add_u32 s60, {sAGw}, {(sl+1)*AG_S}')
            e(f'buffer_store_dwordx2 {v(SENT,2)}, {v(vTW)}, {WS}, s60 offen sc1')
        e(f'{l4}:')
        self.arrive()
        self.srd(SRA, 'wq')
        self.srd(SRB, 'wk')
        self.srd(SRC, 'wv')
        self.srd(SRD, 'wo')
        e('v_lshrrev_b32 v21, 3, v0')
        e('v_and_b32 v22, 7, v0')
        e(f's_mul_i32 s60, {sW}, 40')
        e('v_add_u32 v23, s60, v21')
        e('s_mov_b32 s61, 12288')
        e('v_mul_lo_u32 v30, s61, v23')
        e('v_lshl_add_u32 v30, v22, 4, v30')
        e(f's_mul_i32 s60, {sHEAD}, 384')
        e(f's_lshl_b32 s61, {sP}, 7')
        e('s_add_u32 s60, s60, s61')
        e('v_add_u32 v30, s60, v30')

        def unit(cn):
            buf = 102400 * (cn & 1)
            for m, srd in enumerate((SRA, SRB, SRC)):
                e(f's_mul_i32 s60, {sW}, 5120')
                e(f's_add_u32 m0, s60, {buf + 20480 * m}')
                e(f's_mov_b32 s61, {cn * 160 * 12288}')
                self.dma(5, 'v30', srd, 's61', 8 * 12288)
        unit(0)
        unit(1)
        self.stamp(2, real=True)
        e(f's_min_u32 s61, {sSLOT}, 9')
        e('s_lshl_b32 s61, s61, 7')
        e(f's_mul_i32 s60, {sCLS}, {768*1280}')
        e('s_add_u32 s60, s60, s61')
        e(f's_mul_i32 s61, {sW}, 192')
        e('v_add_u32 v23, s61, v21')
        e('v_mul_u32_u24 v31, 1280, v23')
        e('v_lshl_add_u32 v31, v22, 4, v31')
        e('v_add_u32 v31, s60, v31')
        e('v_bfe_u32 v21, v0, 2, 2')
        e('v_lshl_add_u32 v21, v17, 3, v21')
        e('v_lshlrev_b32 v21, 7, v21')
        e('v_bfe_u32 v22, v0, 1, 1')
        e('v_lshl_add_u32 v33, v22, 5, v21')
        e('v_and_b32 v22, 1, v0')
        e('v_lshl_add_u32 v33, v22, 3, v33')
        e(f's_lshr_b32 s60, {sW}, 1')
        e('s_lshl_b32 s60, s60, 6')
        e(f's_and_b32 s61, {sW}, 1')
        e('s_lshl_b32 s61, s61, 4')
        e('s_add_u32 s60, s60, s61')
        e('v_add_u32 v33, s60, v33')
        e('v_and_b32 v22, 3, v0')
        e('v_lshl_add_u32 v34, v22, 3, v21')
        e(f's_lshl_b32 s60, {sW}, 5')
        e('v_add_u32 v34, s60, v34')
        e('v_add_u32 v32, 102400, v33')
        e('v_add_u32 v35, 102400, v34')

        def Wo(k, n=4, u=0):
            r = 4 * k + 2 * u
            return a(240 + r, n) if r < 16 else v(176 + r - 16, n)

        def take(cn, n_left):
            e(f's_waitcnt vmcnt({n_left})')
            e('s_barrier')
            done = A.lab('tk')
            for w in range(4):
                nx = A.lab('tw')
                if w < 3:
                    e(f's_cmp_lg_u32 {sW}, {w}')
                    e(f's_cbranch_scc1 {nx}')
                gj = (cn - w) & 3
                for m in range(3):
                    ad = (('v33', 'v33', 'v34'), ('v32', 'v32', 'v35'))[cn & 1][m]
                    for j in range(5):
                        for u in range(2):
                            e(f'ds_read_b64_tr_b16 {a(80*m + 4*(5*gj+j) + 2*u, 2)}, {ad} offset:{20480*m + j*4096 + u*512}')
                if w < 3:
                    e(f's_branch {done}')
                    e(f'{nx}:')
            e(f'{done}:')
            e('s_waitcnt lgkmcnt(0)')
            e('s_barrier')

        def take_wo():
            e('s_waitcnt vmcnt(0)')
            e('s_barrier')
            for gj in range(4):
                e(f's_add_u32 s60, {sW}, {gj}')
                e('s_and_b32 s60, s60, 3')
                e('s_mul_i32 s60, s60, 24576')
                e('v_add_u32 v35, s60, v34')
                for j in range(6):
                    for u in range(2):
                        e(f'ds_read_b64_tr_b16 {Wo(6*gj+j, 2, u)}, v35 offset:{j*4096+u*512}')
            e('s_waitcnt lgkmcnt(0)')
            e('s_barrier')
        e('v_lshrrev_b32 v21, 3, v16')
        e('v_lshlrev_b32 v21, 4, v21')
        e('v_bfe_u32 v22, v16, 2, 1')
        e('v_lshl_add_u32 v21, v22, 2, v21')
        e('v_and_b32 v22, 3, v16')
        e('v_add_u32 v21, v21, v22')
        e(f's_and_b32 s60, {sW}, 1')
        e('s_lshl_b32 s60, s60, 3')
        e('v_add_u32 v21, s60, v21')
        e('v_lshl_add_u32 v21, v20, 5, v21')
        e('v_lshlrev_b32 v21, 4, v21')
        e('v_lshl_add_u32 v21, v19, 10, v21')
        e(f's_mul_i32 s60, {sHEAD}, {QKV_HEAD}')
        e(f's_lshl_b32 s61, {sP}, 12')
        e('s_add_u32 s60, s60, s61')
        e('s_add_u32 s61, s60, 12288')
        e(f'v_add_u32 {v(vK)}, s61, v21')
        e(f's_and_b32 s62, {sW}, 1')
        e('s_lshl_b32 s62, s62, 4')
        e('v_add_u32 v21, s62, v16')
        e('v_lshl_add_u32 v22, v20, 5, v21')
        e('v_lshlrev_b32 v22, 4, v22')
        e('v_lshl_add_u32 v22, v19, 10, v22')
        e(f's_lshr_b32 s63, {sW}, 1')
        e('s_lshl_b32 s61, s63, 11')
        e('s_add_u32 s61, s61, s60')
        e('s_add_u32 s61, s61, 24576')
        e(f'v_add_u32 {v(vV)}, s61, v22')
        l2off = KL2
        e('v_lshlrev_b32 v21, 3, v21')
        e('v_lshl_add_u32 v21, v20, 8, v21')
        e(f's_mov_b32 s61, {l2off}')
        e('v_mul_lo_u32 v22, s61, v19')
        e('v_add_u32 v21, v21, v22')
        e(f's_mul_i32 s60, {sHEAD}, {KM_HEAD}')
        e(f's_lshl_b32 s62, {sP}, 10')
        e('s_add_u32 s60, s60, s62')
        e(f's_add_u32 s60, s60, {KMVM}')
        e('s_lshl_b32 s62, s63, 9')
        e('s_add_u32 s62, s62, s60')
        e('s_add_u32 s62, s62, 3072')
        e(f'v_add_u32 {v(vVM)}, s62, v21')
        e('v_lshrrev_b32 v21, 3, v16')
        e('v_mul_lo_u32 v21, s61, v21')
        e('v_and_b32 v22, 7, v16')
        e('v_lshl_add_u32 v21, v22, 4, v21')
        e('v_lshl_add_u32 v21, v17, 7, v21')
        e(f'v_add_u32 {v(vKM)}, s60, v21')
        e(f's_mul_i32 s60, {sHH}, 9')
        e(f's_add_u32 s60, s60, {sP}')
        e('s_add_u32 s60, s60, 3')
        e('v_and_b32 v21, 1, v0')
        e('v_mul_u32_u24 v21, 3, v21')
        e('v_add_u32 v21, s60, v21')
        e(f'v_lshlrev_b32 {v(vFL)}, 2, v21')
        e(f's_lshl_b32 s60, {sCLS}, 8')
        e(f's_add_u32 {sPF}, s60, {P_QKV}')
        e('s_mov_b32 s88, 0xff00ff00')
        e('s_mov_b32 s89, 0xff00ff00')
        e('s_mov_b32 s90, 0xff00ff00')
        e('s_mov_b32 s91, 0x00ff00ff')
        e('v_lshrrev_b32 v21, 2, v16')
        e('v_and_b32 v22, 3, v16')
        e('v_cmp_ne_u32 vcc, v21, v17')
        e('v_cndmask_b32 v22, v22, 15, vcc')
        e('v_mov_b32 v21, 0x3f80')
        e('v_mov_b32 v23, 0x3f800000')
        for d in range(2):
            e(f'v_cmp_eq_u32 vcc, {2*d}, v22')
            e(f'v_cndmask_b32 {v(SEL+d)}, 0, v21, vcc')
            e(f'v_cmp_eq_u32 vcc, {2*d+1}, v22')
            e(f'v_cndmask_b32 {v(SEL+d)}, {v(SEL+d)}, v23, vcc')
            e(f'v_mov_b32 {v(SEL+2+d)}, {v(SEL+d)}')
        take(0, 15)
        unit(2)
        self.stamp(3, real=True)
        take(1, 15)
        unit(3)
        self.stamp(4, real=True)
        take(2, 15)
        e(f's_mul_i32 s60, {sW}, 24576')
        e('s_mov_b32 m0, s60')
        e('s_mov_b32 s61, 0')
        self.dma(24, 'v31', SRD, 's61', 8 * 1280)
        self.stamp(5, real=True)
        take(3, 24)
        QA, KA, VA_, VMP = 16, 20, 24, 28
        KX, VX, QF, KF, G, MEM = 32, 48, 56, 64, 72, 96
        ONESQ = G + 20
        QX, KXL, SL, OL = 45056, 47104, 49152, 20480
        e('v_mov_b32 v58, 0')
        e('v_mov_b32 v59, 0')
        self.srd(SRA, 'mem0')
        for i in range(7):
            e(f's_add_u32 s60, {sCLS}, {i+1}')
            e('s_and_b32 s60, s60, 7')
            e('s_lshl_b32 s60, s60, 9')
            e(f's_lshl_b32 {sCR[i]}, {sTILE}, 12')
            e(f's_add_u32 {sCR[i]}, {sCR[i]}, s60')
            e(f's_add_u32 {sCR[i]}, {sCR[i]}, {CH_CR}')
        e(f's_mul_i32 s32, {sTILE}, 52')
        e('s_lshr_b32 s32, s32, 8')
        e(f's_cmp_eq_u32 s32, {sCLS}')
        e('s_cselect_b32 s32, 1, 0')
        for g in range(3):
            e(f's_add_u32 s60, {sW}, {g+1}')
            e('s_and_b32 s60, s60, 3')
            e(f's_mul_i32 s{33+g}, s60, 5120')
            e(f's_mul_i32 s{36+g}, s60, 6144')
        e(f's_mul_i32 s27, {sCLS}, 12')
        e(f's_add_u32 s27, s27, {sSLOT}')
        e('s_lshl_b32 s27, s27, 10')
        e(f's_add_u32 s27, s27, {SCRATCH}')
        e(f's_mul_i32 {sW5}, {sW}, 5120')
        e(f's_mul_i32 {sW6}, {sW}, 6144')
        e(f's_lshl_b32 {sW10}, {sW}, 10')
        e(f's_lshr_b32 {sQW}, {sW}, 1')
        e(f's_lshl_b32 {sQW}, {sQW}, 10')
        e(f's_and_b32 s60, {sW}, 1')
        e('s_lshl_b32 s60, s60, 3')
        e(f's_add_u32 {sQW}, {sQW}, s60')
        take_wo()
        self.stamp(6, real=True)
        self.wait_init('v21', 'v22', 's92')
        self.stamp(1, real=True)
        self.dbgtime(3)
        self.flush()
        e(f's_mov_b32 {sS}, 0')
        e(f's_mov_b32 {sK1}, 0')
        e(f's_mov_b32 {sK2}, 0')
        e(f's_cmp_eq_u32 {sFAST}, 0')
        e('s_cbranch_scc1 L_ch_init_s')

        def maxtree(dst, first, n):
            e(f'v_max3_u32 {dst}, {v(first)}, {v(first+1)}, {v(first+2)}')
            k = 3
            while k < n:
                if k + 1 < n:
                    e(f'v_max3_u32 {dst}, {dst}, {v(first+k)}, {v(first+k+1)}')
                    k += 2
                else:
                    e(f'v_max_u32 {dst}, {dst}, {v(first+k)}')
                    k += 1

        def maxtree2(d0, d1, first, n):
            h = n // 2
            maxtree(d0, first, h)
            maxtree(d1, first + h, n - h)
            e(f'v_max_u32 {d0}, {d0}, {d1}')

        def flagload():
            e(f'buffer_load_dword v58, {v(vFL)}, {WS}, {sPF} offen sc1')
            e(f'buffer_load_dword v59, {v(vFL)}, {WS}, {sPF} offen offset:2048 sc1')

        def flagtake():
            e(f'v_readlane_b32 {sK1}, v58, 0')
            e('v_readlane_b32 s92, v58, 1')
            e(f'v_readlane_b32 {sK2}, v59, 0')
            e('v_readlane_b32 s93, v59, 1')
            e(f's_min_u32 {sK1}, {sK1}, s92')
            e(f's_min_u32 {sK2}, {sK2}, s93')

        def Wo(k, n=4):
            r = 4 * k
            return a(240 + r, n) if r < 16 else v(176 + r - 16, n)

        def loop(md):
            X_ = '' if md == 'f' else ' sc1'
            tails = []

            def gather(tag, n, vsrc, s0, s4, vlds, ldsoff, young=None, ny=0, G=G, after=None):
                def ld(i):
                    so, im = (s0, 1024 * i) if i < 4 else (s4, 1024 * (i - 4))
                    e(f'buffer_load_dwordx4 {v(G+4*i,4)}, {v(vsrc)}, {WS}, {so} offen offset:{im} sc1')

                def chk(i):
                    e(f'v_max3_u32 v30, {v(G+4*i)}, {v(G+4*i+1)}, {v(G+4*i+2)}')
                    e(f'v_max_u32 v30, v30, {v(G+4*i+3)}')
                    e('v_cmp_eq_u32 vcc, -1, v30')
                for i in range(n):
                    ld(i)
                if young:
                    young()
                for i in range(n):
                    e(f's_waitcnt vmcnt({n-1-i+ny})')
                    e(f'L_{tag}c{i}_{md}:')
                    chk(i)
                    e(f's_cbranch_vccnz L_{tag}r{i}_{md}')
                    e(f'L_{tag}p{i}_{md}:')
                    e(f'ds_write_b128 {vlds}, {v(G+4*i,4)} offset:{ldsoff+1024*i}')
                    if after:
                        after(i)

                def tail():
                    for i in range(n):
                        e(f'L_{tag}r{i}_{md}:')
                        for j in range(i, n):
                            ld(j)
                        if self.opt['lean']:
                            e(f's_waitcnt vmcnt({n-1-i})')
                            e(f'L_{tag}l{i}_{md}:')
                            chk(i)
                            e(f's_cbranch_vccz L_{tag}p{i}_{md}')
                            ld(i)
                            e(f's_sub_u32 {sSPIN}, {sSPIN}, 1')
                            e('s_cbranch_scc1 L_fail')
                            e('s_waitcnt vmcnt(0)')
                            e(f's_branch L_{tag}l{i}_{md}')
                        else:
                            e(f's_sub_u32 {sSPIN}, {sSPIN}, 1')
                            e('s_cbranch_scc1 L_fail')
                            e(f's_waitcnt vmcnt({n-1-i})')
                            e(f's_branch L_{tag}c{i}_{md}')
                tails.append(tail)

            def nextkv_steps():
                yield lambda: (e(f's_add_u32 s92, {sS}, 1'), e(f's_and_b32 s60, {sS}, {RQ-1}'))
                yield lambda: (e(f's_mul_i32 {sQ1}, s60, {QKV_SEG}'), e(f's_add_u32 {sQ1}, {sQ1}, {QKV}'))
                yield lambda: (e(f's_cmp_lt_u32 {sS}, 64'), e(f's_cselect_b32 {sN1}, s92, 0'),
                               e(f's_cselect_b32 {sQ1}, {sQ1}, s10'))
                yield lambda: (e(f's_sub_u32 s60, {sS}, {L}'), e(f's_and_b32 s60, s60, {RQ-1}'))
                yield lambda: (e(f's_mul_i32 {sQ2}, s60, {QKV_SEG}'), e(f's_add_u32 {sQ2}, {sQ2}, {QKV + QL2}'))
                yield lambda: (e(f's_sub_u32 s92, s92, {L}'), e(f's_cmp_ge_u32 {sS}, {L}'))
                yield lambda: (e(f's_cselect_b32 {sN2}, s92, 0'), e(f's_cselect_b32 {sQ2}, {sQ2}, s10'))
                yield lambda: (e(f's_cmp_ge_u32 {sS}, {64 + L}'), e(f's_cselect_b32 {sN2}, 0, {sN2}'),
                               e(f's_cselect_b32 {sQ2}, s10, {sQ2}'))

            def ready():
                e(f's_cmp_gt_u32 {sN1}, {sK1}')
                e('s_cselect_b32 s30, 1, 0')
                e(f's_cmp_gt_u32 {sN2}, {sK2}')
                e('s_cselect_b32 s30, 1, s30')

            kvl = [f'buffer_load_dwordx4 {v(KX,4)}, {v(vK)}, {WS}, {sQ1} offen sc1',
                   f'buffer_load_dwordx4 {v(KX+4,4)}, {v(vK)}, {WS}, {sQ1} offen offset:2048 sc1',
                   f'buffer_load_dwordx4 {v(KX+8,4)}, {v(vK)}, {WS}, {sQ2} offen sc1',
                   f'buffer_load_dwordx4 {v(KX+12,4)}, {v(vK)}, {WS}, {sQ2} offen offset:2048 sc1',
                   f'buffer_load_dwordx4 {v(VX,4)}, {v(vV)}, {WS}, {sQ1} offen sc1',
                   f'buffer_load_dwordx4 {v(VX+4,4)}, {v(vV)}, {WS}, {sQ2} offen sc1']

            def scalars():
                e(f's_and_b32 s60, {sS}, 3')
                e(f's_mul_i32 s92, {sS if XB_ else "s60"}, {AG_S}')
                e(f's_add_u32 {cAG}, s92, {sAGr}')
                e(f's_add_u32 {cAG4}, {cAG}, 4096')
                e(f's_mul_i32 s92, s60, {S_S}')
                e(f's_add_u32 {cSw}, s92, {sSw}')
                e(f's_add_u32 {cSa}, s92, {sSa}')
                e(f's_add_u32 {cSb}, s92, {sSb}')
                e(f's_mul_i32 s92, s60, {O_S}')
                e(f's_add_u32 {cOw}, s92, {sOw}')
                e(f's_add_u32 {cOr}, s92, {sOr}')
                e(f's_add_u32 {cOr4}, {cOr}, 4096')
                e('s_xor_b32 s60, s60, 2')
                e(f's_mul_i32 s92, s60, {O_S}')
                e(f's_add_u32 {rO}, s92, {sOw}')
                e(f's_mul_i32 s92, s60, {S_S}')
                e(f's_add_u32 {rS}, s92, {sSw}')
                e(f's_cmp_eq_u32 {sW}, 3')
                e(f's_cselect_b32 {rS}, s27, {rS}')
                e(f's_and_b32 s60, {sS}, {self.opt["crring"]-1}')
                e(f's_mul_i32 {cCw}, s60, {CR_S}')
                e(f's_add_u32 s92, {sS}, 1')
                e('s_and_b32 s93, s92, 3')
                e(f's_mul_i32 s94, {"s92" if XB_ else "s93"}, {AG_S}')
                e(f's_add_u32 {nAGw}, s94, {sAGw}')
                e('s_xor_b32 s93, s93, 2')
                e(f's_mul_i32 s94, s93, {AG_S}')
                e(f's_add_u32 {rAG}, s94, {sAGw}')
                e(f's_cmp_lt_u32 {sS}, 64')
                e(f's_cselect_b32 {xV0}, -1, 0')
                e(f's_cselect_b32 {xK}, 0x00ff00ff, 0')
                e(f's_cmp_ge_u32 {sS}, {L}')
                e(f's_cselect_b32 {xV1}, -1, 0')
                e('s_cselect_b32 s92, 0xff00ff00, 0')
                e(f's_or_b32 {xK}, {xK}, s92')
                e(f's_mov_b32 s25, {xK}')
                e(f's_and_b32 s60, {sS}, {RQ-1}')
                e(f's_mul_i32 {cK1}, s60, {KM_SEG}')
                e(f's_sub_u32 s60, {sS}, {L}')
                e(f's_and_b32 s60, s60, {RQ-1}')
                e(f's_mul_i32 {cK2}, s60, {KM_SEG}')
                e(f's_cmp_eq_u32 {sS}, 0')
                e('s_cselect_b32 s26, 1, 0')
                e(f's_cmp_eq_u32 {sS}, {L}')
                e('s_cselect_b32 s26, 1, s26')
                e(f'v_add_u32 v29, {sW5}, {v(vL16)}')

            e(f'L_ch_init_{md}:')
            for x in nextkv_steps():
                x()
            e('s_mov_b32 s30, 1')
            e('s_mov_b32 s31, 16')
            scalars()
            e(f'L_ch_step_{md}:')
            e('s_cmp_lg_u32 s26, 0')
            e(f's_cbranch_scc1 L_ch_sp_{md}')
            if self.opt['agdelay']:
                e(f's_sleep {self.opt["agdelay"]}')

            def qk(k):
                e(f'v_mfma_f32_16x16x32_bf16 {v(QA,4)}, {a(4*k,4)}, {v(MEM+4*k,4)}, {"0" if k==0 else v(QA,4)}')
                e(f'v_mfma_f32_16x16x32_bf16 {v(KA,4)}, {a(80+4*k,4)}, {v(MEM+4*k,4)}, {"0" if k==0 else v(KA,4)}')

            def agyoung():
                flagtake()
                ready()
                for g in range(3):
                    e(f'v_add_u32 {v(G+g)}, s{33+g}, {v(vL16)}')
            NPRE = self.opt['npre']
            gather('ag', 5, vGA, cAG, cAG4, 'v29', 0, agyoung, 0, MEM, lambda i: qk(i) if i < NPRE else None)
            e(f'L_ch_ag_{md}:')

            def special():
                e(f'L_ch_sp_{md}:')
                e('v_and_b32 v28, 7, v0')
                e('v_mul_u32_u24 v28, 1280, v28')
                e('v_lshrrev_b32 v30, 4, v0')
                e('v_lshl_add_u32 v28, v30, 4, v28')
                e(f's_mul_i32 s60, {sW}, 320')
                e('v_add_u32 v28, s60, v28')
                for i in range(5):
                    e(f'buffer_load_dwordx4 {v(G+4*i,4)}, v28, {SRA}, 0 offen offset:{64*i}')
                e(f's_mov_b64 {mT}, -1')
                e(f's_cmp_eq_u32 {sS}, 0')
                e(f's_cbranch_scc1 L_ch_sq_{md}')
                e(f's_mov_b64 {mT}, {mL2}')
                e(f'L_ch_sr_{md}:')
                for i in range(5):
                    so, im = (cAG, 1024 * i) if i < 4 else (cAG4, 0)
                    e(f'buffer_load_dwordx4 {v(MEM+4*i,4)}, {v(vGA)}, {WS}, {so} offen offset:{im} sc1')
                e('s_waitcnt vmcnt(0)')
                maxtree2('v28', 'v30', MEM, 20)
                e('v_cmp_eq_u32 vcc, -1, v28')
                e(f's_cbranch_vccz L_ch_sq_{md}')
                self.spin(f'L_ch_sr_{md}')
                e(f'L_ch_sq_{md}:')
                e('s_waitcnt vmcnt(0)')
                for i in range(20):
                    e(f'v_cndmask_b32 {v(MEM+i)}, {v(MEM+i)}, {v(G+i)}, {mT}')
                for i in range(5):
                    e(f'ds_write_b128 v29, {v(MEM+4*i,4)} offset:{1024*i}')
                agyoung()
                for i in range(NPRE):
                    qk(i)
                e(f's_branch L_ch_ag_{md}')
                e(f'L_ch_fl_{md}:')
                flagload()
                e('s_waitcnt vmcnt(0)')
                flagtake()
                ready()
                e('s_cmp_eq_u32 s30, 0')
                e(f's_cbranch_scc1 L_ch_fc_{md}')
                self.spin(f'L_ch_fl_{md}', 2)
            tails.append(special)
            self.stamp(7)
            self.note(11, sSPIN)
            self.flush()
            self.stamp(0)
            self.stamp(15, real=True)
            e('s_waitcnt lgkmcnt(0)')
            e('s_barrier')
            PF = 8

            def mrd(k):
                e(f'ds_read_b128 {v(MEM+4*k,4)}, {v(G + k//5 - 1)} offset:{1024*(k%5)}')
            for k in range(5, 5 + PF):
                mrd(k)
            e(f's_mov_b32 {cAGw}, {nAGw}')
            e('s_cmp_lg_u32 s30, 0')
            e(f's_cbranch_scc1 L_ch_fl_{md}')
            e(f'L_ch_fc_{md}:')
            kq = list(kvl)
            for k in range(NPRE, 5):
                qk(k)
                for _ in range(2):
                    if len(kq) > 2:
                        e(kq.pop(0))
            for k in range(5, 20):
                if k + PF < 20:
                    mrd(k + PF)
                e(f's_waitcnt lgkmcnt({min(PF, 19-k)})')
                qk(k)
                if kq and (len(kq) > 2 or k >= self.opt['vat']):
                    e(kq.pop(0))
                if 13 <= k < 17:
                    e(f'v_mov_b32 {v(ONESQ+k-13)}, 0x3f803f80')
                if k == 17:
                    e(f'v_add_u32 v30, {sQW}, {v(vL16)}')
                if k == 18:
                    e(f'v_add_u32 v31, {sW10}, {v(vL16)}')
            vk = [0]

            def vm(n):
                for _ in range(n):
                    k = vk[0]
                    if k < 20:
                        e(f'v_mfma_f32_16x16x32_bf16 {v(VA_,4)}, {v(MEM+4*k,4)}, {a(160+4*k,4)}, {"0" if k==0 else v(VA_,4)}')
                        vk[0] += 1
            vm(1)
            e(f'v_cvt_pk_bf16_f32 {v(G)}, {v(QA)}, {v(QA+1)}')
            e(f'v_cvt_pk_bf16_f32 {v(G+1)}, {v(QA+2)}, {v(QA+3)}')
            e(f'ds_write_b64 v30, {v(G,2)} offset:{QX}')
            e(f'v_cvt_pk_bf16_f32 {v(G+2)}, {v(KA)}, {v(KA+1)}')
            e(f'v_cvt_pk_bf16_f32 {v(G+3)}, {v(KA+2)}, {v(KA+3)}')
            e(f'ds_write_b64 v30, {v(G+2,2)} offset:{KXL}')
            vm(3)
            e('s_waitcnt lgkmcnt(0)')
            e('s_barrier')
            self.stamp(1)
            S4 = G + 4
            e(f'ds_read_b128 {v(QF,4)}, {v(vL16)} offset:{QX}')
            e(f'ds_read_b128 {v(QF+4,4)}, {v(vL16)} offset:{QX+1024}')
            e(f'ds_read_b128 {v(KF,4)}, {v(vL16)} offset:{KXL}')
            e(f'ds_read_b128 {v(KF+4,4)}, {v(vL16)} offset:{KXL+1024}')
            vm(4)
            save = vk[0]
            R0, R1 = MEM + 16, MEM
            lw2, lw3, lwe = A.lab('w2'), A.lab('w3'), A.lab('we')

            def ld2(r):
                e(f'buffer_load_dwordx4 {v(r,4)}, {v(vL16)}, {WS}, {cSa} offen sc1')
                e(f'buffer_load_dwordx4 {v(r+4,4)}, {v(vL16)}, {WS}, {cSb} offen sc1')

            def exchange(mm):
                lsp, lso = A.lab('sp'), A.lab('so')
                e(f'buffer_store_dwordx4 {v(S4,4)}, {v(vL16)}, {WS}, {cSw} offen{X_}')
                self.xstamp(8)
                vm(self.opt['sv1'])
                ld2(R1)
                vm(20)
                if mm:
                    e('v_mov_b32 v28, 0xff800000')
                    for i in range(4):
                        e(f'v_cndmask_b32 {v(S4+4+i)}, {v(S4+i)}, v28, {mINV}')
                own = S4 + 4 if mm else S4
                ld2(R0)

                def add(r):
                    e(f'v_pk_add_f32 {v(r+8,2)}, {v(r,2)}, {v(r+4,2)}')
                    e(f'v_pk_add_f32 {v(r+10,2)}, {v(r+2,2)}, {v(r+6,2)}')
                    e(f'v_cmp_u_f32 vcc, {v(r+8)}, {v(r+9)}')
                    e(f'v_cmp_u_f32 {mT}, {v(r+10)}, {v(r+11)}')
                    e(f'v_pk_add_f32 {v(QA,2)}, {v(own,2)}, {v(r+8,2)}')
                    e(f'v_pk_add_f32 {v(QA+2,2)}, {v(own+2,2)}, {v(r+10,2)}')
                    e(f's_or_b64 vcc, vcc, {mT}')
                e(f'v_cvt_pk_bf16_f32 {v(VMP)}, {v(VA_)}, {v(VA_+1)}')
                e(f'v_cvt_pk_bf16_f32 {v(VMP+1)}, {v(VA_+2)}, {v(VA_+3)}')
                e('s_waitcnt vmcnt(2)')
                self.xstamp(9)
                add(R1)
                e(f's_cbranch_vccnz {lsp}')
                e(f'{lso}:')
                self.stamp(12)
                self.note(8, sSPIN)
                e(f'ds_write_b128 v31, {v(QA,4)} offset:{SL}')

                def stail():
                    e(f'{lsp}:')
                    for r in (R1, R0):
                        maxtree2('v30', v(KA), r, 8)
                        e('v_cmp_eq_u32 vcc, -1, v30')
                        e(f's_cbranch_vccz {lso}')
                        ld2(r)
                        e('s_waitcnt vmcnt(2)')
                        add(R0 if r == R1 else R1)
                        e(f's_cbranch_vccz {lso}')
                    self.spin(lsp)
                tails.append(stail)
            e(f's_cmp_ge_u32 {sW}, 2')
            e(f's_cbranch_scc1 {lw2}')
            e('s_waitcnt vmcnt(2) lgkmcnt(2)')
            self.xstamp(10)
            e(f'v_mfma_f32_16x16x32_bf16 {v(QA,4)}, {v(KX,4)}, {v(QF,4)}, 0')
            e(f'v_mfma_f32_16x16x32_bf16 {v(KA,4)}, {v(KX+8,4)}, {v(QF,4)}, 0')
            e(f'v_mfma_f32_16x16x32_bf16 {v(QA,4)}, {v(KX+4,4)}, {v(QF+4,4)}, {v(QA,4)}')
            e(f'v_mfma_f32_16x16x32_bf16 {v(KA,4)}, {v(KX+12,4)}, {v(QF+4,4)}, {v(KA,4)}')
            vm(1)
            for i in range(4):
                e(f'v_cndmask_b32 {v(S4+i)}, {v(QA+i)}, {v(KA+i)}, {mL2}')
            exchange(False)
            e(f'{lwe}:')

            def others():
                e(f'{lw2}:')
                e(f's_cmp_eq_u32 {sW}, 3')
                e(f's_cbranch_scc1 {lw3}')
                e('s_waitcnt lgkmcnt(0)')
                e(f'v_mfma_f32_16x16x32_bf16 {v(S4,4)}, {v(KF,4)}, {v(QF,4)}, 0')
                e(f'v_mfma_f32_16x16x32_bf16 {v(S4,4)}, {v(KF+4,4)}, {v(QF+4,4)}, {v(S4,4)}')
                vk[0] = save
                vm(1)
                exchange(True)
                e(f's_branch {lwe}')
                e(f'{lw3}:')
                vk[0] = save
                vm(20)
                e(f'v_cvt_pk_bf16_f32 {v(VMP)}, {v(VA_)}, {v(VA_+1)}')
                e(f'v_cvt_pk_bf16_f32 {v(VMP+1)}, {v(VA_+2)}, {v(VA_+3)}')
                e(f's_branch {lwe}')
            tails.append(others)
            e(f's_mov_b32 s60, {f2u(SCALE_LOG2E):#x}')
            e('s_waitcnt lgkmcnt(0)')
            e('s_barrier')
            self.stamp(2)
            X = G
            for t in range(3):
                e(f'ds_read_b128 {v(X+4*t,4)}, {v(vL16)} offset:{SL+1024*t}')
            e('s_waitcnt lgkmcnt(1)')
            e(f'v_max3_f32 v30, {v(X)}, {v(X+1)}, {v(X+2)}')
            e(f'v_max3_f32 v31, {v(X+3)}, {v(X+4)}, {v(X+5)}')
            e(f'v_max3_f32 v30, v30, {v(X+6)}, {v(X+7)}')
            e('s_waitcnt lgkmcnt(0)')
            e(f'v_max3_f32 v31, v31, {v(X+8)}, {v(X+9)}')
            e(f'v_max3_f32 v30, v30, {v(X+10)}, {v(X+11)}')
            e('v_max_f32 v30, v30, v31')
            e('v_mov_b32 v31, v30')
            e('v_permlane32_swap_b32 v31, v30')
            e('v_max_f32 v30, v30, v31')
            e('v_mov_b32 v31, v30')
            e('v_permlane16_swap_b32 v31, v30')
            e('v_max_f32 v30, v30, v31')
            e('v_mul_f32 v30, s60, v30')
            order = [8, 9, 10, 11, 0, 1, 2, 3, 4, 5, 6, 7]
            PX, PM = QF, QF + 4
            for i in order[:4]:
                e(f'v_fma_f32 {v(X+i)}, {v(X+i)}, s60, -v30')
            for n, i in enumerate(order):
                e(f'v_exp_f32 {v(X+i)}, {v(X+i)}')
                if n + 4 < 12:
                    j = order[n + 4]
                    e(f'v_fma_f32 {v(X+j)}, {v(X+j)}, s60, -v30')
                if n == 4:
                    e(f'v_cvt_pk_bf16_f32 {v(PM)}, {v(X+8)}, {v(X+9)}')
                    e(f'v_cvt_pk_bf16_f32 {v(PM+1)}, {v(X+10)}, {v(X+11)}')
                if n == 6:
                    e(f'v_mfma_f32_16x16x16_bf16 {v(VA_,4)}, {v(ONESQ,2)}, {v(PM,2)}, 0')
                if n == 7:
                    e(f'v_mfma_f32_16x16x16_bf16 {v(QA,4)}, {v(VMP,2)}, {v(PM,2)}, 0')
                    e(f'v_cvt_pk_bf16_f32 {v(PX)}, {v(X)}, {v(X+1)}')
                if n == 8:
                    e(f'v_mfma_f32_16x16x16_bf16 {v(KA,4)}, {v(VMP,2)}, {v(PM,2)}, 0')
                    e(f'v_cvt_pk_bf16_f32 {v(PX+1)}, {v(X+2)}, {v(X+3)}')
                if n == 10:
                    e(f'v_cvt_pk_bf16_f32 {v(PX+2)}, {v(X+4)}, {v(X+5)}')
            e(f'v_cvt_pk_bf16_f32 {v(PX+3)}, {v(X+6)}, {v(X+7)}')
            e('s_waitcnt vmcnt(0)')
            e(f'v_mfma_f32_16x16x32_bf16 {v(VA_,4)}, {v(ONESQ,4)}, {v(PX,4)}, {v(VA_,4)}')
            e(f'v_mfma_f32_16x16x32_bf16 {v(QA,4)}, {v(VX,4)}, {v(PX,4)}, {v(QA,4)}')
            e(f'v_mfma_f32_16x16x32_bf16 {v(KA,4)}, {v(VX+4,4)}, {v(PX,4)}, {v(KA,4)}')
            e(f'v_add_u32 v31, {sW6}, {v(vL16)}')
            e(f's_add_u32 {sS}, {sS}, 1')
            e(f'v_rcp_f32 v30, {v(VA_)}')
            for i in range(4):
                e(f'v_cndmask_b32 {v(X+i)}, {v(QA+i)}, {v(KA+i)}, {mL2}')
            for i in range(4):
                e(f'v_mul_f32 {v(X+i)}, {v(X+i)}, v30')
            e(f'v_cvt_pk_bf16_f32 {v(QF+6)}, {v(X)}, {v(X+1)}')
            e(f'v_cvt_pk_bf16_f32 {v(QF+7)}, {v(X+2)}, {v(X+3)}')
            e(f'v_min_u32 {v(QF+6)}, -2, {v(QF+6)}')
            e(f'v_min_u32 {v(QF+7)}, -2, {v(QF+7)}')
            e(f'buffer_store_dwordx2 {v(QF+6,2)}, {v(vTW)}, {WS}, {cOw} offen{X_}')
            self.stamp(3)

            def export_addr():
                e(f'v_mov_b32 v30, {cK1}')
                e(f'v_mov_b32 {v(QF+2)}, {cK2}')
                e('s_mov_b32 s92, 0')
                e('s_mov_b32 s93, -1')
                e(f'v_cndmask_b32 {v(QF)}, v30, {v(QF+2)}, {mL2}')
                e(f'v_cndmask_b32 {v(QF+1)}, v30, {v(QF+2)}, {mT}')
                e(f'v_add_u32 {v(QF)}, {v(QF)}, {v(vKM)}')
                e(f'v_add_u32 {v(QF+1)}, {v(QF+1)}, {v(vVM)}')

            def export_v():
                e('s_mov_b64 exec, s[22:23]')
                e(f'buffer_store_dwordx2 {v(VMP,2)}, {v(QF+1)}, {WS}, 0 offen{X_}')
                e('s_mov_b64 exec, -1')

            def export_k():
                l = A.lab('nk')
                e(f's_cbranch_scc1 {l}')
                e('s_mov_b64 exec, s[24:25]')
                e(f'buffer_store_dwordx4 {v(KF,4)}, {v(QF)}, {WS}, 0 offen{X_}')
                e(f'buffer_store_dwordx4 {v(KF+4,4)}, {v(QF)}, {WS}, 0 offen offset:512{X_}')
                e('s_mov_b64 exec, -1')
                e(f'{l}:')

            def sig():
                e(f'v_mov_b32 v29, {sS}')
                e('s_mov_b64 exec, 1')
                e(f'buffer_store_dword v29, off, {WS}, {sPCH}{X_}')
                e('s_mov_b64 exec, -1')
            e(f's_cmp_ge_u32 {sSLOT}, 10')
            e(f's_cbranch_scc1 L_ch_noop_{md}')
            if self.opt['odelay']:
                e(f's_sleep {self.opt["odelay"]}')

            def op(k):
                b = v(G + 4 * k, 4) if k < 6 else v(MEM + 4 * (k - 6), 4)
                e(f'v_mfma_f32_16x16x32_bf16 {v(QA,4)}, {Wo(k)}, {b}, {"0" if k==0 else v(QA,4)}')

            def ogyoung():
                export_addr()
                for g in range(3):
                    e(f'v_add_u32 {v(QF+3+g)}, s{36+g}, {v(vL16)}')
            OPRE = self.opt['opre']
            gather('og', 6, vGO, cOr, cOr4, 'v31', OL, ogyoung, 0, G, lambda i: op(i) if i < OPRE else None)
            self.stamp(13)
            self.note(9, sSPIN)
            e('s_waitcnt lgkmcnt(0)')
            e('s_barrier')
            self.stamp(4)

            def ord_(k):
                e(f'ds_read_b128 {v(MEM+4*(k-6),4)}, {v(QF + 3 + k//6 - 1)} offset:{OL+1024*(k%6)}')
            for k in range(6, 6 + PF):
                ord_(k)
            export_v()
            for k in range(OPRE, 6):
                op(k)
            e(f's_cmp_lg_u32 {sW}, 2')
            export_k()
            for k in range(6, 24):
                if k + PF < 24:
                    ord_(k + PF)
                e(f's_waitcnt lgkmcnt({min(PF, 23-k)})')
                op(k)
                if k == 16:
                    e(f'v_add_u32 v28, {cCw}, {v(vTW)}')
                    e(f'v_mov_b32 v29, {sS}')
                if 17 <= k < 21:
                    e(f'v_mov_b32 {v(KA+k-17)}, -1')
            C = G
            e('s_waitcnt vmcnt(0)')
            e(f'v_cvt_pk_bf16_f32 {v(C)}, {v(QA)}, {v(QA+1)}')
            e(f'v_cvt_pk_bf16_f32 {v(C+1)}, {v(QA+2)}, {v(QA+3)}')
            e(f'v_min_u32 {v(C)}, -2, {v(C)}')
            e(f'v_min_u32 {v(C+1)}, -2, {v(C+1)}')
            e(f'buffer_store_dwordx2 {v(C,2)}, v28, {WS}, {sCw} offen sc1')
            self.stamp(5)

            def resets(full):
                e(f'buffer_store_dwordx2 {v(KA,2)}, {v(vTW)}, {WS}, {rO} offen{X_}')
                if full and not XB_:
                    e(f'buffer_store_dwordx2 {v(KA,2)}, {v(vTW)}, {WS}, {rAG} offen{X_}')
                e(f'buffer_store_dwordx4 {v(KA,4)}, {v(vL16)}, {WS}, {rS} offen{X_}')
                if not full:
                    e(f's_add_u32 s92, {sS}, 1')
                    e(f's_and_b32 s92, s92, {self.opt["crring"]-1}')
                    e(f's_mul_i32 s92, s92, {CR_S}')
                    e(f's_sub_u32 s93, {sTILE}, 40')
                    e('s_mul_i32 s93, s93, 20480')
                    e('s_add_u32 s92, s92, s93')
                    e(f's_lshl_b32 s93, {sCLS}, 9')
                    e('s_add_u32 s92, s92, s93')
                    e(f's_add_u32 s92, s92, {CH_CR}')
                    for i in range(5):
                        e(f'buffer_store_dwordx2 {v(KA,2)}, {v(vTW)}, {WS}, s92 offen sc1')
                        if i < 4:
                            e('s_add_u32 s92, s92, 4096')
                    if XB_:
                        lh = A.lab('h5')
                        e(f's_cmp_ge_u32 {sTILE}, 45')
                        e(f's_cbranch_scc1 {lh}')
                        e(f's_add_u32 s92, {sS}, 2')
                        e(f's_mul_i32 s92, s92, {AG_S}')
                        e(f's_mul_i32 s93, {sCLS}, 5')
                        e(f's_add_u32 s93, s93, {sTILE}')
                        e('s_sub_u32 s93, s93, 40')
                        e('s_lshl_b32 s93, s93, 9')
                        e('s_add_u32 s92, s92, s93')
                        e(f's_add_u32 s92, s92, {AGG}')
                        e(f'buffer_store_dwordx2 {v(KA,2)}, {v(vTW)}, {WS}, s92 offen sc1')
                        e(f'{lh}:')
            if self.diag:
                e('s_mov_b32 s100, 0')
            e('s_mov_b64 exec, 1')
            e(f'buffer_store_dword v29, off, {WS}, {sPCH}{X_}')
            e('s_mov_b64 exec, -1')
            resets(True)
            flagload()
            for x in nextkv_steps():
                x()
            scalars()
            if XB_:
                e('s_cmp_eq_u32 s32, 0')
                e(f's_cbranch_scc1 L_ch_no_{md}')

                def notowner():
                    e(f'L_ch_no_{md}:')
                    e(f's_sleep {self.opt["xwait"]}')
                    e('s_waitcnt vmcnt(0)')
                    e(f's_branch L_ch_next_{md}')
                tails.append(notowner)
            if self.opt['adapt']:
                la, lb_ = A.lab('ad'), A.lab('ae')
                e('s_lshr_b32 s60, s31, 2')
                e(f'{la}:')
                e('s_sub_u32 s60, s60, 1')
                e(f's_cbranch_scc1 {lb_}')
                e('s_sleep 1')
                e(f's_branch {la}')
                e(f'{lb_}:')
            elif self.opt['cdelay']:
                e(f's_sleep {self.opt["cdelay"]}')
            lcp, lco = A.lab('cp'), A.lab('co')

            def cld():
                for i in range(7):
                    e(f'buffer_load_dwordx2 {v(C+2+2*i,2)}, v28, {WS}, {sCR[i]} offen sc1')

            def csum(extra):
                for j in range(4):
                    e(f's_waitcnt vmcnt({6-2*j+extra})')
                    e(f'v_mfma_f32_16x16x32_bf16 {v(QA,4)}, {v(SEL,4)}, {v(C+4*j,4)}, {"0" if j==0 else v(QA,4)}')
            cld()
            if self.opt['adapt']:
                e('s_sub_u32 s31, s31, 1')
                e('s_max_i32 s31, s31, 0')
            csum(0)
            self.stamp(14)
            e(f'{lcp}:')
            e(f'v_cmp_u_f32 vcc, {v(QA)}, {v(QA+1)}')
            e(f'v_cvt_pk_bf16_f32 {v(VA_)}, {v(QA)}, {v(QA+1)}')
            e(f'v_cvt_pk_bf16_f32 {v(VA_+1)}, {v(QA+2)}, {v(QA+3)}')
            e(f's_cbranch_vccnz {lcp}x')
            e(f'{lco}:')

            def ctail():
                e(f'{lcp}x:')
                maxtree2(v(VA_ + 2), v(VA_ + 3), C + 2, 14)
                e(f'v_cmp_eq_u32 vcc, -1, {v(VA_+2)}')
                e(f's_cbranch_vccz {lco}')
                cld()
                if self.opt['adapt']:
                    e(f's_add_u32 s31, s31, {self.opt["adapt"]}')
                    e('s_min_u32 s31, s31, 48')
                csum(0)
                self.spin(lcp)
            tails.append(ctail)
            self.note(10, sSPIN)
            e(f'v_min_u32 {v(VA_)}, -2, {v(VA_)}')
            e(f'v_min_u32 {v(VA_+1)}, -2, {v(VA_+1)}')
            e(f'buffer_store_dwordx2 {v(VA_,2)}, {v(vTW)}, {WS}, {cAGw} offen{" sc1" if XB_ else X_}')
            self.stamp(6)
            e(f'L_ch_next_{md}:')
            if self.opt['dbgt']:
                for st, wd in ((1, 5), (L + 1, 9), (64, 10)):
                    l = A.lab('dx')
                    e(f's_cmp_lg_u32 {sS}, {st}')
                    e(f's_cbranch_scc1 {l}')
                    self.dbgtime(wd)
                    e(f'{l}:')
            e(f's_cmp_lt_u32 {sS}, {self.nsteps}')
            e(f's_cbranch_scc1 L_ch_step_{md}')
            self.dbgtime(6)
            e('s_endpgm')
            e(f'L_ch_noop_{md}:')
            export_addr()
            export_v()
            e(f's_cmp_lg_u32 {sW}, 2')
            export_k()
            for i in range(4):
                e(f'v_mov_b32 {v(KA+i)}, -1')
            for x in nextkv_steps():
                x()
            e('s_waitcnt vmcnt(0)')
            sig()
            resets(False)
            scalars()
            if self.opt['warm']:
                e(f's_sub_u32 s92, {sTILE}, 40')
                e('s_lshr_b32 s93, s92, 1')
                e(f's_lshl_b32 s94, {sCLS}, 2')
                e('s_add_u32 s93, s93, s94')
                e(f's_mul_i32 s93, s93, {QKV_HEAD}')
                e('s_and_b32 s92, s92, 1')
                e('s_add_u32 s92, s92, 1')
                e('s_mul_i32 s92, s92, 12288')
                e('s_add_u32 s92, s92, s93')
                e(f's_add_u32 s92, s92, {sQ1}')
                for i in range(12):
                    e(f'buffer_load_dwordx4 {v(MEM+4*i,4)}, {v(vL16)}, {WS}, s92 offen offset:{1024*(i%4)} sc1')
                    if i % 4 == 3:
                        e('s_add_u32 s92, s92, 4096')
            e(f's_sleep {self.opt["hdelay"]}')
            flagload()
            e('s_waitcnt vmcnt(0)')
            e(f's_branch L_ch_next_{md}')
            k = 0
            while k < len(tails):
                tails[k]()
                k += 1
        loop('f')
        loop('s')
```

```python
from common import *


class QkvMixin:
    def role_qkv(self):
        e = self.A.e
        A = self.A
        e('L_qkv:')
        e(f's_sub_u32 s64, {sSLOT}, 12')
        e('s_lshl_b32 s64, s64, 2')
        e(f's_add_u32 s64, s64, {sW}')
        e(f's_lshl_b32 s65, {sCLS}, 8')
        e('s_lshl_b32 s66, s64, 2')
        e('s_add_u32 s65, s65, s66')
        e(f's_add_u32 s65, s65, {P_QKV}')
        e('s_add_u32 s66, s65, 2048')
        e('v_mov_b32 v4, 0')
        e('s_mov_b64 exec, 1')
        e(f'buffer_store_dword v4, off, {WS}, s65 sc1')
        e(f'buffer_store_dword v4, off, {WS}, s66 sc1')
        e('s_mov_b64 exec, -1')
        self.arrive()
        e('s_mul_i32 s67, s64, 57')
        e('s_lshr_b32 s67, s67, 9')
        e('s_mul_i32 s68, s67, 9')
        e('s_sub_u32 s68, s64, s68')
        e('s_mul_i32 s69, s68, 11')
        e('s_lshr_b32 s69, s69, 5')
        e('s_mul_i32 s70, s69, 3')
        e('s_sub_u32 s70, s68, s70')
        e(f's_lshl_b32 s71, {sCLS}, 2')
        e('s_add_u32 s71, s71, s67')
        e('s_cmp_eq_u32 s69, 1')
        e(f's_cselect_b32 s44, s{PTR["wk"]}, s{PTR["wq"]}')
        e(f's_cselect_b32 s45, s{PTR["wk"]+1}, s{PTR["wq"]+1}')
        e('s_cmp_eq_u32 s69, 2')
        e(f's_cselect_b32 s44, s{PTR["wv"]}, s44')
        e(f's_cselect_b32 s45, s{PTR["wv"]+1}, s45')
        e('s_and_b32 s45, s45, 0xffff')
        e(f's_mov_b32 s46, {NBYTES["wq"]}')
        e('s_mov_b32 s47, 0x20000')
        e('s_mul_i32 s72, s71, 384')
        e('s_lshl_b32 s73, s70, 7')
        e('s_add_u32 s72, s72, s73')
        e('v_lshrrev_b32 v1, 3, v0')
        e('v_mul_u32_u24 v1, 12288, v1')
        e('v_and_b32 v2, 7, v0')
        e('v_lshl_add_u32 v5, v2, 4, v1')
        e('v_add_u32 v5, s72, v5')
        e(f's_mul_i32 s73, {sW}, 40960')
        self.tr_lane('v6', 8, 128, 's73')

        def W(tl, k, u):
            r = 160 * tl + 4 * k + 2 * u
            return a(r, 2) if r < 256 else v(192 + r - 256, 2)

        def Wf(tl, k):
            r = 160 * tl + 4 * k
            return a(r, 4) if r < 256 else v(192 + r - 256, 4)

        def chunk_dma(q):
            e(f's_add_u32 m0, s73, {(q & 1) * 20480}')
            e(f's_mov_b32 s74, {q * 160 * 12288}')
            self.dma(20, 'v5', SRA, 's74', 8 * 12288)

        chunk_dma(0)
        chunk_dma(1)
        for q in range(4):
            e(f's_waitcnt vmcnt({20 if q < 3 else 0})')
            items = []
            for k in range(10):
                for tl in range(2):
                    for u in range(2):
                        items.append((W(tl, 10 * q + k, u), (q & 1) * 20480 + k * 2048 + u * 512 + tl * 64))
            self.trl(items, 'v6', 'v7')
            e('s_waitcnt lgkmcnt(0)')
            if q < 2:
                chunk_dma(q + 2)
        VD, VR = 8, 10
        self.xn_consts(VD, VR)
        e('v_lshlrev_b32 v9, 4, v0')
        e('v_and_b32 v5, 7, v0')
        e('v_lshlrev_b32 v5, 2, v5')
        e(f's_mul_i32 s72, s71, {QKV_HEAD}')
        e('s_mul_i32 s73, s69, 12288')
        e('s_add_u32 s72, s72, s73')
        e('s_lshl_b32 s73, s70, 12')
        e('s_add_u32 s72, s72, s73')
        e(f's_add_u32 s72, s72, {QKV}')
        self.wait_init('v6', 'v7')
        e('s_barrier')
        self.stamp(1, real=True)
        self.flush()
        RQ = self.opt['rq']
        intra = self.opt['intra']
        assert RQ >= self.L + 1 or self.L >= 64
        assert self.AH <= RQ - 1
        e(f's_mul_i32 s83, {sW}, 10240')
        e(f's_mov_b32 s84, {P_R2}')
        ACC, PK, BR = (16, 48), 80, 96
        sP1, sP2, sO, sX1, sX2, sD, sNR, sNB = 's75', 's76', 's77', 's79', 's81', 's85', 's80', 's86'
        e('v_lshlrev_b32 v6, 2, v0')
        l0, l1 = A.lab('ln'), A.lab('lnok')
        e(f'{l0}:')
        for i in range(8):
            e(f'buffer_load_dword {v(16+i)}, v6, {WS}, 0 offen offset:{P_LN1 + 256*i} sc1')
        e('s_waitcnt vmcnt(0)')
        e('v_min3_u32 v16, v16, v17, v18')
        e('v_min3_u32 v19, v19, v20, v21')
        e('v_min3_u32 v16, v16, v22, v23')
        e('v_min_u32 v16, v16, v19')
        e('v_cmp_eq_u32 vcc, 0, v16')
        e(f's_cbranch_vccz {l1}')
        self.spin(l0, 2)
        e(f'{l1}:')

        def dma_one(i, ssrc, buf):
            if i == 0:
                e(f's_add_u32 m0, s83, {buf}')
            else:
                e('s_add_u32 m0, m0, 896')
            e(f'buffer_load_dwordx4 {v(VD)}, {WS}, {ssrc} offen offset:{i*128} sc1 lds')

        def dma_if(i, ssrc, buf, val):
            l = A.lab('nd')
            e(f's_cmp_eq_u32 {sD}, {val}')
            e(f's_cbranch_scc0 {l}')
            dma_one(i, ssrc, buf)
            e(f'{l}:')

        def compute(buf, acc, isV, hooks):
            PF = 4
            for k in range(PF):
                e(f'ds_read_b128 {v(BR+4*(k%8),4)}, {v(VR+(k&3))} offset:{buf+(k>>2)*1024}')
            for k in range(40):
                if k + PF < 40:
                    kk = k + PF
                    e(f'ds_read_b128 {v(BR+4*(kk%8),4)}, {v(VR+(kk&3))} offset:{buf+(kk>>2)*1024}')
                e(f's_waitcnt lgkmcnt({min(PF, 39-k)})')
                b = v(BR + 4 * (k % 8), 4)
                for tl in range(2):
                    d = v(acc + 16 * tl, 16)
                    c = '0' if k == 0 else d
                    if isV:
                        e(f'v_mfma_f32_32x32x16_bf16 {d}, {b}, {Wf(tl,k)}, {c}')
                    else:
                        e(f'v_mfma_f32_32x32x16_bf16 {d}, {Wf(tl,k)}, {b}, {c}')
                for h in hooks.get(k, []):
                    h()
            for tl in range(2):
                for j in range(8):
                    e(f'v_cvt_pk_bf16_f32 {v(PK+8*tl+j)}, {v(acc+16*tl+2*j)}, {v(acc+16*tl+2*j+1)}')
                self.st_intra([f'buffer_store_dwordx4 {v(PK+8*tl+4*h,4)}, v9, {WS}, {sO} offen offset:{tl*2048+h*1024}'
                               for h in range(2)])

        def out1():
            e(f's_and_b32 {sO}, {sP1}, {RQ-1}')
            e(f's_mul_i32 {sO}, {sO}, {QKV_SEG}')
            e(f's_add_u32 {sO}, {sO}, s72')

        def sig_after(n, word, val):
            def h():
                e(f's_waitcnt vmcnt({n})')
                self.signal('v4', word, val, intra=intra)
            return h

        def flags_ld():
            e(f'buffer_load_dword v5, v6, {WS}, s84 offen sc1')

        def flags_ck():
            e(f'v_cmp_gt_u32 vcc, {sNR}, v5')

        def body(isV):
            tag = 'v' if isV else 'q'
            e('v_and_b32 v6, 7, v0')
            e('v_lshlrev_b32 v6, 7, v6')
            e(f's_mov_b32 {sP1}, 0')
            e(f's_mov_b32 {sP2}, 0')
            e(f's_mov_b32 {sX1}, {XN1}')
            odd = self.AH & 1
            for i in range(10):
                dma_one(i, sX1, 40960 * odd)
            e('s_waitcnt vmcnt(0)')
            e('s_barrier')
            lp = f'L_qkv_a_{tag}'
            if odd:
                e(f's_branch {lp}1')
            e(f'{lp}:')
            for half in range(2):
                if half:
                    e(f'{lp}1:')
                e(f's_add_u32 {sX1}, {sX1}, {SEGB}')
                out1()
                hk = {9 + i: [lambda i=i: dma_one(i, sX1, 40960 * (1 - half))] for i in range(10)}
                hk[8] = [sig_after(0, 's65', sP1)]
                compute(40960 * half, ACC[half], isV, hk)
                e(f's_add_u32 {sP1}, {sP1}, 1')
                if half == odd:
                    lq = A.lab('first')
                    e(f's_cmp_lg_u32 {sP1}, 1')
                    e(f's_cbranch_scc1 {lq}')
                    sig_after(0, 's65', sP1)()
                    e(f'{lq}:')
                e('s_waitcnt vmcnt(4)')
                e('s_barrier')
            e(f's_cmp_lt_u32 {sP1}, {self.AH}')
            e(f's_cbranch_scc1 {lp}')
            sig_after(0, 's65', sP1)()
            lp2, nop1, blk, got2, nop1b = f'L_qkv_b_{tag}', A.lab('nop1'), A.lab('blk'), A.lab('got2'), A.lab('nop1b')
            e(f'{lp2}:')
            self.flush()
            e(f's_add_u32 {sNR}, {sP2}, 1')
            e(f's_mul_i32 {sX2}, {sP2}, {SEGB}')
            e(f's_add_u32 {sX2}, {sX2}, {XN2}')
            e(f's_mov_b32 {sD}, 0')
            e(f's_cmp_ge_u32 {sP1}, 64')
            e(f's_cbranch_scc1 {blk}')
            out1()

            def ck(val, n):
                def h():
                    l = A.lab('ck')
                    e(f's_cmp_lg_u32 {sD}, 0')
                    e(f's_cbranch_scc1 {l}')
                    e(f's_waitcnt vmcnt({n})')
                    flags_ck()
                    e(f's_cbranch_vccnz {l}')
                    e(f's_mov_b32 {sD}, {val}')
                    e(f'{l}:')
                return h

            def reld():
                l = A.lab('rl')
                e(f's_cmp_lg_u32 {sD}, 0')
                e(f's_cbranch_scc1 {l}')
                flags_ld()
                e(f'{l}:')
            hk = {0: [flags_ld], 8: [sig_after(0, 's66', sP2)], 9: [ck(1, 63)], 13: [reld], 22: [ck(2, 0)]}
            for i in range(10):
                hk.setdefault(10 + i, []).append(lambda i=i: dma_if(i, sX2, 40960, 1))
                hk.setdefault(23 + i, []).append(lambda i=i: dma_if(i, sX2, 40960, 2))
            compute(0, ACC[0], isV, hk)
            e(f's_add_u32 {sP1}, {sP1}, 1')
            self.stamp(4, real=True)
            e(f's_cmp_eq_u32 {sD}, 0')
            e(f's_cbranch_scc1 {blk}')
            e('s_waitcnt vmcnt(4)')
            e(f's_branch {got2}')
            e(f'{blk}:')
            sig_after(0, 's65', sP1)()
            e(f'{blk}p:')
            if self.on('r'):
                flags_ld()
                e('s_waitcnt vmcnt(0)')
                flags_ck()
                lb = A.lab('bok')
                e(f's_cbranch_vccz {lb}')
                self.spin(blk + 'p', self.opt['psleep'])
                e(f'{lb}:')
            self.stamp(0, real=True)
            for i in range(10):
                dma_one(i, sX2, 40960)
            e('s_waitcnt vmcnt(0)')
            e(f'{got2}:')
            e('s_barrier')
            self.stamp(1, real=True)
            e(f's_and_b32 {sO}, {sP2}, {RQ-1}')
            e(f's_add_u32 {sO}, {sO}, 64')
            e(f's_mul_i32 {sO}, {sO}, {QKV_SEG}')
            e(f's_add_u32 {sO}, {sO}, s72')
            e(f's_add_u32 {sX1}, {sX1}, {SEGB}')
            e(f's_cmp_lt_u32 {sP1}, 64')
            e(f's_cselect_b32 {sD}, 1, 0')
            hk = {9 + i: [lambda i=i: dma_if(i, sX1, 0, 1)] for i in range(10)}
            hk[8] = [sig_after(0, 's65', sP1)]
            compute(40960, ACC[1], isV, hk)
            e(f's_add_u32 {sP2}, {sP2}, 1')
            self.stamp(2, real=True)
            e(f's_cmp_eq_u32 {sD}, 0')
            e(f's_cbranch_scc1 {nop1b}')
            e('s_waitcnt vmcnt(4)')
            e('s_barrier')
            e(f's_branch {lp2}')
            e(f'{nop1b}:')
            sig_after(0, 's66', sP2)()
            self.stamp(3, real=True)
            e('s_barrier')
            e(f's_cmp_lt_u32 {sP2}, 64')
            e(f's_cbranch_scc1 {lp2}')
            e('s_endpgm')

        e('s_cmp_eq_u32 s69, 2')
        e('s_cbranch_scc1 L_qkv_v')
        body(False)
        e('L_qkv_v:')
        body(True)
```

```python
import sys, os
sys.path.insert(0, os.path.dirname(os.path.abspath(__file__)))
from asmlib import Asm

from common import *
from chain import ChainMixin
from qkv import QkvMixin
from workers import WorkersMixin


class Gen(ChainMixin, QkvMixin, WorkersMixin):
    def __init__(self, L=6, A=10, roles='all', diag=False, nsteps=None, force_slow=False, opt=None):
        self.A = Asm()
        self.L = L
        self.AH = A
        self.roles = roles
        self.diag = diag
        self.nsteps = nsteps if nsteps is not None else 64 + L
        self.force_slow = force_slow
        self.opt = dict(cdelay=4, agdelay=0, sdelay=0, odelay=0, hdelay=20, rq=8, intra=1, at2delay=6, exact=0, opsig=26, psleep=1, crring=128, ring=64, ratom=1, earlysig=1, svm=11, sgap=2, lite=0, dbgt=0, wnt=1, hold=1, npre=3, opre=4, vat=8, sv1=4, warm=0, xb=0, xwait=14, lean=0, adapt=0, probe=0, fake16=0, keep=0)
        self.opt.update(opt or {})
        self.opt_keep = [i for i in range(16) if self.opt['keep'] >> i & 1]

    def on(self, r):
        return self.roles == 'all' or r in self.roles.split(',')

    def srd(self, dst, name):
        e = self.A.e
        b = int(dst[2:dst.index(':')])
        p = PTR[name]
        e(f's_mov_b32 s{b}, s{p}')
        e(f's_and_b32 s{b+1}, s{p+1}, 0xffff')
        e(f's_mov_b32 s{b+2}, {NBYTES[name]}')
        e(f's_mov_b32 s{b+3}, 0x20000')

    def spin(self, back, sleep=0):
        e = self.A.e
        if sleep:
            e(f's_sleep {sleep}')
        e(f's_sub_u32 {sSPIN}, {sSPIN}, 1')
        e(f's_cbranch_scc0 {back}')
        e('s_branch L_fail')

    def poll(self, vt, voff, soff, need, sleep=None, imm=0):
        e = self.A.e
        l0, l1 = self.A.lab('poll'), self.A.lab('pok')
        e(f'{l0}:')
        e(f'buffer_load_dword {vt}, {voff}, {WS}, {soff} offen offset:{imm} sc1')
        e('s_waitcnt vmcnt(0)')
        e(f'v_cmp_gt_u32 vcc, {need}, {vt}')
        e(f's_cbranch_vccz {l1}')
        self.spin(l0, self.opt['psleep'] if sleep is None else sleep)
        e(f'{l1}:')

    def st_mode(self, text):
        e = self.A.e
        lines = text if isinstance(text, list) else [text]
        l0, l1 = self.A.lab('sl'), self.A.lab('sd')
        e(f's_cmp_eq_u32 {sFAST}, 0')
        e(f's_cbranch_scc1 {l0}')
        for t in lines:
            e(t)
        e(f's_branch {l1}')
        e(f'{l0}:')
        for t in lines:
            e(t + (' sc1' if t.startswith('buffer_store') else ''))
        e(f'{l1}:')

    def st_intra(self, lines):
        if self.opt['intra']:
            self.st_mode(lines)
        else:
            for t in lines:
                self.A.e(t + ' sc1')

    def signal(self, vt, soff, val, intra=False):
        e = self.A.e
        e(f'v_mov_b32 {vt}, {val}')
        e('s_mov_b64 exec, 1')
        if intra:
            self.st_mode(f'buffer_store_dword {vt}, off, {WS}, {soff}')
        else:
            e(f'buffer_store_dword {vt}, off, {WS}, {soff} sc1')
        e('s_mov_b64 exec, -1')

    def signal_cu(self, vt, vz, ldsaddr, soff, val):
        e = self.A.e
        l = self.A.lab('nl')
        e(f'v_mov_b32 {vt}, 1')
        e(f'v_mov_b32 {vz}, {ldsaddr}')
        e('s_mov_b64 exec, 1')
        e(f'ds_add_rtn_u32 {vt}, {vz}, {vt}')
        e('s_waitcnt lgkmcnt(0)')
        e(f'v_readfirstlane_b32 s60, {vt}')
        e(f'v_mov_b32 {vt}, {val}')
        e('s_and_b32 s60, s60, 3')
        e('s_cmp_lg_u32 s60, 3')
        e(f's_cbranch_scc1 {l}')
        e(f'buffer_store_dword {vt}, off, {WS}, {soff} sc1')
        e(f'{l}:')
        e('s_mov_b64 exec, -1')

    def lds_zero(self, addrs):
        e = self.A.e
        e('v_mov_b32 v1, 0')
        for ad in addrs:
            e(f'v_mov_b32 v2, {ad}')
            e('ds_write_b32 v2, v1')
        e('s_waitcnt lgkmcnt(0)')
        e('s_barrier')

    def arrive(self):
        e = self.A.e
        l = self.A.lab('arr')
        e('s_waitcnt vmcnt(0)')
        e('s_barrier')
        e(f's_cmp_lg_u32 {sW}, 0')
        e(f's_cbranch_scc1 {l}')
        e('s_and_b32 s60, s2, 7')
        e('s_lshl_b32 s60, s60, 5')
        e('s_add_u32 s60, s60, 16')
        e('v_mov_b32 v1, 1')
        e('s_mov_b64 exec, 1')
        e(f'buffer_atomic_add v1, off, {DBG}, s60')
        e('s_mov_b64 exec, -1')
        e(f'{l}:')

    def wait_init(self, vt, vt2, st='s60'):
        e = self.A.e
        b = int(st[1:])
        l0, l1 = self.A.lab('wi'), self.A.lab('wid')
        e(f'v_lshlrev_b32 {vt2}, 2, v0')
        e(f'{l0}:')
        e(f'buffer_load_dword {vt}, {vt2}, {DBG}, 0 offen sc1')
        e('s_waitcnt vmcnt(0)')
        e(f'v_cmp_ne_u32 vcc, 32, {vt}')
        e(f's_mov_b32 s{b}, 0x10101010')
        e(f's_mov_b32 s{b+1}, 0x10101010')
        e(f's_and_b64 s[{b+2}:{b+3}], vcc, s[{b}:{b+1}]')
        e(f's_cbranch_scc0 {l1}')
        self.spin(l0, 2)
        e(f'{l1}:')
        e(f's_mov_b32 s{b}, 0x01010101')
        e(f's_mov_b32 s{b+1}, 0x01010101')
        e(f's_and_b64 s[{b+2}:{b+3}], vcc, s[{b}:{b+1}]')
        e(f's_cselect_b32 {sFAST}, 0, 1')
        if self.force_slow:
            e(f's_mov_b32 {sFAST}, 0')

    def trl(self, items, vaddr, vtmp):
        e = self.A.e
        base = None
        for dst, off in items:
            b = (off // 65536) * 65536 if off >= 65536 else 0
            if off - b > 65535:
                raise ValueError
            if b == 0:
                e(f'ds_read_b64_tr_b16 {dst}, {vaddr} offset:{off}')
            else:
                if base != b:
                    e(f'v_add_u32 {vtmp}, {b}, {vaddr}')
                    base = b
                e(f'ds_read_b64_tr_b16 {dst}, {vtmp} offset:{off - b}')

    def dma(self, n, voff, srd, ssoff, sstep, m0step=1024, sc1=False):
        e = self.A.e
        for i in range(n):
            e(f'buffer_load_dwordx4 {voff}, {srd}, {ssoff} offen{" sc1" if sc1 else ""}{" nt" if self.opt["wnt"] and not sc1 else ""} lds')
            if i + 1 < n:
                e(f's_add_u32 m0, m0, {m0step}')
                e(f's_add_u32 {ssoff}, {ssoff}, {sstep}')

    def stamp(self, idx, real=False):
        if not self.diag or (self.opt['lite'] and not real and idx not in self.opt_keep):
            return
        e = self.A.e
        e('s_memrealtime s[98:99]' if real else 's_memtime s[98:99]')
        e('s_waitcnt lgkmcnt(0)')
        e(f'v_writelane_b32 v14, s98, {idx}')

    def xstamp(self, idx):
        if self.diag and self.opt['probe'] == 4:
            e = self.A.e
            e('s_memtime s[98:99]')
            e('s_waitcnt lgkmcnt(0)')
            e(f'v_writelane_b32 v14, s98, {idx}')

    def dbgtime(self, word):
        if not self.opt['dbgt']:
            return
        e = self.A.e
        l = self.A.lab('dt')
        e(f's_cmp_lg_u32 {sCLS}, 0')
        e(f's_cbranch_scc1 {l}')
        e('s_memrealtime s[98:99]')
        e('s_waitcnt lgkmcnt(0)')
        e('s_and_b32 s98, s98, 0xffffff')
        e('v_mov_b32 v15, s98')
        e('s_mov_b64 exec, 1')
        e(f'buffer_atomic_umax v15, off, {DBG}, 0 offset:{4*word}')
        e('s_mov_b64 exec, -1')
        e(f'{l}:')

    def note(self, idx, sreg):
        if self.diag and self.opt['probe'] != 4:
            self.A.e(f'v_writelane_b32 v14, {sreg}, {idx}')

    def flush(self):
        if not self.diag:
            return
        e = self.A.e
        e('v_lshlrev_b32 v15, 2, v0')
        e('s_mov_b64 exec, 0xffff')
        e(f'buffer_store_dword v14, v15, {WS}, s97 offen')
        e('s_mov_b64 exec, -1')
        e('s_add_u32 s97, s97, 64')

    def rowstat(self, val, tmp):
        e = self.A.e
        for r in (8, 4, 2, 1):
            e(f'v_add_f32_dpp {val}, {val}, {val} row_ror:{r} row_mask:0xf bank_mask:0xf')
        e(f'v_mov_b32 {tmp}, {val}')
        e(f'v_permlane16_swap_b32 {tmp}, {val}')
        e(f'v_add_f32 {val}, {val}, {tmp}')

    def bfround(self, r, ):
        e = self.A.e
        e(f'v_cvt_pk_bf16_f32 {r}, {r}, {r}')
        e(f'v_and_b32 {r}, 0xffff0000, {r}')

    def ln_pair(self, X, OUT, T):
        e = self.A.e
        t0, t2, t4 = T, T + 2, T + 4
        e(f'v_pk_add_f32 {v(t0,2)}, {v(X,2)}, {v(X+2,2)}')
        e(f'v_pk_add_f32 {v(t2,2)}, {v(X+4,2)}, {v(X+6,2)}')
        for k in range(8, 20, 4):
            e(f'v_pk_add_f32 {v(t0,2)}, {v(t0,2)}, {v(X+k,2)}')
            e(f'v_pk_add_f32 {v(t2,2)}, {v(t2,2)}, {v(X+k+2,2)}')
        e(f'v_pk_add_f32 {v(t0,2)}, {v(t0,2)}, {v(t2,2)}')
        e(f'v_add_f32 {v(t0)}, {v(t0)}, {v(t0+1)}')
        self.rowstat(v(t0), v(t0 + 1))
        e(f'v_mul_f32 {v(t0)}, {f2u(-1.0/640):#x}, {v(t0)}')
        e(f'v_mov_b32 {v(t0+1)}, {v(t0)}')
        e(f'v_pk_add_f32 {v(t4,2)}, {v(X,2)}, {v(t0,2)}')
        e(f'v_pk_mul_f32 {v(t2,2)}, {v(t4,2)}, {v(t4,2)}')
        for k in range(2, 20, 2):
            e(f'v_pk_add_f32 {v(t4,2)}, {v(X+k,2)}, {v(t0,2)}')
            e(f'v_pk_fma_f32 {v(t2,2)}, {v(t4,2)}, {v(t4,2)}, {v(t2,2)}')
        e(f'v_add_f32 {v(t2)}, {v(t2)}, {v(t2+1)}')
        self.rowstat(v(t2), v(t2 + 1))
        e(f'v_mul_f32 {v(t2)}, {f2u(1.0/640):#x}, {v(t2)}')
        self.bfround(v(t2))
        e(f'v_add_f32 {v(t2)}, {f2u(1e-5):#x}, {v(t2)}')
        self.bfround(v(t2))
        e(f'v_sqrt_f32 {v(t2)}, {v(t2)}')
        self.bfround(v(t2))
        e(f'v_rcp_f32 {v(t2)}, {v(t2)}')
        self.bfround(v(t0))
        e(f'v_mov_b32 {v(t0+1)}, {v(t0)}')
        e(f'v_mov_b32 {v(t2+1)}, {v(t2)}')
        outs = OUT if isinstance(OUT, list) else list(range(OUT, OUT + 10))
        for k in range(0, 20, 2):
            e(f'v_pk_add_f32 {v(X+k,2)}, {v(X+k,2)}, {v(t0,2)}')
        if self.opt['exact']:
            for k in range(0, 20, 2):
                e(f'v_cvt_pk_bf16_f32 {v(X+k+1)}, {v(X+k)}, {v(X+k+1)}')
            for k in range(0, 20, 2):
                e(f'v_lshlrev_b32 {v(X+k)}, 16, {v(X+k+1)}')
                e(f'v_and_b32 {v(X+k+1)}, 0xffff0000, {v(X+k+1)}')
        for k in range(0, 20, 2):
            e(f'v_pk_mul_f32 {v(X+k,2)}, {v(X+k,2)}, {v(t2,2)}')
        for k in range(0, 20, 2):
            e(f'v_cvt_pk_bf16_f32 {v(outs[k//2])}, {v(X+k)}, {v(X+k+1)}')

    def rowlane_addr(self, dst, tmp):
        e = self.A.e
        e(f'v_lshrrev_b32 {dst}, 5, v0')
        e(f'v_mul_u32_u24 {dst}, 1280, {dst}')
        e(f'v_and_b32 {tmp}, 15, v0')
        e(f'v_lshl_add_u32 {dst}, {tmp}, 4, {dst}')
        e(f'v_bfe_u32 {tmp}, v0, 4, 1')
        e(f'v_lshl_add_u32 {dst}, {tmp}, 3, {dst}')

    def unpack(self, dst, src, n):
        e = self.A.e
        for k in range(n):
            e(f'v_lshlrev_b32 {v(dst+2*k)}, 16, {v(src+k)}')
            e(f'v_and_b32 {v(dst+2*k+1)}, 0xffff0000, {v(src+k)}')

    def ln1_phase(self):
        e = self.A.e
        self.srd(SRA, 'x')
        e(f's_sub_u32 s64, {sSLOT}, 21')
        e('s_lshl_b32 s64, s64, 2')
        e(f's_add_u32 s64, s64, {sW}')
        self.rowlane_addr('v2', 'v3')
        e('v_mov_b32 v4, 0')
        e('s_mov_b64 exec, 1')
        e('s_lshl_b32 s65, s64, 5')
        e(f's_lshl_b32 s66, {sCLS}, 2')
        e('s_add_u32 s65, s65, s66')
        e(f'buffer_store_dword v4, off, {WS}, s65 offset:{P_LN1} sc1')
        e('s_cmp_ge_u32 s64, 20')
        l = self.A.lab('z2')
        e(f's_cbranch_scc1 {l}')
        e(f'buffer_store_dword v4, off, {WS}, s65 offset:{P_LN1 + 44*32} sc1')
        e(f'{l}:')
        e('s_mov_b64 exec, -1')

    def ln1_items(self):
        e = self.A.e
        lp, done = self.A.lab('ln1'), self.A.lab('ln1d')
        e(f's_mul_i32 s66, {sCLS}, 5120')
        e(f'{lp}:')
        e(f's_mul_i32 s67, s64, {SEGB}')
        e('s_add_u32 s67, s67, s66')
        for p in range(2):
            for cg in range(5):
                e(f'buffer_load_dwordx2 {v(16+10*p+2*cg,2)}, v2, {SRA}, s67 offen offset:{p*2560+cg*256}')
        e(f's_add_u32 s68, s67, {XN1}')
        for p in range(2):
            e(f's_waitcnt vmcnt({5 if p == 0 else 5})')
            if p == 1:
                e('s_waitcnt vmcnt(5)')
            self.unpack(40, 16 + 10 * p, 10)
            self.ln_pair(40, 60 + 10 * p, 8)
            for cg in range(5):
                e(f'buffer_store_dwordx2 {v(60+10*p+2*cg,2)}, v2, {WS}, s68 offen offset:{p*2560+cg*256} sc1')
        e('s_waitcnt vmcnt(0)')
        e(f's_add_u32 s68, s65, {P_LN1}')
        self.signal('v4', 's68', 1)
        e('s_cmp_ge_u32 s64, 20')
        e(f's_cbranch_scc1 {done}')
        e('s_add_u32 s64, s64, 44')
        e(f's_add_u32 s65, s65, {44*32}')
        e(f's_branch {lp}')
        e(f'{done}:')

    def xn_consts(self, vdma, vrd):
        e = self.A.e
        e('v_lshrrev_b32 v1, 3, v0')
        e('v_and_b32 v2, 7, v0')
        e('v_xor_b32 v2, v2, v1')
        e(f's_and_b32 s60, {sW}, 1')
        e('v_xor_b32 v2, s60, v2')
        e(f's_lshl_b32 s60, {sW}, 3')
        e('v_add_u32 v1, s60, v1')
        e('v_mul_u32_u24 v1, 1280, v1')
        e(f'v_lshl_add_u32 {v(vdma)}, v2, 4, v1')
        e('v_bfe_u32 v1, v0, 3, 2')
        e('v_and_b32 v2, 7, v0')
        e('v_mul_u32_u24 v3, 10240, v1')
        e('v_lshl_add_u32 v3, v2, 7, v3')
        e('v_and_b32 v1, 1, v1')
        e('v_xor_b32 v2, v2, v1')
        e('v_lshrrev_b32 v1, 5, v0')
        e('v_xor_b32 v2, v2, v1')
        for q in range(4):
            e(f'v_xor_b32 v1, {2*q}, v2')
            e(f'v_lshl_add_u32 {v(vrd+q)}, v1, 4, v3')

    def xn_dma(self, vdma, ssoff, ldsbase):
        e = self.A.e
        e(f's_mul_i32 s60, {sW}, 10240')
        e(f's_add_u32 m0, s60, {ldsbase}')
        for cb in range(10):
            if cb:
                e('s_add_u32 m0, m0, 896')
            e(f'buffer_load_dwordx4 {v(vdma)}, {WS}, {ssoff} offen offset:{cb*128} sc1 lds')

    def tile_out(self, acc, pk, vw, vr, vg, soff, imm, relu=False):
        e = self.A.e
        for j in range(8):
            e(f'v_cvt_pk_bf16_f32 {v(pk+j)}, {v(acc+2*j)}, {v(acc+2*j+1)}')
        for j in range(4):
            e(f'ds_write_b64 {v(vw)}, {v(pk+2*j,2)} offset:{16*j}')
        e('s_waitcnt lgkmcnt(0)')
        e(f'ds_read_b128 {v(pk+8,4)}, {v(vr)}')
        e(f'ds_read_b128 {v(pk+12,4)}, {v(vr)} offset:1280')
        e('s_waitcnt lgkmcnt(1)')
        e(f'buffer_store_dwordx4 {v(pk+8,4)}, {v(vg)}, {WS}, {soff} offen offset:{imm} sc1')
        e('s_waitcnt lgkmcnt(0)')
        e(f'buffer_store_dwordx4 {v(pk+12,4)}, {v(vg+1)}, {WS}, {soff} offen offset:{imm} sc1')

    def tile_out_consts(self, vw, vr, vg, ldsbase):
        e = self.A.e
        e(f's_mul_i32 s60, {sW}, 2560')
        e(f's_add_u32 s60, s60, {ldsbase}')
        e('v_and_b32 v1, 31, v0')
        e('v_mul_u32_u24 v1, 80, v1')
        e('v_lshrrev_b32 v2, 5, v0')
        e('v_lshl_add_u32 v1, v2, 3, v1')
        e(f'v_add_u32 {v(vw)}, s60, v1')
        e('v_lshrrev_b32 v1, 2, v0')
        e('v_and_b32 v2, 3, v0')
        e('v_mul_u32_u24 v3, 80, v1')
        e('v_lshl_add_u32 v3, v2, 4, v3')
        e(f'v_add_u32 {v(vr)}, s60, v3')
        e('v_mul_u32_u24 v3, 1280, v1')
        e(f'v_lshl_add_u32 {v(vg)}, v2, 4, v3')
        e(f'v_add_u32 {v(vg+1)}, 20480, {v(vg)}')

    def tr_lane(self, dst, rowmul_hf, pitch, extra_s=None):
        e = self.A.e
        e('v_lshrrev_b32 v1, 5, v0')
        e(f'v_mul_u32_u24 v1, {rowmul_hf}, v1')
        e('v_bfe_u32 v2, v0, 2, 2')
        e('v_add_u32 v1, v1, v2')
        e(f'v_mul_u32_u24 v1, {pitch}, v1')
        e('v_bfe_u32 v2, v0, 4, 1')
        e('v_lshl_add_u32 v1, v2, 5, v1')
        e('v_and_b32 v2, 3, v0')
        e(f'v_lshl_add_u32 {dst}, v2, 3, v1')
        if extra_s:
            e(f'v_add_u32 {dst}, {extra_s}, {dst}')

    def build(self):
        e = self.A.e
        e(f'{NAME}_kernel:')
        e('s_cmp_ge_u32 s2, 256')
        e('s_cbranch_scc1 L_end')
        e('s_load_dwordx16 s[16:31], s[0:1], 0')
        e('s_load_dwordx8 s[32:39], s[0:1], 64')
        e('s_load_dwordx2 s[40:41], s[0:1], 96')
        e(f's_getreg_b32 {sCLS}, hwreg(HW_REG_XCC_ID, 0, 3)')
        e('v_lshrrev_b32 v1, 6, v0')
        e('v_and_b32 v0, 63, v0')
        e(f'v_readfirstlane_b32 {sW}, v1')
        e(f's_mov_b32 {sSPIN}, 0x200000')
        e(f's_mov_b32 {sFAST}, 0')
        e('s_waitcnt lgkmcnt(0)')
        e('s_mov_b32 s8, s40')
        e('s_and_b32 s9, s41, 0xffff')
        e(f's_mov_b32 s10, {WS_BYTES:#x}')
        e('s_mov_b32 s11, 0x20000')
        e('s_mov_b32 s12, s38')
        e('s_and_b32 s13, s39, 0xffff')
        e('s_mov_b32 s14, 256')
        e('s_mov_b32 s15, 0x20000')
        e('v_mov_b32 v3, 0')
        e(f's_cmp_lg_u32 {sW}, 0')
        e('s_cbranch_scc1 L_tk')
        e(f's_lshl_b32 s60, {sCLS}, 5')
        e('v_mov_b32 v2, 1')
        e('s_mov_b64 exec, 1')
        e(f'buffer_atomic_add v2, off, {DBG}, s60 sc0')
        e('s_waitcnt vmcnt(0)')
        e('ds_write_b32 v3, v2')
        e('s_waitcnt lgkmcnt(0)')
        e('s_mov_b64 exec, -1')
        e('L_tk:')
        e('s_barrier')
        e('ds_read_b32 v2, v3')
        e('s_waitcnt lgkmcnt(0)')
        e(f'v_readfirstlane_b32 {sSLOT}, v2')
        e('s_barrier')
        e(f's_cmp_ge_u32 {sSLOT}, 32')
        e('s_cbranch_scc1 L_fail')
        if self.diag:
            e(f's_lshl_b32 s97, {sCLS}, 5')
            e(f's_add_u32 s97, s97, {sSLOT}')
            e('s_lshl_b32 s97, s97, 2')
            e(f's_add_u32 s97, s97, {sW}')
            e('s_lshl_b32 s97, s97, 13')
            e(f's_add_u32 s97, s97, {TS if self.roles == "all" else XP2}')
            self.stamp(0, real=True)
        self.dbgtime(2)
        e(f's_cmp_lt_u32 {sSLOT}, 12')
        e('s_cbranch_scc1 L_chain')
        e(f's_cmp_lt_u32 {sSLOT}, 21')
        e('s_cbranch_scc1 L_qkv')
        self.ln1_phase()
        self.rest_roles()
        e('L_fail:')
        e('v_mov_b32 v2, 1')
        e('s_mov_b64 exec, 1')
        e(f'buffer_atomic_add v2, off, {DBG}, 0 offset:4')
        e('s_waitcnt vmcnt(0)')
        e('L_end:')
        e('s_endpgm')
        if self.on('chain'):
            self.role_chain()
        else:
            e('L_chain:')
            self.arrive()
            e('s_endpgm')
        self.role_qkv()
        if self.opt['fake16']:
            import re
            out = []
            cnt = {}
            inattn = False
            for l in self.A.lines:
                if l.startswith('L_at_loop'):
                    inattn = True
                if l.startswith('L_r:'):
                    inattn = False
                m = re.match(r'v_mfma_f32_32x32x16_bf16 v\[(\d+):(\d+)\], (\S+), (\S+), (\S+)', l)
                if m and not inattn:
                    d = int(m.group(1))
                    if m.group(5) == '0':
                        cnt[d] = 0
                    k = cnt[d]
                    cnt[d] += 1
                    for h in range(2):
                        r = d + 4 * h + 8 * (k & 1)
                        c = '0' if k < 2 else v(r, 4)
                        out.append(f'v_mfma_f32_16x16x32_bf16 {v(r,4)}, {m.group(3)}, {m.group(4)}, {c}')
                else:
                    out.append(l)
            self.A.lines = out
        n = self.A.pad()
        head = open(os.path.join(os.path.dirname(os.path.abspath(__file__)), 'head.txt')).read()
        out = head + '; @launch grid=(256,1,1) block=(256,1,1) lds=163840\n'
        out += '.amdgcn_target "amdgcn-amd-amdhsa--gfx950"\n.text\n'
        out += f'.globl {NAME}_kernel\n.p2align 8\n.type {NAME}_kernel,@function\n'
        out += self.A.text()
        out += f'''.section .rodata,"a"
.p2align 6
.amdhsa_kernel {NAME}_kernel
  .amdhsa_next_free_vgpr 512
  .amdhsa_next_free_sgpr 102
  .amdhsa_accum_offset 256
  .amdhsa_group_segment_fixed_size 0
  .amdhsa_kernarg_size 104
  .amdhsa_user_sgpr_count 2
  .amdhsa_user_sgpr_kernarg_segment_ptr 1
  .amdhsa_system_sgpr_workgroup_id_x 1
.end_amdhsa_kernel
'''
        return out, n


if __name__ == '__main__':
    import argparse
    ap = argparse.ArgumentParser()
    ap.add_argument('-o', default='out.s')
    ap.add_argument('--L', type=int, default=7)
    ap.add_argument('--A', type=int, default=7)
    ap.add_argument('--roles', default='all')
    ap.add_argument('--diag', action='store_true')
    ap.add_argument('--slow', action='store_true')
    ap.add_argument('--nsteps', type=int, default=None)
    ap.add_argument('--opt', default='')
    args = ap.parse_args()
    opt = {k: int(x) for k, x in (kv.split('=') for kv in args.opt.split(',') if kv)}
    g = Gen(opt=opt, L=args.L, A=args.A, roles=args.roles, diag=args.diag, nsteps=args.nsteps, force_slow=args.slow)
    txt, n = g.build()
    open(args.o, 'w').write(txt)
    print('wrote', args.o, len(txt), 'bytes; nop states inserted:', n)
```

```python
from common import *


class ChainMixin:
    def role_chain(self):
        e = self.A.e
        A = self.A
        L = self.L
        RQ = self.opt['rq']
        e('L_chain:')
        sHH, sP, sTILE, sS = 's64', 's65', 's66', 's67'
        sAGr, sAGw = 's68', 's69'
        sSw, sSa, sSb = 's71', 's73', 's74'
        sOw, sOr, sCw = 's75', 's77', 's78'
        sN1, sN2, sQ1, sQ2, sPF, sPCH = 's82', 's83', 's84', 's85', 's86', 's87'
        mL2, mINV, mT, mU = 's[88:89]', 's[90:91]', 's[92:93]', 's[94:95]'
        sHEAD = 's96'
        sK1, sK2 = 's42', 's43'
        sCR = ['s%d' % i for i in range(48, 55)]
        cAG, cAG4, cSw, cSa, cSb, cOw, cOr, cOr4, cCw, cAGw = 's55', 's56', 's57', 's58', 's59', 's70', 's72', 's76', 's79', 's80'
        sW5, sW6, sQW, sW10 = 's81', 's61', 's62', 's63'
        nAGw, cK1, cK2, rO, rS, rAG, xV0, xV1, xK = 's16', 's17', 's18', 's19', 's20', 's21', 's22', 's23', 's24'
        e(f's_mul_i32 {sHH}, {sSLOT}, 11')
        e(f's_lshr_b32 {sHH}, {sHH}, 5')
        e(f's_mul_i32 s60, {sHH}, 3')
        e(f's_sub_u32 {sP}, {sSLOT}, s60')
        e(f's_lshl_b32 {sTILE}, {sSLOT}, 2')
        e(f's_add_u32 {sTILE}, {sTILE}, {sW}')
        e(f's_lshl_b32 {sHEAD}, {sCLS}, 2')
        e(f's_add_u32 {sHEAD}, {sHEAD}, {sHH}')
        vVM, vL16, vTW, vGA, vGO, vFL, vK, SEL, vV, vKM = 1, 2, 3, 4, 5, 6, 7, 8, 12, 13
        e(f'v_lshlrev_b32 {v(vL16)}, 4, v0')
        e('v_and_b32 v16, 15, v0')
        e('v_lshrrev_b32 v17, 4, v0')
        e('v_lshlrev_b32 v18, 5, v16')
        e(f'v_lshl_add_u32 {v(vTW)}, v17, 3, v18')
        e('v_lshrrev_b32 v19, 1, v17')
        e('v_and_b32 v20, 1, v17')
        e('v_lshl_add_u32 v18, v19, 9, v18')
        e('v_lshl_add_u32 v18, v20, 4, v18')
        e(f's_mul_i32 s60, {sW}, 5120')
        e(f'v_add_u32 {v(vGA)}, s60, v18')
        e(f's_mul_i32 s60, {sW}, 6144')
        e(f'v_add_u32 {v(vGO)}, s60, v18')
        XB_ = self.opt['xb']
        if XB_:
            e(f's_mov_b32 {sAGr}, {AGG}')
        else:
            e(f's_mul_i32 s60, {sCLS}, {AG_C}')
            e(f's_add_u32 {sAGr}, s60, {CH_AG}')
        e(f's_lshl_b32 s61, {sTILE}, 9')
        e(f's_add_u32 {sAGw}, {sAGr}, s61')
        e(f's_mul_i32 s60, {sCLS}, {S_C}')
        e(f's_add_u32 s60, s60, {CH_S}')
        e(f's_lshl_b32 s61, {sW}, 10')
        e('s_add_u32 s60, s60, s61')
        e(f's_mul_i32 s61, {sSLOT}, 3072')
        e(f's_add_u32 {sSw}, s60, s61')
        e(f's_add_u32 s61, {sP}, 1')
        e('s_cmp_eq_u32 s61, 3')
        e('s_cselect_b32 s61, 0, s61')
        e(f's_mul_i32 s62, {sHH}, 3')
        e('s_add_u32 s63, s62, s61')
        e('s_mul_i32 s63, s63, 3072')
        e(f's_add_u32 {sSa}, s60, s63')
        e('s_add_u32 s61, s61, 1')
        e('s_cmp_eq_u32 s61, 3')
        e('s_cselect_b32 s61, 0, s61')
        e('s_add_u32 s63, s62, s61')
        e('s_mul_i32 s63, s63, 3072')
        e(f's_add_u32 {sSb}, s60, s63')
        e(f's_mul_i32 s60, {sCLS}, {O_C}')
        e(f's_add_u32 {sOr}, s60, {CH_O}')
        e(f's_lshl_b32 s61, {sTILE}, 9')
        e(f's_add_u32 {sOw}, {sOr}, s61')
        e(f's_lshl_b32 s60, {sTILE}, 12')
        e(f's_lshl_b32 s61, {sCLS}, 9')
        e('s_add_u32 s60, s60, s61')
        e(f's_add_u32 {sCw}, s60, {CH_CR}')
        e(f's_lshl_b32 s60, {sCLS}, 8')
        e(f's_lshl_b32 s61, {sTILE}, 2')
        e('s_add_u32 s60, s60, s61')
        e(f's_add_u32 {sPCH}, s60, {P_CH}')
        SENT = 24
        for r in range(4):
            e(f'v_mov_b32 v{SENT+r}, -1')
        e('v_mov_b32 v28, 0')
        e('s_mov_b64 exec, 1')
        e(f'buffer_store_dword v28, off, {WS}, {sPCH} sc1')
        e('s_mov_b64 exec, -1')
        for sl in range(2):
            e(f's_add_u32 s60, {sOw}, {sl*O_S}')
            e(f'buffer_store_dwordx2 {v(SENT,2)}, {v(vTW)}, {WS}, s60 offen sc1')
        l3 = A.lab('i3')
        e(f's_cmp_eq_u32 {sW}, 3')
        e(f's_cbranch_scc1 {l3}')
        for sl in range(2):
            e(f's_add_u32 s60, {sSw}, {sl*S_S}')
            e(f'buffer_store_dwordx4 {v(SENT,4)}, {v(vL16)}, {WS}, s60 offen sc1')
        e(f'{l3}:')
        l4 = A.lab('i4')
        e(f's_cmp_ge_u32 {sTILE}, 40')
        e(f's_cbranch_scc1 {l4}')
        for sl in range(2):
            e(f's_add_u32 s60, {sCw}, {sl*CR_S}')
            e(f'buffer_store_dwordx2 {v(SENT,2)}, {v(vTW)}, {WS}, s60 offen sc1')
            e(f's_add_u32 s60, {sAGw}, {(sl+1)*AG_S}')
            e(f'buffer_store_dwordx2 {v(SENT,2)}, {v(vTW)}, {WS}, s60 offen sc1')
        e(f'{l4}:')
        self.arrive()
        self.srd(SRA, 'wq')
        self.srd(SRB, 'wk')
        self.srd(SRC, 'wv')
        self.srd(SRD, 'wo')
        e('v_lshrrev_b32 v21, 3, v0')
        e('v_and_b32 v22, 7, v0')
        e(f's_mul_i32 s60, {sW}, 40')
        e('v_add_u32 v23, s60, v21')
        e('s_mov_b32 s61, 12288')
        e('v_mul_lo_u32 v30, s61, v23')
        e('v_lshl_add_u32 v30, v22, 4, v30')
        e(f's_mul_i32 s60, {sHEAD}, 384')
        e(f's_lshl_b32 s61, {sP}, 7')
        e('s_add_u32 s60, s60, s61')
        e('v_add_u32 v30, s60, v30')

        def unit(cn):
            buf = 102400 * (cn & 1)
            for m, srd in enumerate((SRA, SRB, SRC)):
                e(f's_mul_i32 s60, {sW}, 5120')
                e(f's_add_u32 m0, s60, {buf + 20480 * m}')
                e(f's_mov_b32 s61, {cn * 160 * 12288}')
                self.dma(5, 'v30', srd, 's61', 8 * 12288)
        unit(0)
        unit(1)
        self.stamp(2, real=True)
        e(f's_min_u32 s61, {sSLOT}, 9')
        e('s_lshl_b32 s61, s61, 7')
        e(f's_mul_i32 s60, {sCLS}, {768*1280}')
        e('s_add_u32 s60, s60, s61')
        e(f's_mul_i32 s61, {sW}, 192')
        e('v_add_u32 v23, s61, v21')
        e('v_mul_u32_u24 v31, 1280, v23')
        e('v_lshl_add_u32 v31, v22, 4, v31')
        e('v_add_u32 v31, s60, v31')
        e('v_bfe_u32 v21, v0, 2, 2')
        e('v_lshl_add_u32 v21, v17, 3, v21')
        e('v_lshlrev_b32 v21, 7, v21')
        e('v_bfe_u32 v22, v0, 1, 1')
        e('v_lshl_add_u32 v33, v22, 5, v21')
        e('v_and_b32 v22, 1, v0')
        e('v_lshl_add_u32 v33, v22, 3, v33')
        e(f's_lshr_b32 s60, {sW}, 1')
        e('s_lshl_b32 s60, s60, 6')
        e(f's_and_b32 s61, {sW}, 1')
        e('s_lshl_b32 s61, s61, 4')
        e('s_add_u32 s60, s60, s61')
        e('v_add_u32 v33, s60, v33')
        e('v_and_b32 v22, 3, v0')
        e('v_lshl_add_u32 v34, v22, 3, v21')
        e(f's_lshl_b32 s60, {sW}, 5')
        e('v_add_u32 v34, s60, v34')
        e('v_add_u32 v32, 102400, v33')
        e('v_add_u32 v35, 102400, v34')

        def Wo(k, n=4, u=0):
            r = 4 * k + 2 * u
            return a(240 + r, n) if r < 16 else v(176 + r - 16, n)

        def take(cn, n_left):
            e(f's_waitcnt vmcnt({n_left})')
            e('s_barrier')
            done = A.lab('tk')
            for w in range(4):
                nx = A.lab('tw')
                if w < 3:
                    e(f's_cmp_lg_u32 {sW}, {w}')
                    e(f's_cbranch_scc1 {nx}')
                gj = (cn - w) & 3
                for m in range(3):
                    ad = (('v33', 'v33', 'v34'), ('v32', 'v32', 'v35'))[cn & 1][m]
                    for j in range(5):
                        for u in range(2):
                            e(f'ds_read_b64_tr_b16 {a(80*m + 4*(5*gj+j) + 2*u, 2)}, {ad} offset:{20480*m + j*4096 + u*512}')
                if w < 3:
                    e(f's_branch {done}')
                    e(f'{nx}:')
            e(f'{done}:')
            e('s_waitcnt lgkmcnt(0)')
            e('s_barrier')

        def take_wo():
            e('s_waitcnt vmcnt(0)')
            e('s_barrier')
            for gj in range(4):
                e(f's_add_u32 s60, {sW}, {gj}')
                e('s_and_b32 s60, s60, 3')
                e('s_mul_i32 s60, s60, 24576')
                e('v_add_u32 v35, s60, v34')
                for j in range(6):
                    for u in range(2):
                        e(f'ds_read_b64_tr_b16 {Wo(6*gj+j, 2, u)}, v35 offset:{j*4096+u*512}')
            e('s_waitcnt lgkmcnt(0)')
            e('s_barrier')
        e('v_lshrrev_b32 v21, 3, v16')
        e('v_lshlrev_b32 v21, 4, v21')
        e('v_bfe_u32 v22, v16, 2, 1')
        e('v_lshl_add_u32 v21, v22, 2, v21')
        e('v_and_b32 v22, 3, v16')
        e('v_add_u32 v21, v21, v22')
        e(f's_and_b32 s60, {sW}, 1')
        e('s_lshl_b32 s60, s60, 3')
        e('v_add_u32 v21, s60, v21')
        e('v_lshl_add_u32 v21, v20, 5, v21')
        e('v_lshlrev_b32 v21, 4, v21')
        e('v_lshl_add_u32 v21, v19, 10, v21')
        e(f's_mul_i32 s60, {sHEAD}, {QKV_HEAD}')
        self.clsoff('s60', 's61', QKV_HEAD, self.QL2)
        e(f's_lshl_b32 s61, {sP}, 12')
        e('s_add_u32 s60, s60, s61')
        e('s_add_u32 s61, s60, 12288')
        e(f'v_add_u32 {v(vK)}, s61, v21')
        e(f's_and_b32 s62, {sW}, 1')
        e('s_lshl_b32 s62, s62, 4')
        e('v_add_u32 v21, s62, v16')
        e('v_lshl_add_u32 v22, v20, 5, v21')
        e('v_lshlrev_b32 v22, 4, v22')
        e('v_lshl_add_u32 v22, v19, 10, v22')
        e(f's_lshr_b32 s63, {sW}, 1')
        e('s_lshl_b32 s61, s63, 11')
        e('s_add_u32 s61, s61, s60')
        e('s_add_u32 s61, s61, 24576')
        e(f'v_add_u32 {v(vV)}, s61, v22')
        l2off = self.KL2
        e('v_lshlrev_b32 v21, 3, v21')
        e('v_lshl_add_u32 v21, v20, 8, v21')
        e(f's_mov_b32 s61, {l2off}')
        e('v_mul_lo_u32 v22, s61, v19')
        e('v_add_u32 v21, v21, v22')
        e(f's_mul_i32 s60, {sHEAD}, {KM_HEAD}')
        self.clsoff('s60', 's62', KM_HEAD, self.KL2)
        e(f's_lshl_b32 s62, {sP}, 10')
        e('s_add_u32 s60, s60, s62')
        e(f's_add_u32 s60, s60, {KMVM}')
        e('s_lshl_b32 s62, s63, 9')
        e('s_add_u32 s62, s62, s60')
        e('s_add_u32 s62, s62, 3072')
        e(f'v_add_u32 {v(vVM)}, s62, v21')
        e('v_lshrrev_b32 v21, 3, v16')
        e('v_mul_lo_u32 v21, s61, v21')
        e('v_and_b32 v22, 7, v16')
        e('v_lshl_add_u32 v21, v22, 4, v21')
        e('v_lshl_add_u32 v21, v17, 7, v21')
        e(f'v_add_u32 {v(vKM)}, s60, v21')
        e(f's_mul_i32 s60, {sHH}, 9')
        e(f's_add_u32 s60, s60, {sP}')
        e('s_add_u32 s60, s60, 3')
        e('v_and_b32 v21, 1, v0')
        e('v_mul_u32_u24 v21, 3, v21')
        e('v_add_u32 v21, s60, v21')
        e(f'v_lshlrev_b32 {v(vFL)}, 2, v21')
        e(f's_lshl_b32 s60, {sCLS}, 8')
        e(f's_add_u32 {sPF}, s60, {P_QKV}')
        e('s_mov_b32 s88, 0xff00ff00')
        e('s_mov_b32 s89, 0xff00ff00')
        e('s_mov_b32 s90, 0xff00ff00')
        e('s_mov_b32 s91, 0x00ff00ff')
        e('v_lshrrev_b32 v21, 2, v16')
        e('v_and_b32 v22, 3, v16')
        e('v_cmp_ne_u32 vcc, v21, v17')
        e('v_cndmask_b32 v22, v22, 15, vcc')
        e('v_mov_b32 v21, 0x3f80')
        e('v_mov_b32 v23, 0x3f800000')
        for d in range(2):
            e(f'v_cmp_eq_u32 vcc, {2*d}, v22')
            e(f'v_cndmask_b32 {v(SEL+d)}, 0, v21, vcc')
            e(f'v_cmp_eq_u32 vcc, {2*d+1}, v22')
            e(f'v_cndmask_b32 {v(SEL+d)}, {v(SEL+d)}, v23, vcc')
            e(f'v_mov_b32 {v(SEL+2+d)}, {v(SEL+d)}')
        take(0, 15)
        unit(2)
        self.stamp(3, real=True)
        take(1, 15)
        unit(3)
        self.stamp(4, real=True)
        take(2, 15)
        e(f's_mul_i32 s60, {sW}, 24576')
        e('s_mov_b32 m0, s60')
        e('s_mov_b32 s61, 0')
        self.dma(24, 'v31', SRD, 's61', 8 * 1280)
        self.stamp(5, real=True)
        take(3, 24)
        QA, KA, VA_, VMP = 16, 20, 24, 28
        KX, VX, QF, KF, G, MEM = 32, 48, 56, 64, 72, 96
        ONESQ = G + 20
        QX, KXL, SL, OL = 45056, 47104, 49152, 20480
        e('v_mov_b32 v58, 0')
        e('v_mov_b32 v59, 0')
        self.srd(SRA, 'mem0')
        for i in range(7):
            e(f's_add_u32 s60, {sCLS}, {i+1}')
            e('s_and_b32 s60, s60, 7')
            e('s_lshl_b32 s60, s60, 9')
            e(f's_lshl_b32 {sCR[i]}, {sTILE}, 12')
            e(f's_add_u32 {sCR[i]}, {sCR[i]}, s60')
            e(f's_add_u32 {sCR[i]}, {sCR[i]}, {CH_CR}')
        e(f's_mul_i32 s32, {sTILE}, 52')
        e('s_lshr_b32 s32, s32, 8')
        e(f's_cmp_eq_u32 s32, {sCLS}')
        e('s_cselect_b32 s32, 1, 0')
        for g in range(3):
            e(f's_add_u32 s60, {sW}, {g+1}')
            e('s_and_b32 s60, s60, 3')
            e(f's_mul_i32 s{33+g}, s60, 5120')
            e(f's_mul_i32 s{36+g}, s60, 6144')
        e(f's_mul_i32 s27, {sCLS}, 12')
        e(f's_add_u32 s27, s27, {sSLOT}')
        e('s_lshl_b32 s27, s27, 10')
        e(f's_add_u32 s27, s27, {SCRATCH}')
        e(f's_mul_i32 {sW5}, {sW}, 5120')
        e(f's_mul_i32 {sW6}, {sW}, 6144')
        e(f's_lshl_b32 {sW10}, {sW}, 10')
        e(f's_lshr_b32 {sQW}, {sW}, 1')
        e(f's_lshl_b32 {sQW}, {sQW}, 10')
        e(f's_and_b32 s60, {sW}, 1')
        e('s_lshl_b32 s60, s60, 3')
        e(f's_add_u32 {sQW}, {sQW}, s60')
        take_wo()
        self.stamp(6, real=True)
        self.wait_init('v21', 'v22', 's92')
        self.stamp(1, real=True)
        self.dbgtime(3)
        self.flush()
        e(f's_mov_b32 {sS}, 0')
        e(f's_mov_b32 {sK1}, 0')
        e(f's_mov_b32 {sK2}, 0')
        e(f's_cmp_eq_u32 {sFAST}, 0')
        e('s_cbranch_scc1 L_ch_init_s')

        def maxtree(dst, first, n):
            e(f'v_max3_u32 {dst}, {v(first)}, {v(first+1)}, {v(first+2)}')
            k = 3
            while k < n:
                if k + 1 < n:
                    e(f'v_max3_u32 {dst}, {dst}, {v(first+k)}, {v(first+k+1)}')
                    k += 2
                else:
                    e(f'v_max_u32 {dst}, {dst}, {v(first+k)}')
                    k += 1

        def maxtree2(d0, d1, first, n):
            h = n // 2
            maxtree(d0, first, h)
            maxtree(d1, first + h, n - h)
            e(f'v_max_u32 {d0}, {d0}, {d1}')

        def flagload():
            e(f'buffer_load_dword v58, {v(vFL)}, {WS}, {sPF} offen sc1')
            e(f'buffer_load_dword v59, {v(vFL)}, {WS}, {sPF} offen offset:2048 sc1')

        def flagtake():
            e(f'v_readlane_b32 {sK1}, v58, 0')
            e('v_readlane_b32 s92, v58, 1')
            e(f'v_readlane_b32 {sK2}, v59, 0')
            e('v_readlane_b32 s93, v59, 1')
            e(f's_min_u32 {sK1}, {sK1}, s92')
            e(f's_min_u32 {sK2}, {sK2}, s93')

        def Wo(k, n=4):
            r = 4 * k
            return a(240 + r, n) if r < 16 else v(176 + r - 16, n)

        def loop(md):
            X_ = '' if md == 'f' else ' sc1'
            tails = []

            def gather(tag, n, vsrc, s0, s4, vlds, ldsoff, young=None, ny=0, G=G, after=None):
                def ld(i):
                    so, im = (s0, 1024 * i) if i < 4 else (s4, 1024 * (i - 4))
                    e(f'buffer_load_dwordx4 {v(G+4*i,4)}, {v(vsrc)}, {WS}, {so} offen offset:{im} sc1')

                def chk(i):
                    e(f'v_max3_u32 v30, {v(G+4*i)}, {v(G+4*i+1)}, {v(G+4*i+2)}')
                    e(f'v_max_u32 v30, v30, {v(G+4*i+3)}')
                    e('v_cmp_eq_u32 vcc, -1, v30')
                for i in range(n):
                    ld(i)
                if young:
                    young()
                for i in range(n):
                    e(f's_waitcnt vmcnt({n-1-i+ny})')
                    e(f'L_{tag}c{i}_{md}:')
                    chk(i)
                    e(f's_cbranch_vccnz L_{tag}r{i}_{md}')
                    e(f'L_{tag}p{i}_{md}:')
                    e(f'ds_write_b128 {vlds}, {v(G+4*i,4)} offset:{ldsoff+1024*i}')
                    if after:
                        after(i)

                def tail():
                    for i in range(n):
                        e(f'L_{tag}r{i}_{md}:')
                        for j in range(i, n):
                            ld(j)
                        if self.opt['lean']:
                            e(f's_waitcnt vmcnt({n-1-i})')
                            e(f'L_{tag}l{i}_{md}:')
                            chk(i)
                            e(f's_cbranch_vccz L_{tag}p{i}_{md}')
                            ld(i)
                            e(f's_sub_u32 {sSPIN}, {sSPIN}, 1')
                            e('s_cbranch_scc1 L_fail')
                            e('s_waitcnt vmcnt(0)')
                            e(f's_branch L_{tag}l{i}_{md}')
                        else:
                            if ny:
                                flagload()
                            e(f's_sub_u32 {sSPIN}, {sSPIN}, 1')
                            e('s_cbranch_scc1 L_fail')
                            e(f's_waitcnt vmcnt({n-1-i+ny})')
                            e(f's_branch L_{tag}c{i}_{md}')
                tails.append(tail)

            def nextkv_steps():
                yield lambda: (e(f's_add_u32 s92, {sS}, 1'), e(f's_and_b32 s60, {sS}, {RQ-1}'))
                yield lambda: (e(f's_mul_i32 {sQ1}, s60, {QKV_SEG}'), e(f's_add_u32 {sQ1}, {sQ1}, {QKV}'))
                yield lambda: (e(f's_cmp_lt_u32 {sS}, 64'), e(f's_cselect_b32 {sN1}, s92, 0'),
                               e(f's_cselect_b32 {sQ1}, {sQ1}, s10'))
                yield lambda: (e(f's_sub_u32 s60, {sS}, {L}'), e(f's_and_b32 s60, s60, {RQ-1}'))
                yield lambda: (e(f's_mul_i32 {sQ2}, s60, {QKV_SEG}'), e(f's_add_u32 {sQ2}, {sQ2}, {QKV + self.QL2}'))
                yield lambda: (e(f's_sub_u32 s92, s92, {L}'), e(f's_cmp_ge_u32 {sS}, {L}'))
                yield lambda: (e(f's_cselect_b32 {sN2}, s92, 0'), e(f's_cselect_b32 {sQ2}, {sQ2}, s10'))
                yield lambda: (e(f's_cmp_ge_u32 {sS}, {64 + L}'), e(f's_cselect_b32 {sN2}, 0, {sN2}'),
                               e(f's_cselect_b32 {sQ2}, s10, {sQ2}'))

            def ready():
                e(f's_cmp_gt_u32 {sN1}, {sK1}')
                e('s_cselect_b32 s30, 1, 0')
                e(f's_cmp_gt_u32 {sN2}, {sK2}')
                e('s_cselect_b32 s30, 1, s30')

            kvl = [f'buffer_load_dwordx4 {v(KX,4)}, {v(vK)}, {WS}, {sQ1} offen sc1',
                   f'buffer_load_dwordx4 {v(KX+4,4)}, {v(vK)}, {WS}, {sQ1} offen offset:2048 sc1',
                   f'buffer_load_dwordx4 {v(KX+8,4)}, {v(vK)}, {WS}, {sQ2} offen sc1',
                   f'buffer_load_dwordx4 {v(KX+12,4)}, {v(vK)}, {WS}, {sQ2} offen offset:2048 sc1',
                   f'buffer_load_dwordx4 {v(VX,4)}, {v(vV)}, {WS}, {sQ1} offen sc1',
                   f'buffer_load_dwordx4 {v(VX+4,4)}, {v(vV)}, {WS}, {sQ2} offen sc1']

            def scalars():
                e(f's_and_b32 s60, {sS}, 3')
                e(f's_mul_i32 s92, {sS if XB_ else "s60"}, {AG_S}')
                e(f's_add_u32 {cAG}, s92, {sAGr}')
                e(f's_add_u32 {cAG4}, {cAG}, 4096')
                e(f's_mul_i32 s92, s60, {S_S}')
                e(f's_add_u32 {cSw}, s92, {sSw}')
                e(f's_add_u32 {cSa}, s92, {sSa}')
                e(f's_add_u32 {cSb}, s92, {sSb}')
                e(f's_mul_i32 s92, s60, {O_S}')
                e(f's_add_u32 {cOw}, s92, {sOw}')
                e(f's_add_u32 {cOr}, s92, {sOr}')
                e(f's_add_u32 {cOr4}, {cOr}, 4096')
                e('s_xor_b32 s60, s60, 2')
                e(f's_mul_i32 s92, s60, {O_S}')
                e(f's_add_u32 {rO}, s92, {sOw}')
                e(f's_mul_i32 s92, s60, {S_S}')
                e(f's_add_u32 {rS}, s92, {sSw}')
                e(f's_cmp_eq_u32 {sW}, 3')
                e(f's_cselect_b32 {rS}, s27, {rS}')
                e(f's_and_b32 s60, {sS}, {self.opt["crring"]-1}')
                e(f's_mul_i32 {cCw}, s60, {CR_S}')
                e(f's_add_u32 s92, {sS}, 1')
                e('s_and_b32 s93, s92, 3')
                e(f's_mul_i32 s94, {"s92" if XB_ else "s93"}, {AG_S}')
                e(f's_add_u32 {nAGw}, s94, {sAGw}')
                e('s_xor_b32 s93, s93, 2')
                e(f's_mul_i32 s94, s93, {AG_S}')
                e(f's_add_u32 {rAG}, s94, {sAGw}')
                e(f's_cmp_lt_u32 {sS}, 64')
                e(f's_cselect_b32 {xV0}, -1, 0')
                e(f's_cselect_b32 {xK}, 0x00ff00ff, 0')
                e(f's_cmp_ge_u32 {sS}, {L}')
                e(f's_cselect_b32 {xV1}, -1, 0')
                e('s_cselect_b32 s92, 0xff00ff00, 0')
                e(f's_or_b32 {xK}, {xK}, s92')
                e(f's_mov_b32 s25, {xK}')
                e(f's_and_b32 s60, {sS}, {RQ-1}')
                e(f's_mul_i32 {cK1}, s60, {KM_SEG}')
                e(f's_sub_u32 s60, {sS}, {L}')
                e(f's_and_b32 s60, s60, {RQ-1}')
                e(f's_mul_i32 {cK2}, s60, {KM_SEG}')
                e(f's_cmp_eq_u32 {sS}, 0')
                e('s_cselect_b32 s26, 1, 0')
                e(f's_cmp_eq_u32 {sS}, {L}')
                e('s_cselect_b32 s26, 1, s26')
                e(f'v_add_u32 v29, {sW5}, {v(vL16)}')

            e(f'L_ch_init_{md}:')
            for x in nextkv_steps():
                x()
            e('s_mov_b32 s30, 1')
            e(f's_mov_b32 s31, {6000 if self.opt["anchor"] else 16}')
            e('s_mov_b32 s28, 0')
            scalars()
            e(f'L_ch_step_{md}:')
            e('s_cmp_lg_u32 s26, 0')
            e(f's_cbranch_scc1 L_ch_sp_{md}')
            if self.opt['agdelay']:
                e(f's_sleep {self.opt["agdelay"]}')

            def qk(k):
                e(f'v_mfma_f32_16x16x32_bf16 {v(QA,4)}, {a(4*k,4)}, {v(MEM+4*k,4)}, {"0" if k==0 else v(QA,4)}')
                e(f'v_mfma_f32_16x16x32_bf16 {v(KA,4)}, {a(80+4*k,4)}, {v(MEM+4*k,4)}, {"0" if k==0 else v(KA,4)}')

            def agyoung():
                flagload()
                for g in range(3):
                    e(f'v_add_u32 {v(G+16+g)}, s{33+g}, {v(vL16)}')
            NPRE = self.opt['npre']
            gather('ag', 5, vGA, cAG, cAG4, 'v29', 0, agyoung, 2, MEM, lambda i: qk(i) if i < NPRE else None)
            e(f'L_ch_ag_{md}:')

            def special():
                e(f'L_ch_sp_{md}:')
                e('v_and_b32 v28, 7, v0')
                e('v_mul_u32_u24 v28, 1280, v28')
                e('v_lshrrev_b32 v30, 4, v0')
                e('v_lshl_add_u32 v28, v30, 4, v28')
                e(f's_mul_i32 s60, {sW}, 320')
                e('v_add_u32 v28, s60, v28')
                for i in range(5):
                    e(f'buffer_load_dwordx4 {v(G+4*i,4)}, v28, {SRA}, 0 offen offset:{64*i}')
                e(f's_mov_b64 {mT}, -1')
                e(f's_cmp_eq_u32 {sS}, 0')
                e(f's_cbranch_scc1 L_ch_sq_{md}')
                e(f's_mov_b64 {mT}, {mL2}')
                e(f'L_ch_sr_{md}:')
                for i in range(5):
                    so, im = (cAG, 1024 * i) if i < 4 else (cAG4, 0)
                    e(f'buffer_load_dwordx4 {v(MEM+4*i,4)}, {v(vGA)}, {WS}, {so} offen offset:{im} sc1')
                e('s_waitcnt vmcnt(0)')
                maxtree2('v28', 'v30', MEM, 20)
                e('v_cmp_eq_u32 vcc, -1, v28')
                e(f's_cbranch_vccz L_ch_sq_{md}')
                self.spin(f'L_ch_sr_{md}')
                e(f'L_ch_sq_{md}:')
                e('s_waitcnt vmcnt(0)')
                for i in range(20):
                    e(f'v_cndmask_b32 {v(MEM+i)}, {v(MEM+i)}, {v(G+i)}, {mT}')
                for i in range(5):
                    e(f'ds_write_b128 v29, {v(MEM+4*i,4)} offset:{1024*i}')
                agyoung()
                for i in range(NPRE):
                    qk(i)
                e(f's_branch L_ch_ag_{md}')
                e(f'L_ch_fl_{md}:')
                flagload()
                e('s_waitcnt vmcnt(0)')
                flagtake()
                ready()
                e('s_cmp_eq_u32 s30, 0')
                e(f's_cbranch_scc1 L_ch_fc_{md}')
                self.spin(f'L_ch_fl_{md}', 2)
            tails.append(special)
            self.stamp(7)
            self.note(11, sSPIN)
            self.flush()
            self.stamp(0)
            self.stamp(15, real=True)
            e('s_waitcnt lgkmcnt(0)')
            e('s_barrier')
            PF = 8

            def mrd(k):
                e(f'ds_read_b128 {v(MEM+4*k,4)}, {v(G + 15 + k//5)} offset:{1024*(k%5)}')
            for k in range(5, 5 + PF):
                mrd(k)
            e(f's_mov_b32 {cAGw}, {nAGw}')
            e('s_waitcnt vmcnt(0)')
            flagtake()
            ready()
            e('s_cmp_lg_u32 s30, 0')
            e(f's_cbranch_scc1 L_ch_fl_{md}')
            e(f'L_ch_fc_{md}:')
            kq = list(kvl)
            for k in range(NPRE, 5):
                qk(k)
                for _ in range(2):
                    if len(kq) > 2:
                        e(kq.pop(0))
            for k in range(5, 20):
                if k + PF < 20:
                    mrd(k + PF)
                e(f's_waitcnt lgkmcnt({min(PF, 19-k)})')
                qk(k)
                if kq and (len(kq) > 2 or k >= self.opt['vat']):
                    e(kq.pop(0))
                if 13 <= k < 17:
                    e(f'v_mov_b32 {v(ONESQ+k-13)}, 0x3f803f80')
                if k == 17:
                    e(f'v_add_u32 v30, {sQW}, {v(vL16)}')
                if k == 18:
                    e(f'v_add_u32 v31, {sW10}, {v(vL16)}')
            vk = [0]

            def vm(n):
                for _ in range(n):
                    k = vk[0]
                    if k < 20:
                        e(f'v_mfma_f32_16x16x32_bf16 {v(VA_,4)}, {v(MEM+4*k,4)}, {a(160+4*k,4)}, {"0" if k==0 else v(VA_,4)}')
                        vk[0] += 1
            vm(1)
            e(f'v_cvt_pk_bf16_f32 {v(G)}, {v(QA)}, {v(QA+1)}')
            e(f'v_cvt_pk_bf16_f32 {v(G+1)}, {v(QA+2)}, {v(QA+3)}')
            e(f'ds_write_b64 v30, {v(G,2)} offset:{QX}')
            e(f'v_cvt_pk_bf16_f32 {v(G+2)}, {v(KA)}, {v(KA+1)}')
            e(f'v_cvt_pk_bf16_f32 {v(G+3)}, {v(KA+2)}, {v(KA+3)}')
            e(f'ds_write_b64 v30, {v(G+2,2)} offset:{KXL}')
            vm(3)
            e('s_waitcnt lgkmcnt(0)')
            e('s_barrier')
            self.stamp(1)
            S4 = G + 4
            e(f'ds_read_b128 {v(QF,4)}, {v(vL16)} offset:{QX}')
            e(f'ds_read_b128 {v(QF+4,4)}, {v(vL16)} offset:{QX+1024}')
            e(f'ds_read_b128 {v(KF,4)}, {v(vL16)} offset:{KXL}')
            e(f'ds_read_b128 {v(KF+4,4)}, {v(vL16)} offset:{KXL+1024}')
            XA_ = G + 12
            def export_addr():
                e(f'v_mov_b32 {v(XA_+3)}, {cK1}')
                e(f'v_mov_b32 {v(XA_+2)}, {cK2}')
                e('s_mov_b32 s92, 0')
                e('s_mov_b32 s93, -1')
                e(f'v_cndmask_b32 {v(XA_)}, {v(XA_+3)}, {v(XA_+2)}, {mL2}')
                e(f'v_cndmask_b32 {v(XA_+1)}, {v(XA_+3)}, {v(XA_+2)}, {mT}')
                e(f'v_add_u32 {v(XA_)}, {v(XA_)}, {v(vKM)}')
                e(f'v_add_u32 {v(XA_+1)}, {v(XA_+1)}, {v(vVM)}')

            def export_v():
                e('s_mov_b64 exec, s[22:23]')
                e(f'buffer_store_dwordx2 {v(VMP,2)}, {v(XA_+1)}, {WS}, 0 offen{X_}')
                e('s_mov_b64 exec, -1')

            def export_k():
                e('s_mov_b64 exec, s[24:25]')
                e(f'buffer_store_dwordx4 {v(KF,4)}, {v(XA_)}, {WS}, 0 offen{X_}')
                e(f'buffer_store_dwordx4 {v(KF+4,4)}, {v(XA_)}, {WS}, 0 offen offset:512{X_}')
                e('s_mov_b64 exec, -1')

            vm(4)
            save = vk[0]
            R0, R1 = MEM + 16, MEM
            lw2, lw3, lwe = A.lab('w2'), A.lab('w3'), A.lab('we')

            def ld2(r):
                e(f'buffer_load_dwordx4 {v(r,4)}, {v(vL16)}, {WS}, {cSa} offen sc1')
                e(f'buffer_load_dwordx4 {v(r+4,4)}, {v(vL16)}, {WS}, {cSb} offen sc1')

            def exchange(mm):
                lsp, lso = A.lab('sp'), A.lab('so')
                e(f'buffer_store_dwordx4 {v(S4,4)}, {v(vL16)}, {WS}, {cSw} offen{X_}')
                self.xstamp(8)
                vm(self.opt['sv1'])
                ld2(R1)
                vm(20)
                if mm:
                    e('v_mov_b32 v28, 0xff800000')
                    for i in range(4):
                        e(f'v_cndmask_b32 {v(S4+4+i)}, {v(S4+i)}, v28, {mINV}')
                own = S4 + 4 if mm else S4
                ld2(R0)
                export_addr()

                def add(r):
                    e(f'v_pk_add_f32 {v(r+8,2)}, {v(r,2)}, {v(r+4,2)}')
                    e(f'v_pk_add_f32 {v(r+10,2)}, {v(r+2,2)}, {v(r+6,2)}')
                    e(f'v_cmp_u_f32 vcc, {v(r+8)}, {v(r+9)}')
                    e(f'v_cmp_u_f32 {mT}, {v(r+10)}, {v(r+11)}')
                    e(f'v_pk_add_f32 {v(QA,2)}, {v(own,2)}, {v(r+8,2)}')
                    e(f'v_pk_add_f32 {v(QA+2,2)}, {v(own+2,2)}, {v(r+10,2)}')
                    e(f's_or_b64 vcc, vcc, {mT}')
                e(f'v_cvt_pk_bf16_f32 {v(VMP)}, {v(VA_)}, {v(VA_+1)}')
                e(f'v_cvt_pk_bf16_f32 {v(VMP+1)}, {v(VA_+2)}, {v(VA_+3)}')
                e('s_waitcnt vmcnt(2)')
                self.xstamp(9)
                add(R1)
                e(f's_cbranch_vccnz {lsp}')
                e(f'{lso}:')
                self.stamp(12)
                self.note(8, sSPIN)
                e(f'ds_write_b128 v31, {v(QA,4)} offset:{SL}')

                def stail():
                    e(f'{lsp}:')
                    for r in (R1, R0):
                        maxtree2('v30', v(KA), r, 8)
                        e('v_cmp_eq_u32 vcc, -1, v30')
                        e(f's_cbranch_vccz {lso}')
                        ld2(r)
                        e('s_waitcnt vmcnt(2)')
                        add(R0 if r == R1 else R1)
                        e(f's_cbranch_vccz {lso}')
                    self.spin(lsp)
                tails.append(stail)
            e(f's_cmp_ge_u32 {sW}, 2')
            e(f's_cbranch_scc1 {lw2}')
            e('s_waitcnt vmcnt(2) lgkmcnt(2)')
            self.xstamp(10)
            e(f'v_mfma_f32_16x16x32_bf16 {v(QA,4)}, {v(KX,4)}, {v(QF,4)}, 0')
            e(f'v_mfma_f32_16x16x32_bf16 {v(KA,4)}, {v(KX+8,4)}, {v(QF,4)}, 0')
            e(f'v_mfma_f32_16x16x32_bf16 {v(QA,4)}, {v(KX+4,4)}, {v(QF+4,4)}, {v(QA,4)}')
            e(f'v_mfma_f32_16x16x32_bf16 {v(KA,4)}, {v(KX+12,4)}, {v(QF+4,4)}, {v(KA,4)}')
            vm(1)
            for i in range(4):
                e(f'v_cndmask_b32 {v(S4+i)}, {v(QA+i)}, {v(KA+i)}, {mL2}')
            exchange(False)
            e(f'{lwe}:')

            def others():
                e(f'{lw2}:')
                e(f's_cmp_eq_u32 {sW}, 3')
                e(f's_cbranch_scc1 {lw3}')
                e('s_waitcnt lgkmcnt(0)')
                e(f'v_mfma_f32_16x16x32_bf16 {v(S4,4)}, {v(KF,4)}, {v(QF,4)}, 0')
                e(f'v_mfma_f32_16x16x32_bf16 {v(S4,4)}, {v(KF+4,4)}, {v(QF+4,4)}, {v(S4,4)}')
                vk[0] = save
                vm(1)
                exchange(True)
                e(f's_branch {lwe}')
                e(f'{lw3}:')
                vk[0] = save
                vm(20)
                export_addr()
                e('s_waitcnt lgkmcnt(0)')
                export_k()
                e(f'v_cvt_pk_bf16_f32 {v(VMP)}, {v(VA_)}, {v(VA_+1)}')
                e(f'v_cvt_pk_bf16_f32 {v(VMP+1)}, {v(VA_+2)}, {v(VA_+3)}')
                e('s_waitcnt vmcnt(2)')
                e(f's_branch {lwe}')
            tails.append(others)
            e(f's_mov_b32 s60, {f2u(SCALE_LOG2E):#x}')
            e('s_waitcnt lgkmcnt(0)')
            e('s_barrier')
            self.stamp(2)
            X = G
            for t in range(3):
                e(f'ds_read_b128 {v(X+4*t,4)}, {v(vL16)} offset:{SL+1024*t}')
            export_v()
            e('s_waitcnt lgkmcnt(1)')
            e(f'v_max3_f32 v30, {v(X)}, {v(X+1)}, {v(X+2)}')
            e(f'v_max3_f32 v31, {v(X+3)}, {v(X+4)}, {v(X+5)}')
            e(f'v_max3_f32 v30, v30, {v(X+6)}, {v(X+7)}')
            e('s_waitcnt lgkmcnt(0)')
            e(f'v_max3_f32 v31, v31, {v(X+8)}, {v(X+9)}')
            e(f'v_max3_f32 v30, v30, {v(X+10)}, {v(X+11)}')
            e('v_max_f32 v30, v30, v31')
            e('v_mov_b32 v31, v30')
            e('v_permlane32_swap_b32 v31, v30')
            e('v_max_f32 v30, v30, v31')
            e('v_mov_b32 v31, v30')
            e('v_permlane16_swap_b32 v31, v30')
            e('v_max_f32 v30, v30, v31')
            e('v_mul_f32 v30, s60, v30')
            order = [8, 9, 10, 11, 0, 1, 2, 3, 4, 5, 6, 7]
            PX, PM = QF, QF + 4
            for i in order[:4]:
                e(f'v_fma_f32 {v(X+i)}, {v(X+i)}, s60, -v30')
            for n, i in enumerate(order):
                e(f'v_exp_f32 {v(X+i)}, {v(X+i)}')
                if n + 4 < 12:
                    j = order[n + 4]
                    e(f'v_fma_f32 {v(X+j)}, {v(X+j)}, s60, -v30')
                if n == 4:
                    e(f'v_cvt_pk_bf16_f32 {v(PM)}, {v(X+8)}, {v(X+9)}')
                    e(f'v_cvt_pk_bf16_f32 {v(PM+1)}, {v(X+10)}, {v(X+11)}')
                if n == 6:
                    e(f'v_mfma_f32_16x16x16_bf16 {v(VA_,4)}, {v(ONESQ,2)}, {v(PM,2)}, 0')
                if n == 7:
                    e(f'v_mfma_f32_16x16x16_bf16 {v(QA,4)}, {v(VMP,2)}, {v(PM,2)}, 0')
                    e(f'v_cvt_pk_bf16_f32 {v(PX)}, {v(X)}, {v(X+1)}')
                if n == 8:
                    e(f'v_mfma_f32_16x16x16_bf16 {v(KA,4)}, {v(VMP,2)}, {v(PM,2)}, 0')
                    e(f'v_cvt_pk_bf16_f32 {v(PX+1)}, {v(X+2)}, {v(X+3)}')
                if n == 10:
                    e(f'v_cvt_pk_bf16_f32 {v(PX+2)}, {v(X+4)}, {v(X+5)}')
            e(f'v_cvt_pk_bf16_f32 {v(PX+3)}, {v(X+6)}, {v(X+7)}')
            e(f'v_mfma_f32_16x16x32_bf16 {v(VA_,4)}, {v(ONESQ,4)}, {v(PX,4)}, {v(VA_,4)}')
            e(f'v_mfma_f32_16x16x32_bf16 {v(QA,4)}, {v(VX,4)}, {v(PX,4)}, {v(QA,4)}')
            e(f'v_mfma_f32_16x16x32_bf16 {v(KA,4)}, {v(VX+4,4)}, {v(PX,4)}, {v(KA,4)}')
            e(f'v_add_u32 v31, {sW6}, {v(vL16)}')
            e(f's_add_u32 {sS}, {sS}, 1')
            e(f'v_rcp_f32 v30, {v(VA_)}')
            for i in range(4):
                e(f'v_cndmask_b32 {v(X+i)}, {v(QA+i)}, {v(KA+i)}, {mL2}')
            for i in range(4):
                e(f'v_mul_f32 {v(X+i)}, {v(X+i)}, v30')
            e(f'v_cvt_pk_bf16_f32 {v(QF+6)}, {v(X)}, {v(X+1)}')
            e(f'v_cvt_pk_bf16_f32 {v(QF+7)}, {v(X+2)}, {v(X+3)}')
            e(f'v_min_u32 {v(QF+6)}, -2, {v(QF+6)}')
            e(f'v_min_u32 {v(QF+7)}, -2, {v(QF+7)}')
            e(f'buffer_store_dwordx2 {v(QF+6,2)}, {v(vTW)}, {WS}, {cOw} offen{X_}')
            self.stamp(3)

            def sig():
                e(f'v_mov_b32 v29, {sS}')
                e('s_mov_b64 exec, 1')
                e(f'buffer_store_dword v29, off, {WS}, {sPCH}{X_}')
                e('s_mov_b64 exec, -1')
            e(f's_cmp_ge_u32 {sSLOT}, 10')
            e(f's_cbranch_scc1 L_ch_noop_{md}')
            if self.opt['odelay']:
                e(f's_sleep {self.opt["odelay"]}')

            def op(k):
                b = v(G + 4 * k, 4) if k < 6 else v(MEM + 4 * (k - 6), 4)
                e(f'v_mfma_f32_16x16x32_bf16 {v(QA,4)}, {Wo(k)}, {b}, {"0" if k==0 else v(QA,4)}')

            def ogyoung():
                for g in range(3):
                    e(f'v_add_u32 {v(QF+3+g)}, s{36+g}, {v(vL16)}')
            OPRE = self.opt['opre']
            gather('og', 6, vGO, cOr, cOr4, 'v31', OL, ogyoung, 0, G, lambda i: op(i) if i < OPRE else None)
            self.stamp(13)
            self.note(9, sSPIN)
            e('s_waitcnt lgkmcnt(0)')
            e('s_barrier')
            self.stamp(4)

            def ord_(k):
                e(f'ds_read_b128 {v(MEM+4*(k-6),4)}, {v(QF + 3 + k//6 - 1)} offset:{OL+1024*(k%6)}')
            for k in range(6, 6 + PF):
                ord_(k)
            sig()
            for k in range(OPRE, 6):
                op(k)
            for k in range(6, 24):
                if k + PF < 24:
                    ord_(k + PF)
                e(f's_waitcnt lgkmcnt({min(PF, 23-k)})')
                op(k)
                if k == 16:
                    e(f'v_add_u32 v28, {cCw}, {v(vTW)}')
                if 17 <= k < 21:
                    e(f'v_mov_b32 {v(KA+k-17)}, -1')
            C = G
            e(f'v_cvt_pk_bf16_f32 {v(C)}, {v(QA)}, {v(QA+1)}')
            e(f'v_cvt_pk_bf16_f32 {v(C+1)}, {v(QA+2)}, {v(QA+3)}')
            e(f'v_min_u32 {v(C)}, -2, {v(C)}')
            e(f'v_min_u32 {v(C+1)}, -2, {v(C+1)}')
            e(f'buffer_store_dwordx2 {v(C,2)}, v28, {WS}, {sCw} offen sc1')
            self.stamp(5)

            def resets(full):
                e(f'buffer_store_dwordx2 {v(KA,2)}, {v(vTW)}, {WS}, {rO} offen{X_}')
                if full and not XB_:
                    e(f'buffer_store_dwordx2 {v(KA,2)}, {v(vTW)}, {WS}, {rAG} offen{X_}')
                e(f'buffer_store_dwordx4 {v(KA,4)}, {v(vL16)}, {WS}, {rS} offen{X_}')
                if not full:
                    e(f's_add_u32 s92, {sS}, 1')
                    e(f's_and_b32 s92, s92, {self.opt["crring"]-1}')
                    e(f's_mul_i32 s92, s92, {CR_S}')
                    e(f's_sub_u32 s93, {sTILE}, 40')
                    e('s_mul_i32 s93, s93, 20480')
                    e('s_add_u32 s92, s92, s93')
                    e(f's_lshl_b32 s93, {sCLS}, 9')
                    e('s_add_u32 s92, s92, s93')
                    e(f's_add_u32 s92, s92, {CH_CR}')
                    for i in range(5):
                        e(f'buffer_store_dwordx2 {v(KA,2)}, {v(vTW)}, {WS}, s92 offen sc1')
                        if i < 4:
                            e('s_add_u32 s92, s92, 4096')
                    if XB_:
                        lh = A.lab('h5')
                        e(f's_cmp_ge_u32 {sTILE}, 45')
                        e(f's_cbranch_scc1 {lh}')
                        e(f's_add_u32 s92, {sS}, 2')
                        e(f's_mul_i32 s92, s92, {AG_S}')
                        e(f's_mul_i32 s93, {sCLS}, 5')
                        e(f's_add_u32 s93, s93, {sTILE}')
                        e('s_sub_u32 s93, s93, 40')
                        e('s_lshl_b32 s93, s93, 9')
                        e('s_add_u32 s92, s92, s93')
                        e(f's_add_u32 s92, s92, {AGG}')
                        e(f'buffer_store_dwordx2 {v(KA,2)}, {v(vTW)}, {WS}, s92 offen sc1')
                        e(f'{lh}:')
            if self.diag:
                e('s_mov_b32 s100, 0')
            lcp, lco = A.lab('cp'), A.lab('co')
            C2 = MEM

            def cld(b=C):
                for i in range(7):
                    e(f'buffer_load_dwordx2 {v(b+2+2*i,2)}, v28, {WS}, {sCR[i]} offen sc1')

            def csum(extra, b=C):
                for j in range(4):
                    if extra is not None:
                        e(f's_waitcnt vmcnt({6-2*j+extra})')
                    e(f'v_mfma_f32_16x16x32_bf16 {v(QA,4)}, {v(SEL,4)}, {v(b+4*j,4)}, {"0" if j==0 else v(QA,4)}')

            def shadow():
                resets(True)
                for x in nextkv_steps():
                    x()
                scalars()
            if self.opt['dense']:
                if self.opt['cdelay']:
                    e(f's_sleep {self.opt["cdelay"]}')
                cld()
                shadow()
                e(f'v_mov_b32 {v(C2)}, {v(C)}')
                e(f'v_mov_b32 {v(C2+1)}, {v(C+1)}')
                if self.opt['cgap']:
                    e(f's_sleep {self.opt["cgap"]}')
                cld(C2)
                csum(10)
            else:
                shadow()
                if self.opt['cdelay']:
                    e(f's_sleep {self.opt["cdelay"]}')
                cld()
                csum(0)
            self.stamp(14)
            e(f'{lcp}:')
            e(f'v_cmp_u_f32 vcc, {v(QA)}, {v(QA+1)}')
            e(f'v_cvt_pk_bf16_f32 {v(VA_)}, {v(QA)}, {v(QA+1)}')
            e(f'v_cvt_pk_bf16_f32 {v(VA_+1)}, {v(QA+2)}, {v(QA+3)}')
            e(f's_cbranch_vccnz {lcp}x')
            e(f'{lco}:')

            def ctail():
                e(f'{lcp}x:')
                maxtree2(v(VA_ + 2), v(VA_ + 3), C + 2, 14)
                e(f'v_cmp_eq_u32 vcc, -1, {v(VA_+2)}')
                e(f's_cbranch_vccz {lco}')
                if not self.opt['dense']:
                    cld()
                    csum(0)
                    self.spin(lcp)
                    return
                e(f'{lcp}y:')
                for re_, ck_ in ((C, C2), (C2, C)):
                    cld(re_)
                    e('s_waitcnt vmcnt(7)')
                    maxtree2(v(VA_ + 2), v(VA_ + 3), ck_ + 2, 14)
                    e(f'v_cmp_eq_u32 vcc, -1, {v(VA_+2)}')
                    e(f's_cbranch_vccz {lcp}z{ck_}')
                self.spin(f'{lcp}y')
                for b in (C, C2):
                    e(f'{lcp}z{b}:')
                    csum(None, b)
                    e(f'v_cvt_pk_bf16_f32 {v(VA_)}, {v(QA)}, {v(QA+1)}')
                    e(f'v_cvt_pk_bf16_f32 {v(VA_+1)}, {v(QA+2)}, {v(QA+3)}')
                    e(f's_branch {lco}')
            tails.append(ctail)
            self.note(10, sSPIN)
            e(f'v_min_u32 {v(VA_)}, -2, {v(VA_)}')
            e(f'v_min_u32 {v(VA_+1)}, -2, {v(VA_+1)}')
            e(f'buffer_store_dwordx2 {v(VA_,2)}, {v(vTW)}, {WS}, {cAGw} offen{" sc1" if XB_ else X_}')
            self.stamp(6)
            e(f'L_ch_next_{md}:')
            if self.opt['dbgt']:
                for st, wd in ((1, 5), (L + 1, 9), (64, 10)):
                    l = A.lab('dx')
                    e(f's_cmp_lg_u32 {sS}, {st}')
                    e(f's_cbranch_scc1 {l}')
                    self.dbgtime(wd)
                    e(f'{l}:')
            e(f's_cmp_lt_u32 {sS}, {self.nsteps}')
            e(f's_cbranch_scc1 L_ch_step_{md}')
            self.dbgtime(6)
            e('s_endpgm')
            e(f'L_ch_noop_{md}:')
            for i in range(4):
                e(f'v_mov_b32 {v(KA+i)}, -1')
            for x in nextkv_steps():
                x()
            e('s_waitcnt vmcnt(0)')
            sig()
            resets(False)
            scalars()
            if self.opt['warm']:
                e(f's_sub_u32 s92, {sTILE}, 40')
                e('s_lshr_b32 s93, s92, 1')
                e(f's_lshl_b32 s94, {sCLS}, 2')
                e('s_add_u32 s93, s93, s94')
                e(f's_mul_i32 s93, s93, {QKV_HEAD}')
                self.clsoff('s93', 's94', QKV_HEAD, self.QL2)
                e('s_and_b32 s92, s92, 1')
                e('s_add_u32 s92, s92, 1')
                e('s_mul_i32 s92, s92, 12288')
                e('s_add_u32 s92, s92, s93')
                e(f's_add_u32 s92, s92, {sQ1}')
                for i in range(12):
                    e(f'buffer_load_dwordx4 {v(MEM+4*i,4)}, {v(vL16)}, {WS}, s92 offen offset:{1024*(i%4)} sc1')
                    if i % 4 == 3:
                        e('s_add_u32 s92, s92, 4096')
            e(f's_sleep {self.opt["hdelay"]}')
            e('s_waitcnt vmcnt(0)')
            e(f's_branch L_ch_next_{md}')
            k = 0
            while k < len(tails):
                tails[k]()
                k += 1
        loop('f')
        loop('s')
```

```python
NAME = 'interleave_layers__memory_aug_recurrent_mem_tr__dense_activation_relu__prompt'

P_LN1 = 0x0000
P_OPI = 0x4800
P_R1 = 0x5000
P_R2 = 0x5800
P_F = 0x6000
P_OP = 0x7000
P_AT = 0x2000
P_QKV = 0x3000
P_CH = 0x4000
CH_AG, AG_C, AG_S = 0x10000, 0x14000, 20480
CH_S, S_C, S_S = 0xB0000, 0x24000, 36864
CH_O, O_C, O_S = 0x1D0000, 0x18000, 24576
CH_CR, CR_S = 0x4A00000, 163840
XN1, XA, XNA, XB, XN2, XC, XNC = 0x400000, 0x680000, 0x900000, 0xB80000, 0xE00000, 0x1080000, 0x1300000
XP1, XP2, XP_S = 0x1600000, 0x2A00000, 327680
FP1, FP2, FP_S = 0xE000000, 0x3E00000, 163840
SCRATCH = 0x290000
AGG = 0x4800000
HB, HB_C, HB_S = 0x340000, 98304, 24576
RING = 64
KMVM, KM_SEG, KM_HEAD = 0x5700000, 24576, 6144
QKV, QKV_SEG, QKV_HEAD = 0x6F00000, 147456, 36864
TS = 0xA000000
WS_BYTES = 0x10000000
SEGB = 40960

sCLS, sW, sSLOT, sSPIN, sFAST = 's3', 's4', 's5', 's6', 's7'
WS, DBG = 's[8:11]', 's[12:15]'
SRA, SRB, SRC, SRD = 's[44:47]', 's[48:51]', 's[52:55]', 's[56:59]'
PTR = dict(x=16, mem0=18, wq=20, wk=22, wv=24, wo=26, w1=32, w2=34, out=36, dbg=38, ws=40)
NBYTES = dict(x=2621440, mem0=10240, wq=7864320, wk=7864320, wv=7864320, wo=7864320,
              w1=1966080, w2=1966080, out=2621440)
SCALE_LOG2E = (192 ** -0.5) * 1.4426950408889634


def f2u(x):
    import struct
    return struct.unpack('<I', struct.pack('<f', x))[0]


def v(i, n=1):
    return 'v%d' % i if n == 1 else 'v[%d:%d]' % (i, i + n - 1)


def a(i, n=1):
    return 'a%d' % i if n == 1 else 'a[%d:%d]' % (i, i + n - 1)


def s(i, n=1):
    return 's%d' % i if n == 1 else 's[%d:%d]' % (i, i + n - 1)
```

```python
from common import *


class QkvMixin:
    def role_qkv(self):
        e = self.A.e
        A = self.A
        e('L_qkv:')
        e(f's_sub_u32 s64, {sSLOT}, 12')
        e('s_lshl_b32 s64, s64, 2')
        e(f's_add_u32 s64, s64, {sW}')
        e(f's_lshl_b32 s65, {sCLS}, 8')
        e('s_lshl_b32 s66, s64, 2')
        e('s_add_u32 s65, s65, s66')
        e(f's_add_u32 s65, s65, {P_QKV}')
        e('s_add_u32 s66, s65, 2048')
        e('v_mov_b32 v4, 0')
        e('s_mov_b64 exec, 1')
        e(f'buffer_store_dword v4, off, {WS}, s65 sc1')
        e(f'buffer_store_dword v4, off, {WS}, s66 sc1')
        e('s_mov_b64 exec, -1')
        self.arrive()
        e('s_mul_i32 s67, s64, 57')
        e('s_lshr_b32 s67, s67, 9')
        e('s_mul_i32 s68, s67, 9')
        e('s_sub_u32 s68, s64, s68')
        e('s_mul_i32 s69, s68, 11')
        e('s_lshr_b32 s69, s69, 5')
        e('s_mul_i32 s70, s69, 3')
        e('s_sub_u32 s70, s68, s70')
        e(f's_lshl_b32 s71, {sCLS}, 2')
        e('s_add_u32 s71, s71, s67')
        e('s_cmp_eq_u32 s69, 1')
        e(f's_cselect_b32 s44, s{PTR["wk"]}, s{PTR["wq"]}')
        e(f's_cselect_b32 s45, s{PTR["wk"]+1}, s{PTR["wq"]+1}')
        e('s_cmp_eq_u32 s69, 2')
        e(f's_cselect_b32 s44, s{PTR["wv"]}, s44')
        e(f's_cselect_b32 s45, s{PTR["wv"]+1}, s45')
        e('s_and_b32 s45, s45, 0xffff')
        e(f's_mov_b32 s46, {NBYTES["wq"]}')
        e('s_mov_b32 s47, 0x20000')
        e('s_mul_i32 s72, s71, 384')
        e('s_lshl_b32 s73, s70, 7')
        e('s_add_u32 s72, s72, s73')
        e('v_lshrrev_b32 v1, 3, v0')
        e('v_mul_u32_u24 v1, 12288, v1')
        e('v_and_b32 v2, 7, v0')
        e('v_lshl_add_u32 v5, v2, 4, v1')
        e('v_add_u32 v5, s72, v5')
        e(f's_mul_i32 s73, {sW}, 40960')
        self.tr_lane('v6', 8, 128, 's73')

        def W(tl, k, u):
            r = 160 * tl + 4 * k + 2 * u
            return a(r, 2) if r < 256 else v(192 + r - 256, 2)

        def Wf(tl, k):
            r = 160 * tl + 4 * k
            return a(r, 4) if r < 256 else v(192 + r - 256, 4)

        def chunk_dma(q):
            e(f's_add_u32 m0, s73, {(q & 1) * 20480}')
            e(f's_mov_b32 s74, {q * 160 * 12288}')
            self.dma(20, 'v5', SRA, 's74', 8 * 12288)

        chunk_dma(0)
        chunk_dma(1)
        for q in range(4):
            e(f's_waitcnt vmcnt({20 if q < 3 else 0})')
            items = []
            for k in range(10):
                for tl in range(2):
                    for u in range(2):
                        items.append((W(tl, 10 * q + k, u), (q & 1) * 20480 + k * 2048 + u * 512 + tl * 64))
            self.trl(items, 'v6', 'v7')
            e('s_waitcnt lgkmcnt(0)')
            if q < 2:
                chunk_dma(q + 2)
        VD, VR = 8, 10
        self.xn_consts(VD, VR)
        e('v_lshlrev_b32 v9, 4, v0')
        e('v_and_b32 v5, 7, v0')
        e('v_lshlrev_b32 v5, 2, v5')
        e(f's_mul_i32 s72, s71, {QKV_HEAD}')
        self.clsoff('s72', 's73', QKV_HEAD, self.QL2)
        e('s_mul_i32 s73, s69, 12288')
        e('s_add_u32 s72, s72, s73')
        e('s_lshl_b32 s73, s70, 12')
        e('s_add_u32 s72, s72, s73')
        e(f's_add_u32 s72, s72, {QKV}')
        self.wait_init('v6', 'v7')
        e('s_barrier')
        self.stamp(1, real=True)
        self.flush()
        RQ = self.opt['rq']
        intra = self.opt['intra']
        assert self.L - RQ <= self.AH <= self.L + RQ or self.L >= 64
        BP = self.on('op') and not self.opt['unsafe']
        e('v_min_u32 v7, 4, v0')
        e('v_lshlrev_b32 v7, 2, v7')
        e(f's_lshl_b32 s82, {sCLS}, 7')
        e(f's_add_u32 s82, s82, {P_OPI}')
        e(f's_mul_i32 s83, {sW}, 10240')
        e(f's_mov_b32 s84, {P_R2}')
        ACC, PK, BR = (16, 48), 80, 96
        sP1, sP2, sO, sX1, sX2, sD, sNR, sNB = 's75', 's76', 's77', 's79', 's81', 's85', 's80', 's86'
        e('v_lshlrev_b32 v6, 2, v0')
        l0, l1 = A.lab('ln'), A.lab('lnok')
        e(f'{l0}:')
        for i in range(8):
            e(f'buffer_load_dword {v(16+i)}, v6, {WS}, 0 offen offset:{P_LN1 + 256*i} sc1')
        e('s_waitcnt vmcnt(0)')
        e('v_min3_u32 v16, v16, v17, v18')
        e('v_min3_u32 v19, v19, v20, v21')
        e('v_min3_u32 v16, v16, v22, v23')
        e('v_min_u32 v16, v16, v19')
        e('v_cmp_eq_u32 vcc, 0, v16')
        e(f's_cbranch_vccz {l1}')
        self.spin(l0, 2)
        e(f'{l1}:')

        def dma_one(i, ssrc, buf):
            if i == 0:
                e(f's_add_u32 m0, s83, {buf}')
            else:
                e('s_add_u32 m0, m0, 896')
            e(f'buffer_load_dwordx4 {v(VD)}, {WS}, {ssrc} offen offset:{i*128} sc1{" nt" if self.opt["xnt"] else ""} lds')

        sE, sOp, sNBp = 's87', 's88', 's89'

        def steps(buf, acc, isV, k0, k1, hooks):
            PF = 4
            if k0 == 0:
                for k in range(PF):
                    e(f'ds_read_b128 {v(BR+4*(k%8),4)}, {v(VR+(k&3))} offset:{buf+(k>>2)*1024}')
            for k in range(k0, k1):
                if k + PF < 40:
                    kk = k + PF
                    e(f'ds_read_b128 {v(BR+4*(kk%8),4)}, {v(VR+(kk&3))} offset:{buf+(kk>>2)*1024}')
                e(f's_waitcnt lgkmcnt({min(PF, 39-k)})')
                b = v(BR + 4 * (k % 8), 4)
                for tl in range(2):
                    d = v(acc + 16 * tl, 16)
                    c = '0' if k == 0 else d
                    if isV:
                        e(f'v_mfma_f32_32x32x16_bf16 {d}, {b}, {Wf(tl,k)}, {c}')
                    else:
                        e(f'v_mfma_f32_32x32x16_bf16 {d}, {Wf(tl,k)}, {b}, {c}')
                for h in hooks.get(k, []):
                    h()

        def epi_parts(acc, ly):
            def cv(tl, h):
                for j in range(4 * h, 4 * h + 4):
                    e(f'v_cvt_pk_bf16_f32 {v(PK+8*tl+j)}, {v(acc+16*tl+2*j)}, {v(acc+16*tl+2*j+1)}')

            def st(tl):
                if BP and tl == 0:
                    lok = A.lab('bp')
                    e(f'v_cmp_gt_u32 vcc, {sNBp}, v3')
                    e(f's_cbranch_vccz {lok}')
                    self.poll('v3', 'v7', 's82', sNBp, imm=32 * ly)
                    e(f'{lok}:')
                self.st_intra([f'buffer_store_dwordx4 {v(PK+8*tl+4*h,4)}, v9, {WS}, {sOp} offen offset:{tl*2048+h*1024}'
                               for h in range(2)])
            return [lambda: cv(0, 0), lambda: cv(0, 1), lambda: st(0), lambda: cv(1, 0), lambda: cv(1, 1), lambda: st(1)]

        def dest(ly, sidx):
            e(f's_and_b32 {sOp}, {sidx}, {RQ-1}')
            if ly:
                e(f's_add_u32 {sOp}, {sOp}, {RQ}')
            e(f's_mul_i32 {sOp}, {sOp}, {QKV_SEG}')
            e(f's_add_u32 {sOp}, {sOp}, s72')
            e(f's_sub_u32 {sNBp}, {sidx}, {RQ-1}')
            e(f's_cselect_b32 {sNBp}, 0, {sNBp}')

        def bpld(ly):
            if BP:
                e(f'buffer_load_dword v3, v7, {WS}, s82 offen offset:{32*ly} sc1')

        def guarded(f):
            def h():
                l = A.lab('ne')
                e(f's_cmp_eq_u32 {sE}, 0')
                e(f's_cbranch_scc1 {l}')
                f()
                e(f'{l}:')
            return h

        def sig_after(n, word, val):
            def h():
                e(f's_waitcnt vmcnt({n})')
                self.signal('v4', word, val, intra=intra)
            return h

        def flags_ld():
            e(f'buffer_load_dword v5, v6, {WS}, s84 offen sc1')
        KS = self.opt['qks']

        def body(isV):
            tag = 'v' if isV else 'q'
            e('v_and_b32 v6, 7, v0')
            e('v_lshlrev_b32 v6, 7, v6')
            e(f's_mov_b32 {sP1}, 0')
            e(f's_mov_b32 {sP2}, 0')
            e(f's_mov_b32 {sX1}, {XN1}')
            odd = self.AH & 1
            for i in range(10):
                dma_one(i, sX1, 40960 * odd)
            e('s_waitcnt vmcnt(0)')
            e('s_barrier')
            lp = f'L_qkv_a_{tag}'
            if odd:
                e(f's_branch {lp}1')
            e(f'{lp}:')
            for half in range(2):
                if half:
                    e(f'{lp}1:')
                e(f's_add_u32 {sX1}, {sX1}, {SEGB}')
                dest(0, sP1)
                hk = {i: [lambda i=i: dma_one(i, sX1, 40960 * (1 - half))] for i in range(10)}
                hk[12] = [lambda: bpld(0)]
                steps(40960 * half, ACC[half], isV, 0, 40, hk)
                e('s_waitcnt vmcnt(0)')
                for f in epi_parts(ACC[half], 0):
                    f()
                e(f's_add_u32 {sP1}, {sP1}, 1')
                sig_after(0, 's65', sP1)()
                e('s_barrier')
            e(f's_cmp_lt_u32 {sP1}, {self.AH}')
            e(f's_cbranch_scc1 {lp}')
            lp2, blk, got2, tail2 = f'L_qkv_b_{tag}', A.lab('blk'), A.lab('got2'), A.lab('tail')
            e(f's_mov_b32 {sE}, 0')
            e(f'{lp2}:')
            self.flush()
            e(f's_add_u32 {sNR}, {sP2}, 1')
            e(f's_mul_i32 {sX2}, {sP2}, {SEGB}')
            e(f's_add_u32 {sX2}, {sX2}, {XN2}')
            ep = epi_parts(ACC[1], 1)
            hk = {k: [guarded(ep[k])] for k in range(6)}
            hk[6] = [flags_ld]
            steps(0, ACC[0], isV, 0, KS, hk)
            sig_after(0, 's66', sP2)()
            dest(0, sP1)
            bpld(0)
            lA, lB2, lC, lD = A.lab('qa'), A.lab('qb'), A.lab('qc'), A.lab('qd')
            e(f'v_cmp_gt_u32 vcc, {sNR}, v5')
            e(f's_cbranch_vccz {lA}')
            K2 = KS + 12
            steps(0, ACC[0], isV, KS, K2, {KS + 3: [flags_ld]})
            e('s_waitcnt vmcnt(0)')
            e(f'v_cmp_gt_u32 vcc, {sNR}, v5')
            e(f's_cbranch_vccz {lB2}')
            steps(0, ACC[0], isV, K2, 40, {34: [flags_ld]})
            e('s_waitcnt vmcnt(0)')
            e(f's_add_u32 {sP1}, {sP1}, 1')
            e(f's_mov_b32 {sE}, 1')
            e(f'v_cmp_gt_u32 vcc, {sNR}, v5')
            e(f's_cbranch_vccz {lD}')
            for f in epi_parts(ACC[0], 0):
                f()
            flags_ld()
            self.stamp(4, real=True)
            sig_after(0, 's65', sP1)()
            e(f's_mov_b32 {sE}, 0')
            e(f'v_cmp_gt_u32 vcc, {sNR}, v5')
            e(f's_cbranch_vccz {lD}')
            e(f'{blk}:')
            if self.on('r'):
                flags_ld()
                e('s_waitcnt vmcnt(0)')
                e(f'v_cmp_gt_u32 vcc, {sNR}, v5')
                lb = A.lab('bok')
                e(f's_cbranch_vccz {lb}')
                self.spin(blk, self.opt['psleep'])
                e(f'{lb}:')
            e(f'{lD}:')
            self.stamp(0, real=True)
            for i in range(10):
                dma_one(i, sX2, 40960)
            e(f's_branch {got2}')
            e(f'{lB2}:')
            steps(0, ACC[0], isV, K2, 40, {K2 + i: [lambda i=i: dma_one(i, sX2, 40960)] for i in range(10)})
            e(f's_branch {lC}')
            e(f'{lA}:')
            steps(0, ACC[0], isV, KS, 40, {KS + 2 * i: [lambda i=i: dma_one(i, sX2, 40960)] for i in range(10)})
            e(f'{lC}:')
            e(f's_add_u32 {sP1}, {sP1}, 1')
            self.stamp(4, real=True)
            e(f's_mov_b32 {sE}, 1')
            e(f'{got2}:')
            e('s_waitcnt vmcnt(0)')
            e('s_barrier')
            self.stamp(1, real=True)
            ep = epi_parts(ACC[0], 0)
            hk = {k: [guarded(ep[k])] for k in range(6)}
            steps(40960, ACC[1], isV, 0, KS, hk)
            sig_after(0, 's65', sP1)()
            dest(1, sP2)
            bpld(1)
            e(f's_add_u32 {sP2}, {sP2}, 1')
            e(f's_cmp_ge_u32 {sP1}, 64')
            e(f's_cbranch_scc1 {tail2}')
            e(f's_add_u32 {sX1}, {sX1}, {SEGB}')
            steps(40960, ACC[1], isV, KS, 40, {KS + 2 * i: [lambda i=i: dma_one(i, sX1, 0)] for i in range(10)})
            self.stamp(2, real=True)
            e(f's_mov_b32 {sE}, 1')
            e('s_waitcnt vmcnt(0)')
            e('s_barrier')
            e(f's_branch {lp2}')
            e(f'{tail2}:')
            steps(40960, ACC[1], isV, KS, 40, {})
            e('s_waitcnt vmcnt(0)')
            for f in epi_parts(ACC[1], 1):
                f()
            self.stamp(2, real=True)
            sig_after(0, 's66', sP2)()
            self.stamp(3, real=True)
            e(f's_cmp_ge_u32 {sP2}, 64')
            e('s_cbranch_scc1 L_end')
            e('s_barrier')
            self.flush()
            e(f's_mov_b32 {sE}, 0')
            e(f's_add_u32 {sNR}, {sP2}, 1')
            e(f's_mul_i32 {sX2}, {sP2}, {SEGB}')
            e(f's_add_u32 {sX2}, {sX2}, {XN2}')
            e(f's_branch {blk}')

        e('s_cmp_eq_u32 s69, 2')
        e('s_cbranch_scc1 L_qkv_v')
        body(False)
        e('L_qkv_v:')
        body(True)
```

```python
from common import *


class WorkersMixin:
    def zero_word(self, soff):
        e = self.A.e
        e('v_mov_b32 v4, 0')
        e('s_mov_b64 exec, 1')
        e(f'buffer_store_dword v4, off, {WS}, {soff} sc1')
        e('s_mov_b64 exec, -1')

    def rest_roles(self):
        e = self.A.e
        e(f's_cmp_lt_u32 {sSLOT}, 26')
        e('s_cbranch_scc1 L_op')
        e(f's_cmp_lt_u32 {sSLOT}, 29')
        e('s_cbranch_scc1 L_f')
        table = [0, 1, 4, 8, 2, 5, 6, 9, 3, 7, 10, 11]
        lo = sum(t << (4 * i) for i, t in enumerate(table[:8]))
        hi = sum(t << (4 * i) for i, t in enumerate(table[8:]))
        e(f's_sub_u32 s70, {sSLOT}, 29')
        e('s_lshl_b32 s70, s70, 2')
        e(f's_add_u32 s70, s70, {sW}')
        e('s_lshl_b32 s70, s70, 2')
        e(f's_mov_b32 s72, {lo:#x}')
        e(f's_mov_b32 s73, {hi:#x}')
        e('s_lshr_b64 s[72:73], s[72:73], s70')
        e('s_and_b32 s70, s72, 15')
        e('s_lshr_b32 s71, s70, 2')
        e('s_lshl_b32 s71, s71, 10')
        e(f's_lshl_b32 s72, {sCLS}, 7')
        e('s_add_u32 s71, s71, s72')
        e('s_and_b32 s72, s70, 3')
        e('s_lshl_b32 s72, s72, 2')
        e('s_add_u32 s71, s71, s72')
        e(f's_add_u32 s71, s71, {P_AT}')
        e('s_and_b32 s72, s70, 1')
        e('s_lshl_b32 s72, s72, 11')
        e('s_bfe_u32 s73, s70, 0x10001')
        e('s_lshl_b32 s73, s73, 10')
        e('s_add_u32 s72, s72, s73')
        e(f's_lshl_b32 s73, {sCLS}, 7')
        e('s_add_u32 s72, s72, s73')
        e(f's_add_u32 s72, s72, {P_R1}')
        e('s_cmp_ge_u32 s70, 8')
        e('s_cselect_b32 s71, s72, s71')
        self.zero_word('s71')
        self.arrive()
        self.ln1_items()
        self.wait_init('v6', 'v7')
        e('s_cmp_ge_u32 s70, 8')
        e('s_cbranch_scc1 L_r')
        self.role_attn()
        self.role_r()
        self.role_op()
        self.role_f()

    def role_attn(self):
        e = self.A.e
        A = self.A
        L, RQ = self.L, self.opt['rq']
        if not self.on('attn'):
            e('s_endpgm')
            return
        sLY, sHH, sS, sB, sKB, sFQ, sFC, sT, sN = 's72', 's73', 's74', 's75', 's76', 's77', 's78', 's79', 's80'
        e(f's_lshr_b32 {sLY}, s70, 2')
        e(f's_and_b32 {sHH}, s70, 3')
        e(f's_lshl_b32 s60, {sCLS}, 2')
        e(f's_add_u32 s60, s60, {sHH}')
        e(f's_mul_i32 s81, s60, {QKV_HEAD}')
        self.clsoff('s81', 's61', QKV_HEAD, self.QL2)
        e(f's_mul_i32 s61, {sLY}, {self.QL2}')
        e('s_add_u32 s81, s81, s61')
        e(f's_add_u32 s81, s81, {QKV}')
        e(f's_mul_i32 s82, s60, {KM_HEAD}')
        self.clsoff('s82', 's61', KM_HEAD, self.KL2)
        e(f's_mul_i32 s61, {sLY}, {self.KL2}')
        e('s_add_u32 s82, s82, s61')
        e(f's_add_u32 s82, s82, {KMVM}')
        e(f's_lshl_b32 {sFQ}, {sLY}, 11')
        e(f's_lshl_b32 s61, {sCLS}, 8')
        e(f's_add_u32 {sFQ}, {sFQ}, s61')
        e(f's_mul_i32 s62, {sHH}, 36')
        e(f's_add_u32 {sFQ}, {sFQ}, s62')
        e(f's_add_u32 {sFQ}, {sFQ}, {P_QKV}')
        e(f's_mul_i32 s62, {sHH}, 48')
        e(f's_add_u32 {sFC}, s61, s62')
        e(f's_add_u32 {sFC}, {sFC}, {P_CH}')
        e(f's_mul_i32 s83, {sLY}, {L}')
        vL16, vL8, vKM, vFQ, vFC = 2, 3, 5, 6, 7
        e(f'v_lshlrev_b32 {v(vL16)}, 4, v0')
        e(f'v_lshlrev_b32 {v(vL8)}, 3, v0')
        e('v_and_b32 v8, 7, v0')
        e('v_lshrrev_b32 v9, 5, v0')
        e('v_lshlrev_b32 v8, 4, v8')
        e(f'v_lshl_add_u32 {v(vKM)}, v9, 7, v8')
        e('v_min_u32 v8, 8, v0')
        e(f'v_lshlrev_b32 {v(vFQ)}, 2, v8')
        e('v_min_u32 v8, 11, v0')
        e(f'v_lshlrev_b32 {v(vFC)}, 2, v8')
        BIAS, SX, SM, KMR, VMR, P, OA, PK = 16, 32, 48, 64, 112, 124, 136, 64
        e('v_and_b32 v8, 31, v0')
        e('v_lshlrev_b32 v9, 2, v9')
        e('v_sub_u32 v8, v8, v9')
        e('v_mov_b32 v10, 0xf149f2ca')
        for j in range(4):
            for i in range(4):
                e(f'v_cmp_gt_i32 vcc, {8*j+i}, v8')
                e(f'v_cndmask_b32 {v(BIAS+4*j+i)}, 0, v10, vcc')
        e(f's_mov_b32 s84, {f2u(SCALE_LOG2E):#x}')
        e(f's_mov_b32 {sS}, 0')
        e(f's_mov_b32 {sN}, 1')
        e('L_at_loop:')
        self.poll('v4', v(vFQ), sFQ, sN)
        e('L_at_go:')
        self.flush()
        self.stamp(0, real=True)
        e(f's_and_b32 s60, {sS}, {RQ-1}')
        e(f's_mul_i32 {sB}, s60, {QKV_SEG}')
        e(f's_add_u32 {sB}, {sB}, s81')
        e(f's_mul_i32 {sKB}, s60, {KM_SEG}')
        e(f's_add_u32 {sKB}, {sKB}, s82')
        order = [x for k in range(12) for x in (12 + k, k)] + list(range(24, 36))
        e(f's_add_u32 s85, {sB}, 4096')
        e(f's_add_u32 s86, {sB}, 8192')
        for g in range(3, 9):
            e(f's_add_u32 s{84+g}, {sB}, {4096*g}')
        for n in order:
            so = sB if n < 4 else f's{84 + n // 4}'
            e(f'buffer_load_dwordx4 {a(4*n,4)}, {v(vL16)}, {WS}, {so} offen offset:{1024*(n%4)} sc1')
        for k in range(12):
            e(f's_waitcnt vmcnt({34-2*k})')
            e(f'v_mfma_f32_32x32x16_bf16 {v(SX,16)}, {a(48+4*k,4)}, {a(4*k,4)}, {v(BIAS,16) if k==0 else v(SX,16)}')
        MX, LX = 12, 13
        e(f'v_max3_f32 v8, {v(SX)}, {v(SX+1)}, {v(SX+2)}')
        e(f'v_max3_f32 v9, {v(SX+3)}, {v(SX+4)}, {v(SX+5)}')
        for k in range(6, 14, 4):
            e(f'v_max3_f32 v8, v8, {v(SX+k)}, {v(SX+k+1)}')
            e(f'v_max3_f32 v9, v9, {v(SX+k+2)}, {v(SX+k+3)}')
        e(f'v_max3_f32 v8, v8, {v(SX+14)}, {v(SX+15)}')
        e('v_max_f32 v8, v8, v9')
        e('v_mov_b32 v9, v8')
        e('v_permlane32_swap_b32 v9, v8')
        e('v_max_f32 v8, v8, v9')
        e(f'v_mul_f32 {v(MX)}, s84, v8')
        for i in range(16):
            e(f'v_fma_f32 {v(SX+i)}, {v(SX+i)}, s84, -{v(MX)}')
        for i in range(16):
            e(f'v_exp_f32 {v(SX+i)}, {v(SX+i)}')
        for k in range(8):
            e(f'v_cvt_pk_bf16_f32 {v(P+k)}, {v(SX+2*k)}, {v(SX+2*k+1)}')
        e('s_waitcnt vmcnt(0)')
        for t in range(6):
            o = v(OA + 16 * t, 16)
            e(f'v_mfma_f32_32x32x16_bf16 {o}, {a(96+8*t,4)}, {v(P,4)}, 0')
            e(f'v_mfma_f32_32x32x16_bf16 {o}, {a(100+8*t,4)}, {v(P+4,4)}, {o}')
            if t == 0:
                e(f'v_pk_add_f32 v[8:9], {v(SX,2)}, {v(SX+2,2)}')
                e(f'v_pk_add_f32 v[10:11], {v(SX+4,2)}, {v(SX+6,2)}')
            if t in (1, 2):
                k = 4 + 4 * t
                e(f'v_pk_add_f32 v[8:9], v[8:9], {v(SX+k,2)}')
                e(f'v_pk_add_f32 v[10:11], v[10:11], {v(SX+k+2,2)}')
            if t == 3:
                e('v_pk_add_f32 v[8:9], v[8:9], v[10:11]')
                e(f'v_add_f32 {v(LX)}, v8, v9')
        e(f's_add_u32 {sN}, {sN}, s83')
        self.stamp(1, real=True)
        self.poll('v4', v(vFC), sFC, sN)
        self.stamp(2, real=True)
        if self.opt['at2delay']:
            e(f's_cmp_eq_u32 {sLY}, 0')
            e('s_cbranch_scc1 L_at_nd')
            e(f's_cmp_ge_u32 {sS}, {64 - L}')
            e('s_cbranch_scc1 L_at_nd')
            e(f's_sleep {self.opt["at2delay"]}')
            e('L_at_nd:')
        for k in range(12):
            e(f'buffer_load_dwordx4 {v(KMR+4*k,4)}, {v(vKM)}, {WS}, {sKB} offen offset:{256*k} sc1')
        e(f's_add_u32 {sT}, {sKB}, 3072')
        for t in range(6):
            e(f'buffer_load_dwordx2 {v(VMR+2*t,2)}, {v(vL8)}, {WS}, {sT} offen offset:{512*t} sc1')
        for k in range(12):
            e(f's_waitcnt vmcnt({17-k})')
            e(f'v_mfma_f32_32x32x16_bf16 {v(SM,16)}, {v(KMR+4*k,4)}, {a(4*k,4)}, {"0" if k==0 else v(SM,16)}')
        e(f'v_max3_f32 v8, {v(SM)}, {v(SM+1)}, {v(SM+2)}')
        e(f'v_max_f32 v8, v8, {v(SM+3)}')
        e('v_mov_b32 v9, v8')
        e('v_permlane32_swap_b32 v9, v8')
        e('v_max_f32 v8, v8, v9')
        e('v_mul_f32 v8, s84, v8')
        e(f'v_max_f32 v8, v8, {v(MX)}')
        e(f'v_sub_f32 v10, {v(MX)}, v8')
        for i in range(4):
            e(f'v_fma_f32 {v(SM+i)}, {v(SM+i)}, s84, -v8')
        e('v_exp_f32 v10, v10')
        for i in range(4):
            e(f'v_exp_f32 {v(SM+i)}, {v(SM+i)}')
        e(f'v_add_f32 v8, {v(SM)}, {v(SM+1)}')
        e(f'v_add_f32 v9, {v(SM+2)}, {v(SM+3)}')
        e(f'v_fma_f32 v8, {v(LX)}, v10, v8')
        e('v_add_f32 v8, v8, v9')
        e('v_mov_b32 v9, v8')
        e('v_permlane32_swap_b32 v9, v8')
        e('v_add_f32 v8, v8, v9')
        e('v_rcp_f32 v8, v8')
        e('s_nop 0')
        e('v_mul_f32 v10, v10, v8')
        for i in range(4):
            e(f'v_mul_f32 {v(SM+i)}, {v(SM+i)}, v8')
        e('v_mov_b32 v11, v10')
        e(f'v_cvt_pk_bf16_f32 {v(P+8)}, {v(SM)}, {v(SM+1)}')
        e(f'v_cvt_pk_bf16_f32 {v(P+9)}, {v(SM+2)}, {v(SM+3)}')
        self.stamp(3, real=True)

        def pv(t):
            o = OA + 16 * t
            for k in range(0, 16, 2):
                e(f'v_pk_mul_f32 {v(o+k,2)}, {v(o+k,2)}, v[10:11]')
            if t == 0:
                e('s_waitcnt vmcnt(0)')
            e(f'v_mfma_f32_32x32x8_bf16 {v(o,16)}, {v(VMR+2*t,2)}, {v(P+8,2)}, {v(o,16)}')

        def fin(t):
            o = OA + 16 * t
            pk = PK + 8 * t
            for j in range(8):
                e(f'v_cvt_pk_bf16_f32 {v(pk+j)}, {v(o+2*j)}, {v(o+2*j+1)}')
            if t % 2 == 0:
                e(f's_add_u32 {sT}, {sB}, {2048*t}')
            return [f'buffer_store_dwordx4 {v(pk+4*h,4)}, {v(vL16)}, {WS}, {sT} offen offset:{(t%2)*2048+1024*h}'
                    for h in range(2)]
        for md in ('f', 's'):
            if md == 'f':
                e(f's_cmp_eq_u32 {sFAST}, 0')
                e('s_cbranch_scc1 L_at_os')
            else:
                e('L_at_os:')
            sfx = '' if md == 'f' and self.opt['intra'] else ' sc1'
            pv(0)
            pv(1)
            for t in range(6):
                if t + 2 < 6:
                    pv(t + 2)
                for x in fin(t):
                    e(x + sfx)
            if md == 'f':
                e('s_branch L_at_oe')
        e('L_at_oe:')
        self.stamp(4, real=True)
        e(f'buffer_load_dword v11, {v(vFQ)}, {WS}, {sFQ} offen sc1')
        e(f's_add_u32 {sS}, {sS}, 1')
        e(f's_add_u32 {sN}, {sS}, 1')
        e('s_waitcnt vmcnt(0)')
        self.signal('v4', 's71', sS, intra=self.opt['intra'])
        self.stamp(5, real=True)
        e(f's_cmp_ge_u32 {sS}, 64')
        e('s_cbranch_scc1 L_end')
        e(f'v_cmp_gt_u32 vcc, {sN}, v11')
        e('s_cbranch_vccz L_at_go')
        e('s_branch L_at_loop')

    def role_r(self):
        e = self.A.e
        A = self.A
        e('L_r:')
        if not self.on('r'):
            e('s_endpgm')
            return
        sK, sS, sPB, sPM, sPSt, sFl, sRB, sXB, sNB, sT, sU, sN = ['s%d' % i for i in range(72, 84)]
        e(f's_and_b32 {sK}, s70, 3')

        def pick(dst, vals):
            e(f's_mov_b32 {dst}, {vals[0]}')
            for k in range(1, 4):
                e(f's_cmp_eq_u32 {sK}, {k}')
                e(f's_cselect_b32 {dst}, {vals[k]}, {dst}')
        pick(sPB, [XP1, FP1, XP2, FP2])
        pick(sPM, [self.opt['ring'] - 1, self.opt['ring'] - 1, 63, 63])
        pick(sPSt, [XP_S, FP_S, XP_S, FP_S])
        pick(sFl, [P_OP, P_F, P_OP + 8192, P_F + 2048])
        pick(sRB, [0, XA, XB, XC])
        pick(sXB, [XA, XB, XC, 0])
        pick(sNB, [XNA, XN2, XNC, 0])
        e(f's_mul_i32 s60, {sCLS}, 5120')
        for r in (sPB, sRB, sXB, sNB):
            e(f's_add_u32 {r}, {r}, s60')
        e(f's_cmp_eq_u32 {sK}, 0')
        e(f's_cselect_b32 s48, s{PTR["x"]}, s40')
        e(f's_cselect_b32 s49, s{PTR["x"]+1}, s41')
        e(f's_cselect_b32 s50, {NBYTES["x"]}, s10')
        e('s_and_b32 s49, s49, 0xffff')
        e('s_mov_b32 s51, 0x20000')
        e(f's_cmp_eq_u32 {sK}, 3')
        e(f's_cselect_b32 s52, s{PTR["out"]}, s40')
        e(f's_cselect_b32 s53, s{PTR["out"]+1}, s41')
        e(f's_cselect_b32 s54, {NBYTES["out"]}, s10')
        e('s_and_b32 s53, s53, 0xffff')
        e('s_mov_b32 s55, 0x20000')
        e('v_bfe_u32 v5, v0, 4, 1')
        e('v_lshrrev_b32 v6, 5, v0')
        e('v_mul_u32_u24 v6, 1280, v6')
        e('v_and_b32 v7, 15, v0')
        e('v_lshl_add_u32 v6, v7, 4, v6')
        e('v_lshl_add_u32 v2, v5, 8, v6')
        e('v_mul_u32_u24 v5, 40960, v5')
        e('v_add_u32 v3, v5, v6')
        e(f's_and_b32 s60, {sK}, 1')
        e('s_cmp_eq_u32 s60, 0')
        e('s_cselect_b32 s60, 39, 11')
        e('v_min_u32 v12, s60, v0')
        e('v_lshlrev_b32 v5, 7, v12')
        e('v_cmp_ge_u32 s[84:85], s60, v0')
        e('v_bfe_u32 v12, v0, 3, 1')
        e('v_lshrrev_b32 v13, 5, v0')
        e('v_and_b32 v56, 7, v0')
        e('v_cmp_ne_u32 vcc, v12, v13')
        e('v_cndmask_b32 v56, v56, 15, vcc')
        e('v_mov_b32 v12, 0x3f80')
        e('v_mov_b32 v13, 0x3f800000')
        for d in range(4):
            e(f'v_cmp_eq_u32 vcc, {2*d}, v56')
            e(f'v_cndmask_b32 {v(8+d)}, 0, v12, vcc')
            e(f'v_cmp_eq_u32 vcc, {2*d+1}, v56')
            e(f'v_cndmask_b32 {v(8+d)}, {v(8+d)}, v13, vcc')
        ACC, PB, RES = 16, 60, 220
        e('v_bfe_u32 v1, v0, 4, 1')
        e('v_lshl_add_u32 v1, v1, 3, v6')

        def swaps(base):
            for o in (0, 4):
                e(f'v_permlane16_swap_b32 {v(base+o)}, {v(base+o+2)}')
                e(f'v_permlane16_swap_b32 {v(base+o+1)}, {v(base+o+3)}')

        def rowio(op, base, srd, so, p):
            e(f'buffer_{op}_dwordx4 {v(base,4)}, v2, {srd}, {so} offen offset:{2560*p} sc1')
            e(f'buffer_{op}_dwordx4 {v(base+4,4)}, v2, {srd}, {so} offen offset:{2560*p+512} sc1')
            e(f'buffer_{op}_dwordx2 {v(base+8,2)}, v1, {srd}, {so} offen offset:{2560*p+1024} sc1')

        def loads(p, nj):
            for j in range(nj):
                for cg in range(5):
                    e(f'buffer_load_dwordx4 {v(PB+80*p+20*j+4*cg,4)}, v3, {WS}, s{86+j} offen offset:{p*2560+cg*256} sc1{" nt" if self.opt["rnt"] else ""}')

        def mm(p, nj, left):
            for j in range(nj):
                for cg in range(5):
                    e(f's_waitcnt vmcnt({left + 5*nj - 1 - 5*j - cg})')
                    d = v(ACC + 20 * p + 4 * cg, 4)
                    e(f'v_mfma_f32_16x16x32_bf16 {d}, v[8:11], {v(PB+80*p+20*j+4*cg,4)}, {"0" if j==0 else d}')

        def flags():
            if self.opt['ratom']:
                e('v_mov_b32 v56, -1')
                e('s_mov_b64 exec, s[84:85]')
                e('v_mov_b32 v56, 0')
                e(f'buffer_atomic_add v56, v5, {WS}, {sFl} offen sc0')
                e('s_mov_b64 exec, -1')
            else:
                e(f'buffer_load_dword v56, v5, {WS}, {sFl} offen sc1')

        def check(ok):
            e(f'v_cmp_gt_u32 vcc, {sN}, v56')
            e(f's_cbranch_vccz {ok}')
        e(f's_mov_b32 {sS}, 0')
        e(f's_mov_b32 {sN}, 1')
        e('L_r_poll:')
        flags()
        e('s_waitcnt vmcnt(0)')
        check('L_r_go')
        self.spin('L_r_poll', self.opt['psleep'])
        e('L_r_go:')
        self.flush()
        self.stamp(0, real=True)
        e(f's_and_b32 {sT}, {sS}, {sPM}')
        e(f's_mul_i32 {sT}, {sT}, {sPSt}')
        e(f's_add_u32 {sT}, {sT}, {sPB}')
        e(f's_mul_i32 {sU}, {sS}, {SEGB}')
        e(f's_add_u32 s60, {sU}, {sRB}')
        e(f's_mov_b32 s86, {sT}')
        for j in range(1, 4):
            e(f's_add_u32 s{86+j}, {sT}, {81920*j}')
        e(f's_add_u32 s61, {sU}, {sNB}')
        e(f's_add_u32 s62, {sU}, {sXB}')
        exact = self.opt['exact']

        def post(p, ln):
            T0 = PB
            XPK, NPK, TT = T0 + 4 + 32 * p, T0 + 16 + 32 * p, T0 + 72
            swaps(RES + 10 * p)
            for k in range(10):
                x = ACC + 20 * p + 2 * k
                r = RES + 10 * p + k
                e(f'v_lshlrev_b32 {v(T0)}, 16, {v(r)}')
                e(f'v_and_b32 {v(T0+1)}, 0xffff0000, {v(r)}')
                if exact:
                    e(f'v_cvt_pk_bf16_f32 {v(T0+2)}, {v(x)}, {v(x+1)}')
                    e(f'v_lshlrev_b32 {v(x)}, 16, {v(T0+2)}')
                    e(f'v_and_b32 {v(x+1)}, 0xffff0000, {v(T0+2)}')
                e(f'v_pk_add_f32 {v(x,2)}, {v(x,2)}, {v(T0,2)}')
                e(f'v_cvt_pk_bf16_f32 {v(XPK+k)}, {v(x)}, {v(x+1)}')
            if ln:
                if exact:
                    self.unpack(ACC + 20 * p, XPK, 10)
                self.ln_pair(ACC + 20 * p, NPK, TT)
                swaps(NPK)
                rowio('store', NPK, WS, 's61', p)
            swaps(XPK)
            rowio('store', XPK, SRC, 's62', p)

        for tag, nj, ln in (('a', 4, True), ('b', 2, True), ('c', 2, False)):
            if tag == 'a':
                e(f's_bitcmp1_b32 {sK}, 0')
                e('s_cbranch_scc1 L_r_b')
            elif tag == 'b':
                e('L_r_b:')
                e(f's_cmp_eq_u32 {sK}, 3')
                e('s_cbranch_scc1 L_r_c')
            else:
                e('L_r_c:')
            rowio('load', RES, SRB, 's60', 0)
            loads(0, nj)
            rowio('load', RES + 10, SRB, 's60', 1)
            loads(1, nj)
            mm(0, nj, 3 + 5 * nj)
            self.stamp(1, real=True)
            post(0, ln)
            mm(1, nj, 6 if ln else 3)
            post(1, ln)
            if tag != 'c':
                e('s_branch L_r_end')
        e('L_r_end:')
        self.stamp(2, real=True)
        flags()
        e(f's_add_u32 {sS}, {sS}, 1')
        e(f's_add_u32 {sN}, {sS}, 1')
        e('s_waitcnt vmcnt(0)')
        self.signal('v4', 's71', sS)
        self.stamp(3, real=True)
        self.dbgtime(7)
        e(f's_cmp_ge_u32 {sS}, 64')
        e('s_cbranch_scc1 L_end')
        check('L_r_go')
        e('s_branch L_r_poll')

    def role_op(self):
        e = self.A.e
        A = self.A
        L, RQ = self.L, self.opt['rq']
        e('L_op:')
        sJ, sF0, sF1, sN, sT, sO, sA0 = 's70', 's71', 's72', 's73', 's74', 's75', 's76'
        e(f's_sub_u32 {sJ}, {sSLOT}, 21')
        e(f's_mul_i32 s60, {sCLS}, 5')
        e(f's_add_u32 s60, s60, {sJ}')
        e('s_lshl_b32 s60, s60, 7')
        e(f's_add_u32 {sF0}, s60, {P_OP}')
        e(f's_add_u32 {sF1}, {sF0}, 8192')
        self.zero_word(sF0)
        self.zero_word(sF1)
        e(f's_lshl_b32 s85, {sCLS}, 7')
        e(f's_lshl_b32 s60, {sJ}, 2')
        e('s_add_u32 s85, s85, s60')
        e(f's_add_u32 s85, s85, {P_OPI}')
        e('s_add_u32 s86, s85, 32')
        self.zero_word('s85')
        self.zero_word('s86')
        self.arrive()
        self.ln1_items()
        if not self.on('op'):
            e('s_endpgm')
            return
        if self.opt['hold']:
            self.wait_init('v6', 'v7')
            e(f's_lshl_b32 s60, {sCLS}, 8')
            e(f's_add_u32 s60, s60, {P_QKV}')
            e('v_mov_b32 v6, 12')
            self.poll('v4', 'v6', 's60', 1, sleep=8)
        self.srd(SRA, 'wo')
        e('v_lshrrev_b32 v1, 4, v0')
        e(f's_lshl_b32 s60, {sW}, 6')
        e('v_add_u32 v1, s60, v1')
        e('v_mul_u32_u24 v1, 1280, v1')
        e('v_and_b32 v2, 15, v0')
        e('v_lshl_add_u32 v5, v2, 4, v1')
        e(f's_mul_i32 s60, {sCLS}, {768*1280}')
        e(f's_lshl_b32 s61, {sJ}, 8')
        e('s_add_u32 s60, s60, s61')
        e('v_add_u32 v5, s60, v5')
        e(f's_lshl_b32 s62, {sW}, 6')
        self.tr_lane('v6', 4, 256, 's62')

        def stage(c):
            e(f's_lshl_b32 s60, {sW}, 14')
            e(f's_add_u32 m0, s60, {(c & 1) * 65536}')
            e(f's_mov_b32 s61, {c * 256 * 1280}')
            self.dma(16, 'v5', SRA, 's61', 4 * 1280)

        def take(c, left):
            e(f's_waitcnt vmcnt({left})')
            e('s_barrier')
            self.trl([(a(4 * (16 * c + k) + 2 * u, 2), (c & 1) * 65536 + k * 4096 + u * 2048)
                      for k in range(16) for u in range(2)], 'v6', 'v7')
            e('s_waitcnt lgkmcnt(0)')
            e('s_barrier')
        stage(0)
        stage(1)
        take(0, 16)
        stage(2)
        take(1, 16)
        take(2, 0)
        self.lds_zero([110592, 110596])
        vL16, vW, vR, vG, vF = 8, 9, 10, 12, 5
        e(f'v_lshlrev_b32 {v(vL16)}, 4, v0')
        self.tile_out_consts(vW, vR, vG, 98304)
        e('v_and_b32 v1, 3, v0')
        e(f'v_lshlrev_b32 {v(vF)}, 2, v1')
        e(f's_lshl_b32 s60, {sCLS}, 7')
        e(f's_add_u32 {sA0}, s60, {P_AT}')
        e(f's_lshl_b32 s60, {sCLS}, 2')
        e(f's_add_u32 s60, s60, {sW}')
        e(f's_mul_i32 s77, s60, {QKV_HEAD}')
        self.clsoff('s77', 's61', QKV_HEAD, self.QL2)
        e(f's_add_u32 s77, s77, {QKV}')
        e(f's_mul_i32 s78, {sCLS}, {SEGB}')
        e(f's_lshl_b32 s60, {sJ}, 8')
        e('s_add_u32 s78, s78, s60')
        e(f's_lshl_b32 s60, {sW}, 6')
        e('s_add_u32 s78, s78, s60')
        self.wait_init('v6', 'v7')
        e(f'v_add_u32 v7, 32768, {v(vL16)}')
        e(f's_mul_i32 s81, {sW}, 12288')
        ACC, PK, BR = 16, 32, 64
        sS, sS2, sN2, sT2, sD = 's79', 's80', 's82', 's83', 's84'

        def src(dst, sseg, ly):
            e(f's_and_b32 {dst}, {sseg}, {RQ-1}')
            e(f's_mul_i32 {dst}, {dst}, {QKV_SEG}')
            e(f's_add_u32 {dst}, {dst}, s77')
            if ly:
                e(f's_add_u32 {dst}, {dst}, {self.QL2}')

        def dma_one(i, st, ly):
            if i % 4 == 0:
                e(f's_add_u32 m0, s81, {49152 * ly + 1024 * i}')
                if i:
                    e(f's_add_u32 {st}, {st}, 4096')
                else:
                    e('s_nop 0')
            e(f'buffer_load_dwordx4 {v(vL16)}, {WS}, {st} offen offset:{1024 * (i % 4)} sc1 lds')

        def dma_if(i, val):
            l = A.lab('nd')
            e(f's_cmp_eq_u32 {sD}, {val}')
            e(f's_cbranch_scc0 {l}')
            dma_one(i, sT2, 1)
            e(f'{l}:')

        def dst(sseg, ly):
            if ly == 0:
                e(f's_and_b32 {sO}, {sseg}, {self.opt["ring"]-1}')
                e(f's_mul_i32 {sO}, {sO}, {XP_S}')
                e(f's_add_u32 {sO}, {sO}, {XP1}')
            else:
                e(f's_mul_i32 {sO}, {sseg}, {XP_S}')
                e(f's_add_u32 {sO}, {sO}, {XP2}')
            e(f's_add_u32 {sO}, {sO}, s78')

        def compute(ly, hooks, sdone):
            def rel():
                l = A.lab('rel')
                e(f's_cmp_lg_u32 {sW}, 0')
                e(f's_cbranch_scc1 {l}')
                self.signal('v6', 's86' if ly else 's85', sdone, intra=self.opt['intra'])
                e(f'{l}:')
            hooks.setdefault(1, []).insert(0, rel)
            PF = 6
            buf = 49152 * ly
            x = 0 if ly == 0 else 32768
            ad = v(vL16) if ly == 0 else 'v7'
            for k in range(PF):
                e(f'ds_read_b128 {v(BR+4*(k%8),4)}, {ad} offset:{buf-x+1024*k}')
            for k in range(48):
                if k + PF < 48:
                    e(f'ds_read_b128 {v(BR+4*((k+PF)%8),4)}, {ad} offset:{buf-x+1024*(k+PF)}')
                e(f's_waitcnt lgkmcnt({min(PF, 47-k)})')
                e(f'v_mfma_f32_32x32x16_bf16 {v(ACC,16)}, {a(4*k,4)}, {v(BR+4*(k%8),4)}, {"0" if k==0 else v(ACC,16)}')
                for h in hooks.get(k, []):
                    h()
            self.tile_out(ACC, PK, vW, vR, vG, sO, 0)

        def single(ly, tag, n0, n1):
            e(f's_mov_b32 {sS}, {n0}')
            e(f'L_op_{tag}:')
            self.flush()
            e(f's_add_u32 {sN}, {sS}, 1')
            self.poll('v4', v(vF), sA0, sN, imm=1024 * ly)
            self.stamp(4 * ly, real=True)
            src(sT, sS, ly)
            for i in range(12):
                dma_one(i, sT, ly)
            dst(sS, ly)
            e('s_waitcnt vmcnt(0)')
            e('s_barrier')
            self.stamp(4 * ly + 1, real=True)
            compute(ly, {}, sN)
            self.stamp(4 * ly + 2, real=True)
            e('s_waitcnt vmcnt(0)')
            self.signal_cu('v4', 'v6', 110592 + 4 * ly, sF1 if ly else sF0, sN)
            self.stamp(4 * ly + 3, real=True)
            e('s_barrier')
            e(f's_mov_b32 {sS}, {sN}')
            e(f's_cmp_lt_u32 {sS}, {n1}')
            e(f's_cbranch_scc1 L_op_{tag}')
        single(0, 'a', 0, L)
        e(f's_mov_b32 {sS2}, 0')
        e('L_op_b:')
        self.flush()
        e(f's_add_u32 {sN}, {sS}, 1')
        e(f's_add_u32 {sN2}, {sS2}, 1')
        e(f'buffer_load_dword v4, {v(vF)}, {WS}, {sA0} offen sc1')
        e('s_waitcnt vmcnt(0)')
        e(f's_cmp_eq_u32 {sS2}, 0')
        e('s_cbranch_scc1 L_op_b0')
        self.signal_cu('v6', 'v11', 110596, sF1, sS2)
        e('L_op_b0:')
        self.stamp(7, real=True)
        e(f'v_cmp_gt_u32 vcc, {sN}, v4')
        e('s_cbranch_vccz L_op_b1')
        self.poll('v4', v(vF), sA0, sN)
        e('L_op_b1:')
        self.stamp(0, real=True)
        src(sT, sS, 0)
        for i in range(12):
            dma_one(i, sT, 0)
        e(f'buffer_load_dword v4, {v(vF)}, {WS}, {sA0} offen offset:1024 sc1')
        dst(sS, 0)
        src(sT2, sS2, 1)
        e('s_waitcnt vmcnt(0)')
        e(f'v_cmp_gt_u32 vcc, {sN2}, v4')
        e('s_cmp_eq_u64 vcc, 0')
        e(f's_cselect_b32 {sD}, 1, 0')
        e('s_barrier')
        self.stamp(1, real=True)

        def reld():
            l = A.lab('rl')
            e(f's_cmp_lg_u32 {sD}, 0')
            e(f's_cbranch_scc1 {l}')
            e(f'buffer_load_dword v4, {v(vF)}, {WS}, {sA0} offen offset:1024 sc1')
            e(f'{l}:')

        def ck():
            l = A.lab('ck')
            e(f's_cmp_lg_u32 {sD}, 0')
            e(f's_cbranch_scc1 {l}')
            e('s_waitcnt vmcnt(0)')
            e(f'v_cmp_gt_u32 vcc, {sN2}, v4')
            e(f's_cbranch_vccnz {l}')
            e(f's_mov_b32 {sD}, 2')
            e(f'{l}:')
        hk = {10: [reld], 22: [ck]}
        for i in range(12):
            hk.setdefault(2 * i, []).append(lambda i=i: dma_if(i, 1))
            hk.setdefault(23 + 2 * i, []).append(lambda i=i: dma_if(i, 2))
        compute(0, hk, sN)
        self.stamp(2, real=True)
        e(f's_cmp_eq_u32 {sD}, 0')
        e('s_cbranch_scc1 L_op_b2')
        e('s_waitcnt vmcnt(2)')
        e('s_branch L_op_b3')
        e('L_op_b2:')
        e('s_waitcnt vmcnt(0)')
        self.signal_cu('v6', 'v11', 110592, sF0, sN)
        self.poll('v4', v(vF), sA0, sN2, imm=1024)
        for i in range(12):
            dma_one(i, sT2, 1)
        e('s_waitcnt vmcnt(0)')
        e('L_op_b3:')
        dst(sS2, 1)
        e('s_barrier')
        self.stamp(5, real=True)

        def sig0():
            e(f's_cmp_eq_u32 {sD}, 0')
            e('s_cbranch_scc1 L_op_b4')
            e('s_waitcnt vmcnt(0)')
            self.signal_cu('v6', 'v11', 110592, sF0, sN)
            self.stamp(3, real=True)
            e('L_op_b4:')
        compute(1, {self.opt['opsig']: [sig0]}, sN2)
        self.stamp(6, real=True)
        e(f's_mov_b32 {sS}, {sN}')
        e(f's_mov_b32 {sS2}, {sN2}')
        e(f's_cmp_lt_u32 {sS}, 64')
        e('s_cbranch_scc1 L_op_b')
        e('s_waitcnt vmcnt(0)')
        self.signal_cu('v6', 'v11', 110596, sF1, sS2)
        e('s_barrier')
        single(1, 'c', 64 - L, 64)
        e('s_endpgm')

    def role_f(self):
        e = self.A.e
        A = self.A
        e('L_f:')
        sLY, sI, sFW, sN, sT, sO, sS, sFl, sU, sHw, sHa, sHb, sD = ['s%d' % i for i in range(70, 83)]
        e(f's_lshr_b32 {sLY}, {sCLS}, 2')
        e(f's_sub_u32 {sI}, {sSLOT}, 26')
        e(f's_lshl_b32 {sU}, {sI}, 2')
        e(f's_add_u32 {sU}, {sU}, {sW}')
        e(f's_and_b32 s83, {sCLS}, 3')
        e('s_mul_i32 s60, s83, 384')
        e(f's_lshl_b32 s61, {sI}, 7')
        e('s_add_u32 s60, s60, s61')
        e(f's_lshl_b32 s61, {sLY}, 11')
        e('s_add_u32 s60, s60, s61')
        e(f's_add_u32 {sFW}, s60, {P_F}')
        self.zero_word(sFW)
        e(f's_mul_i32 s60, {sCLS}, {HB_C}')
        e(f's_add_u32 s60, s60, {HB}')
        e(f's_lshl_b32 s61, {sU}, 11')
        e(f's_add_u32 {sHw}, s60, s61')
        e(f's_lshl_b32 s62, {sW}, 11')
        e('s_add_u32 s60, s60, s62')
        for d, dst in ((1, sHa), (2, sHb)):
            e(f's_add_u32 s61, {sI}, {d}')
            e('s_cmp_ge_u32 s61, 3')
            e('s_cselect_b32 s62, 3, 0')
            e('s_sub_u32 s61, s61, s62')
            e('s_lshl_b32 s61, s61, 13')
            e(f's_add_u32 {dst}, s60, s61')
        e('v_lshlrev_b32 v5, 4, v0')
        for r in range(16, 20):
            e(f'v_mov_b32 v{r}, -1')
        for sl in range(2):
            e(f's_add_u32 s60, {sHw}, {sl * HB_S}')
            for h in range(2):
                e(f'buffer_store_dwordx4 v[16:19], v5, {WS}, s60 offen offset:{1024*h} sc1')
        self.arrive()
        self.ln1_items()
        if not self.on('f'):
            e('s_endpgm')
            return
        if self.opt['hold']:
            self.wait_init('v6', 'v7')
            e(f's_lshl_b32 s60, {sCLS}, 8')
            e(f's_add_u32 s60, s60, {P_QKV}')
            e('v_mov_b32 v6, 12')
            self.poll('v4', 'v6', 's60', 1, sleep=8)
        self.srd(SRA, 'w1')
        self.srd(SRB, 'w2')
        e('s_mul_i32 s84, s83, 3')
        e(f's_add_u32 s84, s84, {sI}')
        e('v_lshrrev_b32 v1, 4, v0')
        e(f's_mul_i32 s60, {sW}, 80')
        e('v_add_u32 v1, s60, v1')
        e('v_mul_u32_u24 v1, 3072, v1')
        e('v_and_b32 v2, 15, v0')
        e('v_lshl_add_u32 v5, v2, 4, v1')
        e('s_lshl_b32 s60, s84, 8')
        e('v_add_u32 v5, s60, v5')
        e(f's_lshl_b32 s62, {sW}, 6')
        self.tr_lane('v6', 8, 256, 's62')
        e(f's_lshl_b32 s85, {sU}, 7')
        e(f's_lshl_b32 s60, {sU}, 6')
        e('s_add_u32 s60, s60, 512')
        e(f's_cmp_ge_u32 {sU}, 8')
        e('s_cselect_b32 s85, s60, s85')
        e('s_min_u32 s86, s85, 1152')
        e('v_lshrrev_b32 v1, 3, v0')
        e('v_mul_u32_u24 v1, 1280, v1')
        e('v_and_b32 v2, 7, v0')
        e('v_lshl_add_u32 v8, v2, 4, v1')
        e('v_add_u32 v8, s86, v8')
        e(f's_mul_i32 s87, {sW}, 16384')
        e('s_sub_u32 s60, s85, s86')
        e('s_add_u32 s60, s60, s87')
        self.tr_lane('v9', 4, 128, 's60')

        def W2(t, k, n=4, u=0):
            r = 96 * t + 4 * k + 2 * u
            return a(160 + r, n) if r < 96 else v(160 + r - 96, n)

        def stage(voff, srd, s0, step, buf):
            e(f's_mul_i32 s60, {sW}, 20480')
            e(f's_add_u32 m0, s60, {buf}')
            e(f's_mov_b32 s61, {s0}')
            self.dma(20, voff, srd, 's61', step)

        def take(left, items, vaddr):
            e(f's_waitcnt vmcnt({left})')
            e('s_barrier')
            self.trl(sorted(items, key=lambda x: x[1]), vaddr, 'v7')
            e('s_waitcnt lgkmcnt(0)')
            e('s_barrier')
        w1i = lambda h: [(a(4 * (20 * h + k) + 2 * u, 2), 81920 * h + k * 4096 + u * 1024) for k in range(20) for u in range(2)]
        stage('v5', SRA, 0, 4 * 3072, 0)
        stage('v5', SRA, 320 * 3072, 4 * 3072, 81920)
        take(20, w1i(0), 'v6')
        take(0, w1i(1), 'v6')
        def w2_stage(j):
            e(f's_add_u32 s61, {sI}, {j}')
            e('s_cmp_ge_u32 s61, 3')
            e('s_cselect_b32 s62, 3, 0')
            e('s_sub_u32 s61, s61, s62')
            e('s_mul_i32 s62, s83, 3')
            e('s_add_u32 s61, s61, s62')
            e('s_mul_i32 s61, s61, 163840')
            e(f's_add_u32 m0, s87, {65536 * (j & 1)}')
            self.dma(16, 'v8', SRB, 's61', 8 * 1280)

        def w2_take(j, left):
            e(f's_waitcnt vmcnt({left})')
            self.trl([(W2(t, 8 * j + k, 2, u), 65536 * (j & 1) + (16 * k + 8 * u) * 128 + t * 64)
                      for t in range(2) for k in range(8) for u in range(2)], 'v9', 'v7')
            e('s_waitcnt lgkmcnt(0)')
        w2_stage(0)
        w2_stage(1)
        w2_take(0, 16)
        w2_stage(2)
        w2_take(1, 16)
        w2_take(2, 0)
        e('s_barrier')
        self.lds_zero([86016])
        VD, VR, vL16, vW, vRd, vG, vF, vH = 8, 10, 9, 128, 129, 130, 5, 6
        HXL, TOL = 40960, 65536
        self.xn_consts(VD, VR)
        e(f's_mul_i32 s60, {sW}, 4608')
        e(f's_add_u32 s60, s60, {TOL}')
        e('v_and_b32 v1, 31, v0')
        e('v_mul_u32_u24 v1, 144, v1')
        e('v_lshrrev_b32 v2, 5, v0')
        e('v_lshl_add_u32 v1, v2, 3, v1')
        e(f'v_add_u32 {v(vW)}, s60, v1')
        e('v_lshrrev_b32 v1, 3, v0')
        e('v_and_b32 v2, 7, v0')
        e('v_mul_u32_u24 v3, 144, v1')
        e('v_lshl_add_u32 v3, v2, 4, v3')
        e(f'v_add_u32 {v(vRd)}, s60, v3')
        e('v_mul_u32_u24 v3, 1280, v1')
        e(f'v_lshl_add_u32 {v(vG)}, v2, 4, v3')
        for q in range(1, 4):
            e(f'v_add_u32 {v(vG+q)}, {10240*q}, {v(vG)}')
        e(f's_cmp_ge_u32 {sU}, 8')
        e('s_cselect_b32 s88, 0x0f0f0f0f, -1')
        e('s_mov_b32 s89, s88')
        e(f'v_lshlrev_b32 {v(vL16)}, 4, v0')
        e(f's_lshl_b32 s60, {sW}, 11')
        e(f'v_add_u32 {v(vH)}, s60, {v(vL16)}')
        e('v_and_b32 v1, 7, v0')
        e(f'v_lshlrev_b32 {v(vF)}, 7, v1')
        e(f's_lshl_b32 {sFl}, {sLY}, 10')
        e(f's_add_u32 {sFl}, {sFl}, {P_R1}')
        e(f's_cmp_eq_u32 {sLY}, 0')
        e(f's_mov_b32 s90, {XNC}')
        e(f's_mov_b32 s91, {FP2}')
        e(f's_cselect_b32 s90, {XNA}, s90')
        e(f's_cselect_b32 s91, {FP1}, s91')
        e(f's_cselect_b32 s92, {self.opt["ring"]-1}, 63')
        e(f's_mul_i32 s60, s83, {SEGB}')
        e('s_add_u32 s91, s91, s60')
        e('s_add_u32 s91, s91, s85')
        e(f's_mul_i32 s93, {sW}, 10240')
        self.wait_init('v4', 'v7')
        ACC, PK, BR, GR = (16, 32), 48, 96, 64

        def dma_one(i):
            if i == 0:
                e('s_mov_b32 m0, s93')
                e('s_nop 0')
            else:
                e('s_add_u32 m0, m0, 896')
            e(f'buffer_load_dwordx4 {v(VD)}, {WS}, {sT} offen offset:{i*128} sc1{" nt" if self.opt["xnt"] else ""} lds')

        def dma_if(i):
            l = A.lab('nd')
            e(f's_cmp_eq_u32 {sD}, 1')
            e(f's_cbranch_scc0 {l}')
            dma_one(i)
            e(f'{l}:')
        e(f's_mov_b32 {sS}, 0')
        e(f's_mov_b32 {sN}, 1')
        e(f's_mov_b32 {sT}, s90')
        e('L_f_poll:')
        self.poll('v4', v(vF), sFl, sN)
        e('L_f_dma:')
        self.stamp(0, real=True)
        for i in range(10):
            dma_one(i)
        e('s_waitcnt vmcnt(0)')
        e('L_f_go:')
        e('s_barrier')
        self.stamp(1, real=True)
        e(f's_and_b32 {sO}, {sS}, s92')
        e(f's_mul_i32 {sO}, {sO}, {FP_S}')
        e(f's_add_u32 {sO}, {sO}, s91')
        e(f's_and_b32 s60, {sS}, 3')
        e(f's_mul_i32 s60, s60, {HB_S}')
        e(f's_add_u32 s61, s60, {sHw}')
        e(f's_add_u32 s62, s60, {sHa}')
        e(f's_add_u32 s63, s60, {sHb}')
        PF = 6
        for k in range(PF):
            e(f'ds_read_b128 {v(BR+4*(k%8),4)}, {v(VR+(k&3))} offset:{(k>>2)*1024}')
        for k in range(40):
            if k + PF < 40:
                kk = k + PF
                e(f'ds_read_b128 {v(BR+4*(kk%8),4)}, {v(VR+(kk&3))} offset:{(kk>>2)*1024}')
            e(f's_waitcnt lgkmcnt({min(PF, 39-k)})')
            e(f'v_mfma_f32_32x32x16_bf16 {v(ACC[0],16)}, {a(4*k,4)}, {v(BR+4*(k%8),4)}, {"0" if k==0 else v(ACC[0],16)}')
        for j in range(8):
            e(f'v_cvt_pk_bf16_f32 {v(PK+j)}, {v(ACC[0]+2*j)}, {v(ACC[0]+2*j+1)}')
        for j in range(8):
            e(f'v_pk_max_i16 {v(PK+j)}, {v(PK+j)}, 0')
        self.st_mode([f'buffer_store_dwordx4 {v(PK+4*h,4)}, {v(vL16)}, {WS}, s61 offen offset:{1024*h}' for h in range(2)])
        e(f'ds_write_b128 {v(vH)}, {v(PK,4)} offset:{HXL}')
        e(f'ds_write_b128 {v(vH)}, {v(PK+4,4)} offset:{HXL+1024}')
        e('s_waitcnt lgkmcnt(0)')
        e('s_barrier')
        self.stamp(2, real=True)

        def g2(k0, k1, hooks):
            for k in range(k0, min(k0 + PF, k1)):
                e(f'ds_read_b128 {v(BR+4*(k%8),4)}, {v(vL16)} offset:{HXL+1024*k}')
            for k in range(k0, k1):
                if k + PF < k1:
                    e(f'ds_read_b128 {v(BR+4*((k+PF)%8),4)}, {v(vL16)} offset:{HXL+1024*(k+PF)}')
                e(f's_waitcnt lgkmcnt({min(PF, k1-1-k)})')
                for t in range(2):
                    d = v(ACC[t], 16)
                    e(f'v_mfma_f32_32x32x16_bf16 {d}, {W2(t,k)}, {v(BR+4*(k%8),4)}, {"0" if k==0 else d}')
                for h in hooks.get(k, []):
                    h()

        def hld(i):
            e(f'buffer_load_dwordx4 {v(GR+4*i,4)}, {v(vL16)}, {WS}, {"s62" if i < 2 else "s63"} offen offset:{1024*(i&1)} sc1')
        g2(0, 8, {3: [lambda: [hld(i) for i in range(4)]]})
        for i in range(4):
            e(f'L_f_c{i}:')
            e(f's_waitcnt vmcnt({3-i})')
            e(f'v_max3_u32 v4, {v(GR+4*i)}, {v(GR+4*i+1)}, {v(GR+4*i+2)}')
            e(f'v_max_u32 v4, v4, {v(GR+4*i+3)}')
            e('v_cmp_eq_u32 vcc, -1, v4')
            e(f's_cbranch_vccnz L_f_r{i}')
            e(f'ds_write_b128 {v(vH)}, {v(GR+4*i,4)} offset:{HXL + 8192*(1 + i//2) + 1024*(i&1)}')
        for r in range(4):
            e(f'v_mov_b32 {v(GR+r)}, -1')
        e(f's_add_u32 s60, {sS}, 2')
        e('s_and_b32 s60, s60, 3')
        e(f's_mul_i32 s60, s60, {HB_S}')
        e(f's_add_u32 s60, s60, {sHw}')
        self.st_mode([f'buffer_store_dwordx4 {v(GR,4)}, {v(vL16)}, {WS}, s60 offen offset:{1024*h}' for h in range(2)])
        e(f'buffer_load_dword v4, {v(vF)}, {WS}, {sFl} offen sc1')
        e(f's_add_u32 {sT}, {sT}, {SEGB}')
        e(f's_add_u32 s94, {sN}, 1')
        e('s_waitcnt lgkmcnt(0)')
        e('s_barrier')
        self.stamp(5, real=True)

        def ck():
            e('s_waitcnt vmcnt(0)')
            e('v_cmp_gt_u32 vcc, s94, v4')
            e('s_cmp_eq_u64 vcc, 0')
            e(f's_cselect_b32 {sD}, 1, 0')
        hk = {13: [ck]}
        for i in range(10):
            hk.setdefault(14 + i, []).append(lambda i=i: dma_if(i))
        g2(8, 24, hk)
        for t in range(2):
            for j in range(8):
                e(f'v_cvt_pk_bf16_f32 {v(PK+8*t+j)}, {v(ACC[t]+2*j)}, {v(ACC[t]+2*j+1)}')
            for j in range(4):
                e(f'ds_write_b64 {v(vW)}, {v(PK+8*t+2*j,2)} offset:{64*t+16*j}')
        e('s_waitcnt lgkmcnt(0)')
        for q in range(4):
            e(f'ds_read_b128 {v(GR+4*q,4)}, {v(vRd)} offset:{1152*q}')
        e('s_mov_b64 exec, s[88:89]')
        for q in range(4):
            e(f's_waitcnt lgkmcnt({3-q})')
            e(f'buffer_store_dwordx4 {v(GR+4*q,4)}, {v(vG+q)}, {WS}, {sO} offen sc1')
        e('s_mov_b64 exec, -1')
        self.stamp(3, real=True)
        e(f'buffer_load_dword v4, {v(vF)}, {WS}, {sFl} offen sc1')
        e('s_waitcnt vmcnt(0)')
        self.signal_cu('v7', 'v3', 86016, sFW, sN)
        self.stamp(4, real=True)
        self.flush()
        e(f's_mov_b32 {sS}, {sN}')
        e(f's_mov_b32 {sN}, s94')
        e(f's_cmp_ge_u32 {sS}, 64')
        e('s_cbranch_scc1 L_end')
        e(f's_cmp_eq_u32 {sD}, 1')
        e('s_cbranch_scc1 L_f_go')
        e(f'v_cmp_gt_u32 vcc, {sN}, v4')
        e('s_cbranch_vccz L_f_dma')
        e('s_branch L_f_poll')
        for i in range(4):
            e(f'L_f_r{i}:')
            for j in range(i, 4):
                hld(j)
            self.spin(f'L_f_c{i}')
```

```python
import sys, os
sys.path.insert(0, os.path.dirname(os.path.abspath(__file__)))
from asmlib import Asm

from common import *
from chain import ChainMixin
from qkv import QkvMixin
from workers import WorkersMixin


class Gen(ChainMixin, QkvMixin, WorkersMixin):
    def __init__(self, L=6, A=10, roles='all', diag=False, nsteps=None, force_slow=False, opt=None):
        self.A = Asm()
        self.L = L
        self.AH = A
        self.roles = roles
        self.diag = diag
        self.nsteps = nsteps if nsteps is not None else 64 + L
        self.force_slow = force_slow
        self.opt = dict(cdelay=4, agdelay=0, sdelay=0, odelay=0, hdelay=20, rq=4, intra=1, at2delay=6, exact=0, opsig=26, psleep=1, crring=128, ring=64, ratom=1, earlysig=1, svm=11, sgap=2, lite=0, dense=0, cgap=0, qks=13, unsafe=0, crnt=0, xnt=0, rnt=1, anchor=0, adn=12, dbgt=0, wnt=1, hold=1, npre=3, opre=4, vat=8, sv1=4, warm=0, xb=0, xwait=14, lean=0, adapt=0, probe=0, fake16=0, keep=0)
        self.opt.update(opt or {})
        self.QL2 = self.opt['rq'] * QKV_SEG
        self.KL2 = self.opt['rq'] * KM_SEG
        self.opt_keep = [i for i in range(16) if self.opt['keep'] >> i & 1]

    def on(self, r):
        return self.roles == 'all' or r in self.roles.split(',')

    def srd(self, dst, name):
        e = self.A.e
        b = int(dst[2:dst.index(':')])
        p = PTR[name]
        e(f's_mov_b32 s{b}, s{p}')
        e(f's_and_b32 s{b+1}, s{p+1}, 0xffff')
        e(f's_mov_b32 s{b+2}, {NBYTES[name]}')
        e(f's_mov_b32 s{b+3}, 0x20000')

    def clsoff(self, dst, tmp, per_head, l2):
        self.A.e(f's_mul_i32 {tmp}, {sCLS}, {2 * l2 - 4 * per_head}')
        self.A.e(f's_add_u32 {dst}, {dst}, {tmp}')

    def spin(self, back, sleep=0):
        e = self.A.e
        if sleep:
            e(f's_sleep {sleep}')
        e(f's_sub_u32 {sSPIN}, {sSPIN}, 1')
        e(f's_cbranch_scc0 {back}')
        e('s_branch L_fail')

    def poll(self, vt, voff, soff, need, sleep=None, imm=0):
        e = self.A.e
        l0, l1 = self.A.lab('poll'), self.A.lab('pok')
        e(f'{l0}:')
        e(f'buffer_load_dword {vt}, {voff}, {WS}, {soff} offen offset:{imm} sc1')
        e('s_waitcnt vmcnt(0)')
        e(f'v_cmp_gt_u32 vcc, {need}, {vt}')
        e(f's_cbranch_vccz {l1}')
        self.spin(l0, self.opt['psleep'] if sleep is None else sleep)
        e(f'{l1}:')

    def st_mode(self, text):
        e = self.A.e
        lines = text if isinstance(text, list) else [text]
        l0, l1 = self.A.lab('sl'), self.A.lab('sd')
        e(f's_cmp_eq_u32 {sFAST}, 0')
        e(f's_cbranch_scc1 {l0}')
        for t in lines:
            e(t)
        e(f's_branch {l1}')
        e(f'{l0}:')
        for t in lines:
            e(t + (' sc1' if t.startswith('buffer_store') else ''))
        e(f'{l1}:')

    def st_intra(self, lines):
        if self.opt['intra']:
            self.st_mode(lines)
        else:
            for t in lines:
                self.A.e(t + ' sc1')

    def signal(self, vt, soff, val, intra=False):
        e = self.A.e
        e(f'v_mov_b32 {vt}, {val}')
        e('s_mov_b64 exec, 1')
        if intra:
            self.st_mode(f'buffer_store_dword {vt}, off, {WS}, {soff}')
        else:
            e(f'buffer_store_dword {vt}, off, {WS}, {soff} sc1')
        e('s_mov_b64 exec, -1')

    def signal_cu(self, vt, vz, ldsaddr, soff, val):
        e = self.A.e
        l = self.A.lab('nl')
        e(f'v_mov_b32 {vt}, 1')
        e(f'v_mov_b32 {vz}, {ldsaddr}')
        e('s_mov_b64 exec, 1')
        e(f'ds_add_rtn_u32 {vt}, {vz}, {vt}')
        e('s_waitcnt lgkmcnt(0)')
        e(f'v_readfirstlane_b32 s60, {vt}')
        e(f'v_mov_b32 {vt}, {val}')
        e('s_and_b32 s60, s60, 3')
        e('s_cmp_lg_u32 s60, 3')
        e(f's_cbranch_scc1 {l}')
        e(f'buffer_store_dword {vt}, off, {WS}, {soff} sc1')
        e(f'{l}:')
        e('s_mov_b64 exec, -1')

    def lds_zero(self, addrs):
        e = self.A.e
        e('v_mov_b32 v1, 0')
        for ad in addrs:
            e(f'v_mov_b32 v2, {ad}')
            e('ds_write_b32 v2, v1')
        e('s_waitcnt lgkmcnt(0)')
        e('s_barrier')

    def arrive(self):
        e = self.A.e
        l = self.A.lab('arr')
        e('s_waitcnt vmcnt(0)')
        e('s_barrier')
        e(f's_cmp_lg_u32 {sW}, 0')
        e(f's_cbranch_scc1 {l}')
        e('s_and_b32 s60, s2, 7')
        e('s_lshl_b32 s60, s60, 5')
        e('s_add_u32 s60, s60, 16')
        e('v_mov_b32 v1, 1')
        e('s_mov_b64 exec, 1')
        e(f'buffer_atomic_add v1, off, {DBG}, s60')
        e('s_mov_b64 exec, -1')
        e(f'{l}:')

    def wait_init(self, vt, vt2, st='s60'):
        e = self.A.e
        b = int(st[1:])
        l0, l1 = self.A.lab('wi'), self.A.lab('wid')
        e(f'v_lshlrev_b32 {vt2}, 2, v0')
        e(f'{l0}:')
        e(f'buffer_load_dword {vt}, {vt2}, {DBG}, 0 offen sc1')
        e('s_waitcnt vmcnt(0)')
        e(f'v_cmp_ne_u32 vcc, 32, {vt}')
        e(f's_mov_b32 s{b}, 0x10101010')
        e(f's_mov_b32 s{b+1}, 0x10101010')
        e(f's_and_b64 s[{b+2}:{b+3}], vcc, s[{b}:{b+1}]')
        e(f's_cbranch_scc0 {l1}')
        self.spin(l0, 2)
        e(f'{l1}:')
        e(f's_mov_b32 s{b}, 0x01010101')
        e(f's_mov_b32 s{b+1}, 0x01010101')
        e(f's_and_b64 s[{b+2}:{b+3}], vcc, s[{b}:{b+1}]')
        e(f's_cselect_b32 {sFAST}, 0, 1')
        if self.force_slow:
            e(f's_mov_b32 {sFAST}, 0')

    def trl(self, items, vaddr, vtmp):
        e = self.A.e
        base = None
        for dst, off in items:
            b = (off // 65536) * 65536 if off >= 65536 else 0
            if off - b > 65535:
                raise ValueError
            if b == 0:
                e(f'ds_read_b64_tr_b16 {dst}, {vaddr} offset:{off}')
            else:
                if base != b:
                    e(f'v_add_u32 {vtmp}, {b}, {vaddr}')
                    base = b
                e(f'ds_read_b64_tr_b16 {dst}, {vtmp} offset:{off - b}')

    def dma(self, n, voff, srd, ssoff, sstep, m0step=1024, sc1=False):
        e = self.A.e
        for i in range(n):
            e(f'buffer_load_dwordx4 {voff}, {srd}, {ssoff} offen{" sc1" if sc1 else ""}{" nt" if self.opt["wnt"] and not sc1 else ""} lds')
            if i + 1 < n:
                e(f's_add_u32 m0, m0, {m0step}')
                e(f's_add_u32 {ssoff}, {ssoff}, {sstep}')

    def stamp(self, idx, real=False):
        if not self.diag or (self.opt['lite'] and not real and idx not in self.opt_keep):
            return
        e = self.A.e
        e('s_memrealtime s[98:99]' if real else 's_memtime s[98:99]')
        e('s_waitcnt lgkmcnt(0)')
        e(f'v_writelane_b32 v14, s98, {idx}')

    def xstamp(self, idx):
        if self.diag and self.opt['probe'] == 4:
            e = self.A.e
            e('s_memtime s[98:99]')
            e('s_waitcnt lgkmcnt(0)')
            e(f'v_writelane_b32 v14, s98, {idx}')

    def dbgtime(self, word):
        if not self.opt['dbgt']:
            return
        e = self.A.e
        l = self.A.lab('dt')
        e(f's_cmp_lg_u32 {sCLS}, 0')
        e(f's_cbranch_scc1 {l}')
        e('s_memrealtime s[98:99]')
        e('s_waitcnt lgkmcnt(0)')
        e('s_and_b32 s98, s98, 0xffffff')
        e('v_mov_b32 v15, s98')
        e('s_mov_b64 exec, 1')
        e(f'buffer_atomic_umax v15, off, {DBG}, 0 offset:{4*word}')
        e('s_mov_b64 exec, -1')
        e(f'{l}:')

    def note(self, idx, sreg):
        if self.diag and self.opt['probe'] != 4:
            self.A.e(f'v_writelane_b32 v14, {sreg}, {idx}')

    def flush(self):
        if not self.diag:
            return
        e = self.A.e
        e('v_lshlrev_b32 v15, 2, v0')
        e('s_mov_b64 exec, 0xffff')
        e(f'buffer_store_dword v14, v15, {WS}, s97 offen')
        e('s_mov_b64 exec, -1')
        e('s_add_u32 s97, s97, 64')

    def rowstat(self, val, tmp):
        e = self.A.e
        for r in (8, 4, 2, 1):
            e(f'v_add_f32_dpp {val}, {val}, {val} row_ror:{r} row_mask:0xf bank_mask:0xf')
        e(f'v_mov_b32 {tmp}, {val}')
        e(f'v_permlane16_swap_b32 {tmp}, {val}')
        e(f'v_add_f32 {val}, {val}, {tmp}')

    def bfround(self, r, ):
        e = self.A.e
        e(f'v_cvt_pk_bf16_f32 {r}, {r}, {r}')
        e(f'v_and_b32 {r}, 0xffff0000, {r}')

    def ln_pair(self, X, OUT, T):
        e = self.A.e
        t0, t2, t4 = T, T + 2, T + 4
        e(f'v_pk_add_f32 {v(t0,2)}, {v(X,2)}, {v(X+2,2)}')
        e(f'v_pk_add_f32 {v(t2,2)}, {v(X+4,2)}, {v(X+6,2)}')
        for k in range(8, 20, 4):
            e(f'v_pk_add_f32 {v(t0,2)}, {v(t0,2)}, {v(X+k,2)}')
            e(f'v_pk_add_f32 {v(t2,2)}, {v(t2,2)}, {v(X+k+2,2)}')
        e(f'v_pk_add_f32 {v(t0,2)}, {v(t0,2)}, {v(t2,2)}')
        e(f'v_add_f32 {v(t0)}, {v(t0)}, {v(t0+1)}')
        self.rowstat(v(t0), v(t0 + 1))
        e(f'v_mul_f32 {v(t0)}, {f2u(-1.0/640):#x}, {v(t0)}')
        e(f'v_mov_b32 {v(t0+1)}, {v(t0)}')
        e(f'v_pk_add_f32 {v(t4,2)}, {v(X,2)}, {v(t0,2)}')
        e(f'v_pk_mul_f32 {v(t2,2)}, {v(t4,2)}, {v(t4,2)}')
        for k in range(2, 20, 2):
            e(f'v_pk_add_f32 {v(t4,2)}, {v(X+k,2)}, {v(t0,2)}')
            e(f'v_pk_fma_f32 {v(t2,2)}, {v(t4,2)}, {v(t4,2)}, {v(t2,2)}')
        e(f'v_add_f32 {v(t2)}, {v(t2)}, {v(t2+1)}')
        self.rowstat(v(t2), v(t2 + 1))
        e(f'v_mul_f32 {v(t2)}, {f2u(1.0/640):#x}, {v(t2)}')
        self.bfround(v(t2))
        e(f'v_add_f32 {v(t2)}, {f2u(1e-5):#x}, {v(t2)}')
        self.bfround(v(t2))
        e(f'v_sqrt_f32 {v(t2)}, {v(t2)}')
        self.bfround(v(t2))
        e(f'v_rcp_f32 {v(t2)}, {v(t2)}')
        self.bfround(v(t0))
        e(f'v_mov_b32 {v(t0+1)}, {v(t0)}')
        e(f'v_mov_b32 {v(t2+1)}, {v(t2)}')
        outs = OUT if isinstance(OUT, list) else list(range(OUT, OUT + 10))
        for k in range(0, 20, 2):
            e(f'v_pk_add_f32 {v(X+k,2)}, {v(X+k,2)}, {v(t0,2)}')
        if self.opt['exact']:
            for k in range(0, 20, 2):
                e(f'v_cvt_pk_bf16_f32 {v(X+k+1)}, {v(X+k)}, {v(X+k+1)}')
            for k in range(0, 20, 2):
                e(f'v_lshlrev_b32 {v(X+k)}, 16, {v(X+k+1)}')
                e(f'v_and_b32 {v(X+k+1)}, 0xffff0000, {v(X+k+1)}')
        for k in range(0, 20, 2):
            e(f'v_pk_mul_f32 {v(X+k,2)}, {v(X+k,2)}, {v(t2,2)}')
        for k in range(0, 20, 2):
            e(f'v_cvt_pk_bf16_f32 {v(outs[k//2])}, {v(X+k)}, {v(X+k+1)}')

    def rowlane_addr(self, dst, tmp):
        e = self.A.e
        e(f'v_lshrrev_b32 {dst}, 5, v0')
        e(f'v_mul_u32_u24 {dst}, 1280, {dst}')
        e(f'v_and_b32 {tmp}, 15, v0')
        e(f'v_lshl_add_u32 {dst}, {tmp}, 4, {dst}')
        e(f'v_bfe_u32 {tmp}, v0, 4, 1')
        e(f'v_lshl_add_u32 {dst}, {tmp}, 3, {dst}')

    def unpack(self, dst, src, n):
        e = self.A.e
        for k in range(n):
            e(f'v_lshlrev_b32 {v(dst+2*k)}, 16, {v(src+k)}')
            e(f'v_and_b32 {v(dst+2*k+1)}, 0xffff0000, {v(src+k)}')

    def ln1_phase(self):
        e = self.A.e
        self.srd(SRA, 'x')
        e(f's_sub_u32 s64, {sSLOT}, 21')
        e('s_lshl_b32 s64, s64, 2')
        e(f's_add_u32 s64, s64, {sW}')
        self.rowlane_addr('v2', 'v3')
        e('v_mov_b32 v4, 0')
        e('s_mov_b64 exec, 1')
        e('s_lshl_b32 s65, s64, 5')
        e(f's_lshl_b32 s66, {sCLS}, 2')
        e('s_add_u32 s65, s65, s66')
        e(f'buffer_store_dword v4, off, {WS}, s65 offset:{P_LN1} sc1')
        e('s_cmp_ge_u32 s64, 20')
        l = self.A.lab('z2')
        e(f's_cbranch_scc1 {l}')
        e(f'buffer_store_dword v4, off, {WS}, s65 offset:{P_LN1 + 44*32} sc1')
        e(f'{l}:')
        e('s_mov_b64 exec, -1')

    def ln1_items(self):
        e = self.A.e
        lp, done = self.A.lab('ln1'), self.A.lab('ln1d')
        e(f's_mul_i32 s66, {sCLS}, 5120')
        e(f'{lp}:')
        e(f's_mul_i32 s67, s64, {SEGB}')
        e('s_add_u32 s67, s67, s66')
        for p in range(2):
            for cg in range(5):
                e(f'buffer_load_dwordx2 {v(16+10*p+2*cg,2)}, v2, {SRA}, s67 offen offset:{p*2560+cg*256}')
        e(f's_add_u32 s68, s67, {XN1}')
        for p in range(2):
            e(f's_waitcnt vmcnt({5 if p == 0 else 5})')
            if p == 1:
                e('s_waitcnt vmcnt(5)')
            self.unpack(40, 16 + 10 * p, 10)
            self.ln_pair(40, 60 + 10 * p, 8)
            for cg in range(5):
                e(f'buffer_store_dwordx2 {v(60+10*p+2*cg,2)}, v2, {WS}, s68 offen offset:{p*2560+cg*256} sc1')
        e('s_waitcnt vmcnt(0)')
        e(f's_add_u32 s68, s65, {P_LN1}')
        self.signal('v4', 's68', 1)
        e('s_cmp_ge_u32 s64, 20')
        e(f's_cbranch_scc1 {done}')
        e('s_add_u32 s64, s64, 44')
        e(f's_add_u32 s65, s65, {44*32}')
        e(f's_branch {lp}')
        e(f'{done}:')

    def xn_consts(self, vdma, vrd):
        e = self.A.e
        e('v_lshrrev_b32 v1, 3, v0')
        e('v_and_b32 v2, 7, v0')
        e('v_xor_b32 v2, v2, v1')
        e(f's_and_b32 s60, {sW}, 1')
        e('v_xor_b32 v2, s60, v2')
        e(f's_lshl_b32 s60, {sW}, 3')
        e('v_add_u32 v1, s60, v1')
        e('v_mul_u32_u24 v1, 1280, v1')
        e(f'v_lshl_add_u32 {v(vdma)}, v2, 4, v1')
        e('v_bfe_u32 v1, v0, 3, 2')
        e('v_and_b32 v2, 7, v0')
        e('v_mul_u32_u24 v3, 10240, v1')
        e('v_lshl_add_u32 v3, v2, 7, v3')
        e('v_and_b32 v1, 1, v1')
        e('v_xor_b32 v2, v2, v1')
        e('v_lshrrev_b32 v1, 5, v0')
        e('v_xor_b32 v2, v2, v1')
        for q in range(4):
            e(f'v_xor_b32 v1, {2*q}, v2')
            e(f'v_lshl_add_u32 {v(vrd+q)}, v1, 4, v3')

    def xn_dma(self, vdma, ssoff, ldsbase):
        e = self.A.e
        e(f's_mul_i32 s60, {sW}, 10240')
        e(f's_add_u32 m0, s60, {ldsbase}')
        for cb in range(10):
            if cb:
                e('s_add_u32 m0, m0, 896')
            e(f'buffer_load_dwordx4 {v(vdma)}, {WS}, {ssoff} offen offset:{cb*128} sc1 lds')

    def tile_out(self, acc, pk, vw, vr, vg, soff, imm, relu=False):
        e = self.A.e
        for j in range(8):
            e(f'v_cvt_pk_bf16_f32 {v(pk+j)}, {v(acc+2*j)}, {v(acc+2*j+1)}')
        for j in range(4):
            e(f'ds_write_b64 {v(vw)}, {v(pk+2*j,2)} offset:{16*j}')
        e('s_waitcnt lgkmcnt(0)')
        e(f'ds_read_b128 {v(pk+8,4)}, {v(vr)}')
        e(f'ds_read_b128 {v(pk+12,4)}, {v(vr)} offset:1280')
        e('s_waitcnt lgkmcnt(1)')
        e(f'buffer_store_dwordx4 {v(pk+8,4)}, {v(vg)}, {WS}, {soff} offen offset:{imm} sc1')
        e('s_waitcnt lgkmcnt(0)')
        e(f'buffer_store_dwordx4 {v(pk+12,4)}, {v(vg+1)}, {WS}, {soff} offen offset:{imm} sc1')

    def tile_out_consts(self, vw, vr, vg, ldsbase):
        e = self.A.e
        e(f's_mul_i32 s60, {sW}, 2560')
        e(f's_add_u32 s60, s60, {ldsbase}')
        e('v_and_b32 v1, 31, v0')
        e('v_mul_u32_u24 v1, 80, v1')
        e('v_lshrrev_b32 v2, 5, v0')
        e('v_lshl_add_u32 v1, v2, 3, v1')
        e(f'v_add_u32 {v(vw)}, s60, v1')
        e('v_lshrrev_b32 v1, 2, v0')
        e('v_and_b32 v2, 3, v0')
        e('v_mul_u32_u24 v3, 80, v1')
        e('v_lshl_add_u32 v3, v2, 4, v3')
        e(f'v_add_u32 {v(vr)}, s60, v3')
        e('v_mul_u32_u24 v3, 1280, v1')
        e(f'v_lshl_add_u32 {v(vg)}, v2, 4, v3')
        e(f'v_add_u32 {v(vg+1)}, 20480, {v(vg)}')

    def tr_lane(self, dst, rowmul_hf, pitch, extra_s=None):
        e = self.A.e
        e('v_lshrrev_b32 v1, 5, v0')
        e(f'v_mul_u32_u24 v1, {rowmul_hf}, v1')
        e('v_bfe_u32 v2, v0, 2, 2')
        e('v_add_u32 v1, v1, v2')
        e(f'v_mul_u32_u24 v1, {pitch}, v1')
        e('v_bfe_u32 v2, v0, 4, 1')
        e('v_lshl_add_u32 v1, v2, 5, v1')
        e('v_and_b32 v2, 3, v0')
        e(f'v_lshl_add_u32 {dst}, v2, 3, v1')
        if extra_s:
            e(f'v_add_u32 {dst}, {extra_s}, {dst}')

    def build(self):
        e = self.A.e
        e(f'{NAME}_kernel:')
        e('s_cmp_ge_u32 s2, 256')
        e('s_cbranch_scc1 L_end')
        e('s_load_dwordx16 s[16:31], s[0:1], 0')
        e('s_load_dwordx8 s[32:39], s[0:1], 64')
        e('s_load_dwordx2 s[40:41], s[0:1], 96')
        e(f's_getreg_b32 {sCLS}, hwreg(HW_REG_XCC_ID, 0, 3)')
        e('v_lshrrev_b32 v1, 6, v0')
        e('v_and_b32 v0, 63, v0')
        e(f'v_readfirstlane_b32 {sW}, v1')
        e(f's_mov_b32 {sSPIN}, 0x200000')
        e(f's_mov_b32 {sFAST}, 0')
        e('s_waitcnt lgkmcnt(0)')
        e('s_mov_b32 s8, s40')
        e('s_and_b32 s9, s41, 0xffff')
        e(f's_mov_b32 s10, {WS_BYTES:#x}')
        e('s_mov_b32 s11, 0x20000')
        e('s_mov_b32 s12, s38')
        e('s_and_b32 s13, s39, 0xffff')
        e('s_mov_b32 s14, 256')
        e('s_mov_b32 s15, 0x20000')
        e('v_mov_b32 v3, 0')
        e(f's_cmp_lg_u32 {sW}, 0')
        e('s_cbranch_scc1 L_tk')
        e(f's_lshl_b32 s60, {sCLS}, 5')
        e('v_mov_b32 v2, 1')
        e('s_mov_b64 exec, 1')
        e(f'buffer_atomic_add v2, off, {DBG}, s60 sc0')
        e('s_waitcnt vmcnt(0)')
        e('ds_write_b32 v3, v2')
        e('s_waitcnt lgkmcnt(0)')
        e('s_mov_b64 exec, -1')
        e('L_tk:')
        e('s_barrier')
        e('ds_read_b32 v2, v3')
        e('s_waitcnt lgkmcnt(0)')
        e(f'v_readfirstlane_b32 {sSLOT}, v2')
        e('s_barrier')
        e(f's_cmp_ge_u32 {sSLOT}, 32')
        e('s_cbranch_scc1 L_fail')
        if self.diag:
            e(f's_lshl_b32 s97, {sCLS}, 5')
            e(f's_add_u32 s97, s97, {sSLOT}')
            e('s_lshl_b32 s97, s97, 2')
            e(f's_add_u32 s97, s97, {sW}')
            e('s_lshl_b32 s97, s97, 13')
            e(f's_add_u32 s97, s97, {TS}')
            self.stamp(0, real=True)
        self.dbgtime(2)
        e(f's_cmp_lt_u32 {sSLOT}, 12')
        e('s_cbranch_scc1 L_chain')
        e(f's_cmp_lt_u32 {sSLOT}, 21')
        e('s_cbranch_scc1 L_qkv')
        self.ln1_phase()
        self.rest_roles()
        e('L_fail:')
        e('v_mov_b32 v2, 1')
        e('s_mov_b64 exec, 1')
        e(f'buffer_atomic_add v2, off, {DBG}, 0 offset:4')
        e('s_waitcnt vmcnt(0)')
        e('L_end:')
        e('s_endpgm')
        if self.on('chain'):
            self.role_chain()
        else:
            e('L_chain:')
            self.arrive()
            e('s_endpgm')
        self.role_qkv()
        if self.opt['fake16']:
            import re
            out = []
            cnt = {}
            inattn = False
            for l in self.A.lines:
                if l.startswith('L_at_loop'):
                    inattn = True
                if l.startswith('L_r:'):
                    inattn = False
                m = re.match(r'v_mfma_f32_32x32x16_bf16 v\[(\d+):(\d+)\], (\S+), (\S+), (\S+)', l)
                if m and not inattn:
                    d = int(m.group(1))
                    if m.group(5) == '0':
                        cnt[d] = 0
                    k = cnt[d]
                    cnt[d] += 1
                    for h in range(2):
                        r = d + 4 * h + 8 * (k & 1)
                        c = '0' if k < 2 else v(r, 4)
                        out.append(f'v_mfma_f32_16x16x32_bf16 {v(r,4)}, {m.group(3)}, {m.group(4)}, {c}')
                else:
                    out.append(l)
            self.A.lines = out
        n = self.A.pad()
        head = open(os.path.join(os.path.dirname(os.path.abspath(__file__)), 'head.txt')).read()
        out = head + '; @launch grid=(256,1,1) block=(256,1,1) lds=163840\n'
        out += '.amdgcn_target "amdgcn-amd-amdhsa--gfx950"\n.text\n'
        out += f'.globl {NAME}_kernel\n.p2align 8\n.type {NAME}_kernel,@function\n'
        out += self.A.text()
        out += f'''.section .rodata,"a"
.p2align 6
.amdhsa_kernel {NAME}_kernel
  .amdhsa_next_free_vgpr 512
  .amdhsa_next_free_sgpr 102
  .amdhsa_accum_offset 256
  .amdhsa_group_segment_fixed_size 0
  .amdhsa_kernarg_size 104
  .amdhsa_user_sgpr_count 2
  .amdhsa_user_sgpr_kernarg_segment_ptr 1
  .amdhsa_system_sgpr_workgroup_id_x 1
.end_amdhsa_kernel
'''
        return out, n


if __name__ == '__main__':
    import argparse
    ap = argparse.ArgumentParser()
    ap.add_argument('-o', default='out.s')
    ap.add_argument('--L', type=int, default=6)
    ap.add_argument('--A', type=int, default=6)
    ap.add_argument('--roles', default='all')
    ap.add_argument('--diag', action='store_true')
    ap.add_argument('--slow', action='store_true')
    ap.add_argument('--nsteps', type=int, default=None)
    ap.add_argument('--opt', default='')
    args = ap.parse_args()
    opt = {k: int(x) for k, x in (kv.split('=') for kv in args.opt.split(',') if kv)}
    g = Gen(opt=opt, L=args.L, A=args.A, roles=args.roles, diag=args.diag, nsteps=args.nsteps, force_slow=args.slow)
    txt, n = g.build()
    open(args.o, 'w').write(txt)
    print('wrote', args.o, len(txt), 'bytes; nop states inserted:', n)
```

```python
from common import *


class ChainMixin:
    def role_chain(self):
        e = self.A.e
        A = self.A
        L = self.L
        RQ = self.opt['rq']
        e('L_chain:')
        sHH, sP, sTILE, sS = 's64', 's65', 's66', 's67'
        sAGr, sAGw = 's68', 's69'
        sSw, sSa, sSb = 's71', 's73', 's74'
        sOw, sOr, sCw = 's75', 's77', 's78'
        sN1, sN2, sQ1, sQ2, sPF, sPCH = 's82', 's83', 's84', 's85', 's86', 's87'
        mL2, mINV, mT, mU = 's[88:89]', 's[90:91]', 's[92:93]', 's[94:95]'
        sHEAD = 's96'
        sK1, sK2 = 's42', 's43'
        sCR = ['s%d' % i for i in range(48, 55)]
        cAG, cAG4, cSw, cSa, cSb, cOw, cOr, cOr4, cCw, cAGw = 's55', 's56', 's57', 's58', 's59', 's70', 's72', 's76', 's79', 's80'
        sW5, sW6, sQW, sW10 = 's81', 's61', 's62', 's63'
        nAGw, cK1, cK2, rO, rS, rAG, xV0, xV1, xK = 's16', 's17', 's18', 's19', 's20', 's21', 's22', 's23', 's24'
        e(f's_mul_i32 {sHH}, {sSLOT}, 11')
        e(f's_lshr_b32 {sHH}, {sHH}, 5')
        e(f's_mul_i32 s60, {sHH}, 3')
        e(f's_sub_u32 {sP}, {sSLOT}, s60')
        e(f's_lshl_b32 {sTILE}, {sSLOT}, 2')
        e(f's_add_u32 {sTILE}, {sTILE}, {sW}')
        e(f's_lshl_b32 {sHEAD}, {sCLS}, 2')
        e(f's_add_u32 {sHEAD}, {sHEAD}, {sHH}')
        vVM, vL16, vTW, vGA, vGO, vFL, vK, SEL, vV, vKM = 1, 2, 3, 4, 5, 6, 7, 8, 12, 13
        e(f'v_lshlrev_b32 {v(vL16)}, 4, v0')
        e('v_and_b32 v16, 15, v0')
        e('v_lshrrev_b32 v17, 4, v0')
        e('v_lshlrev_b32 v18, 5, v16')
        e(f'v_lshl_add_u32 {v(vTW)}, v17, 3, v18')
        e('v_lshrrev_b32 v19, 1, v17')
        e('v_and_b32 v20, 1, v17')
        e('v_lshl_add_u32 v18, v19, 9, v18')
        e('v_lshl_add_u32 v18, v20, 4, v18')
        e(f's_mul_i32 s60, {sW}, 5120')
        e(f'v_add_u32 {v(vGA)}, s60, v18')
        e(f's_mul_i32 s60, {sW}, 6144')
        e(f'v_add_u32 {v(vGO)}, s60, v18')
        XB_ = self.opt['xb']
        if XB_:
            e(f's_mov_b32 {sAGr}, {AGG}')
        else:
            e(f's_mul_i32 s60, {sCLS}, {AG_C}')
            e(f's_add_u32 {sAGr}, s60, {CH_AG}')
        e(f's_lshl_b32 s61, {sTILE}, 9')
        e(f's_add_u32 {sAGw}, {sAGr}, s61')
        e(f's_mul_i32 s60, {sCLS}, {S_C}')
        e(f's_add_u32 s60, s60, {CH_S}')
        e(f's_lshl_b32 s61, {sW}, 10')
        e('s_add_u32 s60, s60, s61')
        e(f's_mul_i32 s61, {sSLOT}, 3072')
        e(f's_add_u32 {sSw}, s60, s61')
        e(f's_add_u32 s61, {sP}, 1')
        e('s_cmp_eq_u32 s61, 3')
        e('s_cselect_b32 s61, 0, s61')
        e(f's_mul_i32 s62, {sHH}, 3')
        e('s_add_u32 s63, s62, s61')
        e('s_mul_i32 s63, s63, 3072')
        e(f's_add_u32 {sSa}, s60, s63')
        e('s_add_u32 s61, s61, 1')
        e('s_cmp_eq_u32 s61, 3')
        e('s_cselect_b32 s61, 0, s61')
        e('s_add_u32 s63, s62, s61')
        e('s_mul_i32 s63, s63, 3072')
        e(f's_add_u32 {sSb}, s60, s63')
        e(f's_mul_i32 s60, {sCLS}, {O_C}')
        e(f's_add_u32 {sOr}, s60, {CH_O}')
        e(f's_lshl_b32 s61, {sTILE}, 9')
        e(f's_add_u32 {sOw}, {sOr}, s61')
        e(f's_lshl_b32 s60, {sTILE}, 12')
        e(f's_lshl_b32 s61, {sCLS}, 9')
        e('s_add_u32 s60, s60, s61')
        e(f's_add_u32 {sCw}, s60, {CH_CR}')
        e(f's_lshl_b32 s60, {sCLS}, 8')
        e(f's_lshl_b32 s61, {sTILE}, 2')
        e('s_add_u32 s60, s60, s61')
        e(f's_add_u32 {sPCH}, s60, {P_CH}')
        SENT = 24
        for r in range(4):
            e(f'v_mov_b32 v{SENT+r}, -1')
        e('v_mov_b32 v28, 0')
        e('s_mov_b64 exec, 1')
        e(f'buffer_store_dword v28, off, {WS}, {sPCH} sc1')
        e('s_mov_b64 exec, -1')
        for sl in range(2):
            e(f's_add_u32 s60, {sOw}, {sl*O_S}')
            e(f'buffer_store_dwordx2 {v(SENT,2)}, {v(vTW)}, {WS}, s60 offen sc1')
        l3 = A.lab('i3')
        e(f's_cmp_eq_u32 {sW}, 3')
        e(f's_cbranch_scc1 {l3}')
        for sl in range(2):
            e(f's_add_u32 s60, {sSw}, {sl*S_S}')
            e(f'buffer_store_dwordx4 {v(SENT,4)}, {v(vL16)}, {WS}, s60 offen sc1')
        e(f'{l3}:')
        l4 = A.lab('i4')
        e(f's_cmp_ge_u32 {sTILE}, 40')
        e(f's_cbranch_scc1 {l4}')
        for sl in range(2):
            e(f's_add_u32 s60, {sCw}, {sl*CR_S}')
            e(f'buffer_store_dwordx2 {v(SENT,2)}, {v(vTW)}, {WS}, s60 offen sc1')
            e(f's_add_u32 s60, {sAGw}, {(sl+1)*AG_S}')
            e(f'buffer_store_dwordx2 {v(SENT,2)}, {v(vTW)}, {WS}, s60 offen sc1')
        e(f'{l4}:')
        self.arrive()
        self.srd(SRA, 'wq')
        self.srd(SRB, 'wk')
        self.srd(SRC, 'wv')
        self.srd(SRD, 'wo')
        e('v_lshrrev_b32 v21, 3, v0')
        e('v_and_b32 v22, 7, v0')
        e(f's_mul_i32 s60, {sW}, 40')
        e('v_add_u32 v23, s60, v21')
        e('s_mov_b32 s61, 12288')
        e('v_mul_lo_u32 v30, s61, v23')
        e('v_lshl_add_u32 v30, v22, 4, v30')
        e(f's_mul_i32 s60, {sHEAD}, 384')
        e(f's_lshl_b32 s61, {sP}, 7')
        e('s_add_u32 s60, s60, s61')
        e('v_add_u32 v30, s60, v30')

        def unit(cn):
            buf = 102400 * (1 - (cn & 1))
            for m, srd in enumerate((SRA, SRB, SRC)):
                e(f's_mul_i32 s60, {sW}, 5120')
                e(f's_add_u32 m0, s60, {buf + 20480 * m}')
                e(f's_mov_b32 s61, {cn * 160 * 12288}')
                self.dma(5, 'v30', srd, 's61', 8 * 12288)
        unit(0)
        unit(1)
        self.stamp(2, real=True)
        e(f's_min_u32 s61, {sSLOT}, 9')
        e('s_lshl_b32 s61, s61, 7')
        e(f's_mul_i32 s60, {sCLS}, {768*1280}')
        e('s_add_u32 s60, s60, s61')
        e(f's_mul_i32 s61, {sW}, 192')
        e('v_add_u32 v23, s61, v21')
        e('v_mul_u32_u24 v31, 1280, v23')
        e('v_lshl_add_u32 v31, v22, 4, v31')
        e('v_add_u32 v31, s60, v31')
        e('v_bfe_u32 v21, v0, 2, 2')
        e('v_lshl_add_u32 v21, v17, 3, v21')
        e('v_lshlrev_b32 v21, 7, v21')
        e('v_bfe_u32 v22, v0, 1, 1')
        e('v_lshl_add_u32 v33, v22, 5, v21')
        e('v_and_b32 v22, 1, v0')
        e('v_lshl_add_u32 v33, v22, 3, v33')
        e(f's_lshr_b32 s60, {sW}, 1')
        e('s_lshl_b32 s60, s60, 6')
        e(f's_and_b32 s61, {sW}, 1')
        e('s_lshl_b32 s61, s61, 4')
        e('s_add_u32 s60, s60, s61')
        e('v_add_u32 v33, s60, v33')
        e('v_and_b32 v22, 3, v0')
        e('v_lshl_add_u32 v34, v22, 3, v21')
        e(f's_lshl_b32 s60, {sW}, 5')
        e('v_add_u32 v34, s60, v34')
        e('v_add_u32 v32, 102400, v33')
        e('v_add_u32 v35, 102400, v34')

        def Wo(k, n=4, u=0):
            r = 4 * k + 2 * u
            return a(240 + r, n) if r < 16 else v(176 + r - 16, n)

        def take(cn, n_left):
            e(f's_waitcnt vmcnt({n_left})')
            e('s_barrier')
            done = A.lab('tk')
            for w in range(4):
                nx = A.lab('tw')
                if w < 3:
                    e(f's_cmp_lg_u32 {sW}, {w}')
                    e(f's_cbranch_scc1 {nx}')
                gj = (cn - w) & 3
                for m in range(3):
                    ad = (('v33', 'v33', 'v34'), ('v32', 'v32', 'v35'))[1 - (cn & 1)][m]
                    for j in range(5):
                        for u in range(2):
                            e(f'ds_read_b64_tr_b16 {a(80*m + 4*(5*gj+j) + 2*u, 2)}, {ad} offset:{20480*m + j*4096 + u*512}')
                if w < 3:
                    e(f's_branch {done}')
                    e(f'{nx}:')
            e(f'{done}:')
            e('s_waitcnt lgkmcnt(0)')
            e('s_barrier')

        def take_wo(vad, vt):
            for gj in range(4):
                e(f's_add_u32 s60, {sW}, {gj}')
                e('s_and_b32 s60, s60, 3')
                e('s_mul_i32 s60, s60, 24576')
                e('s_add_u32 s60, s60, 61440')
                e(f'v_add_u32 {vt}, s60, {vad}')
                for j in range(6):
                    for u in range(2):
                        e(f'ds_read_b64_tr_b16 {Wo(6*gj+j, 2, u)}, {vt} offset:{j*4096+u*512}')
            e('s_waitcnt lgkmcnt(0)')
        e('v_lshrrev_b32 v21, 3, v16')
        e('v_lshlrev_b32 v21, 4, v21')
        e('v_bfe_u32 v22, v16, 2, 1')
        e('v_lshl_add_u32 v21, v22, 2, v21')
        e('v_and_b32 v22, 3, v16')
        e('v_add_u32 v21, v21, v22')
        e(f's_and_b32 s60, {sW}, 1')
        e('s_lshl_b32 s60, s60, 3')
        e('v_add_u32 v21, s60, v21')
        e('v_lshl_add_u32 v21, v20, 5, v21')
        e('v_lshlrev_b32 v21, 4, v21')
        e('v_lshl_add_u32 v21, v19, 10, v21')
        e(f's_mul_i32 s60, {sHEAD}, {QKV_HEAD}')
        self.clsoff('s60', 's61', QKV_HEAD, self.QL2)
        e(f's_lshl_b32 s61, {sP}, 12')
        e('s_add_u32 s60, s60, s61')
        e('s_add_u32 s61, s60, 12288')
        e(f'v_add_u32 {v(vK)}, s61, v21')
        e(f's_and_b32 s62, {sW}, 1')
        e('s_lshl_b32 s62, s62, 4')
        e('v_add_u32 v21, s62, v16')
        e('v_lshl_add_u32 v22, v20, 5, v21')
        e('v_lshlrev_b32 v22, 4, v22')
        e('v_lshl_add_u32 v22, v19, 10, v22')
        e(f's_lshr_b32 s63, {sW}, 1')
        e('s_lshl_b32 s61, s63, 11')
        e('s_add_u32 s61, s61, s60')
        e('s_add_u32 s61, s61, 24576')
        e(f'v_add_u32 {v(vV)}, s61, v22')
        l2off = self.KL2
        e('v_lshlrev_b32 v21, 3, v21')
        e('v_lshl_add_u32 v21, v20, 8, v21')
        e(f's_mov_b32 s61, {l2off}')
        e('v_mul_lo_u32 v22, s61, v19')
        e('v_add_u32 v21, v21, v22')
        e(f's_mul_i32 s60, {sHEAD}, {KM_HEAD}')
        self.clsoff('s60', 's62', KM_HEAD, self.KL2)
        e(f's_lshl_b32 s62, {sP}, 10')
        e('s_add_u32 s60, s60, s62')
        e(f's_add_u32 s60, s60, {KMVM}')
        e('s_lshl_b32 s62, s63, 9')
        e('s_add_u32 s62, s62, s60')
        e('s_add_u32 s62, s62, 3072')
        e(f'v_add_u32 {v(vVM)}, s62, v21')
        e('v_lshrrev_b32 v21, 3, v16')
        e('v_mul_lo_u32 v21, s61, v21')
        e('v_and_b32 v22, 7, v16')
        e('v_lshl_add_u32 v21, v22, 4, v21')
        e('v_lshl_add_u32 v21, v17, 7, v21')
        e(f'v_add_u32 {v(vKM)}, s60, v21')
        e(f's_mul_i32 s60, {sHH}, 9')
        e(f's_add_u32 s60, s60, {sP}')
        e('s_add_u32 s60, s60, 3')
        e('v_and_b32 v21, 1, v0')
        e('v_mul_u32_u24 v21, 3, v21')
        e('v_add_u32 v21, s60, v21')
        e(f'v_lshlrev_b32 {v(vFL)}, 2, v21')
        e(f's_lshl_b32 s60, {sCLS}, 8')
        e(f's_add_u32 {sPF}, s60, {P_QKV}')
        e('s_mov_b32 s88, 0xff00ff00')
        e('s_mov_b32 s89, 0xff00ff00')
        e('s_mov_b32 s90, 0xff00ff00')
        e('s_mov_b32 s91, 0x00ff00ff')
        e('v_lshrrev_b32 v21, 2, v16')
        e('v_and_b32 v22, 3, v16')
        e('v_cmp_ne_u32 vcc, v21, v17')
        e('v_cndmask_b32 v22, v22, 15, vcc')
        e('v_mov_b32 v21, 0x3f80')
        e('v_mov_b32 v23, 0x3f800000')
        for d in range(2):
            e(f'v_cmp_eq_u32 vcc, {2*d}, v22')
            e(f'v_cndmask_b32 {v(SEL+d)}, 0, v21, vcc')
            e(f'v_cmp_eq_u32 vcc, {2*d+1}, v22')
            e(f'v_cndmask_b32 {v(SEL+d)}, {v(SEL+d)}, v23, vcc')
            e(f'v_mov_b32 {v(SEL+2+d)}, {v(SEL+d)}')
        take(0, 15)
        unit(2)
        self.stamp(3, real=True)
        take(1, 15)
        unit(3)
        self.stamp(4, real=True)
        take(2, 15)
        e(f's_mul_i32 s60, {sW}, 24576')
        e('s_add_u32 m0, s60, 61440')
        e('s_mov_b32 s61, 0')
        self.dma(24, 'v31', SRD, 's61', 8 * 1280)
        self.stamp(5, real=True)
        take(3, 24)
        QA, KA, VA_, VMP = 16, 20, 24, 28
        KX, VX, QF, KF, G, MEM = 32, 48, 56, 64, 72, 96
        ONESQ = G + 20
        QX, KXL, SL, OL = 45056, 47104, 49152, 20480
        e('v_mov_b32 v58, 0')
        e('v_mov_b32 v59, 0')
        self.srd(SRA, 'mem0')
        for i in range(7):
            e(f's_add_u32 s60, {sCLS}, {i+1}')
            e('s_and_b32 s60, s60, 7')
            e('s_lshl_b32 s60, s60, 9')
            e(f's_lshl_b32 {sCR[i]}, {sTILE}, 12')
            e(f's_add_u32 {sCR[i]}, {sCR[i]}, s60')
            e(f's_add_u32 {sCR[i]}, {sCR[i]}, {CH_CR}')
        e(f's_mul_i32 s32, {sTILE}, 52')
        e('s_lshr_b32 s32, s32, 8')
        e(f's_cmp_eq_u32 s32, {sCLS}')
        e('s_cselect_b32 s32, 1, 0')
        for g in range(3):
            e(f's_add_u32 s60, {sW}, {g+1}')
            e('s_and_b32 s60, s60, 3')
            e(f's_mul_i32 s{33+g}, s60, 5120')
            e(f's_mul_i32 s{36+g}, s60, 6144')
        e(f's_mul_i32 s27, {sCLS}, 12')
        e(f's_add_u32 s27, s27, {sSLOT}')
        e('s_lshl_b32 s27, s27, 10')
        e(f's_add_u32 s27, s27, {SCRATCH}')
        e(f's_mul_i32 {sW5}, {sW}, 5120')
        e(f's_mul_i32 {sW6}, {sW}, 6144')
        e(f's_lshl_b32 {sW10}, {sW}, 10')
        e(f's_lshr_b32 {sQW}, {sW}, 1')
        e(f's_lshl_b32 {sQW}, {sQW}, 10')
        e(f's_and_b32 s60, {sW}, 1')
        e('s_lshl_b32 s60, s60, 3')
        e(f's_add_u32 {sQW}, {sQW}, s60')
        self.stamp(6, real=True)
        e('v_mov_b32 v255, v34')
        self.wait_init('v21', 'v22', 's92')
        self.stamp(1, real=True)
        self.dbgtime(3)
        self.flush()
        e(f's_mov_b32 {sS}, 0')
        e(f's_mov_b32 {sK1}, 0')
        e(f's_mov_b32 {sK2}, 0')
        e(f's_cmp_eq_u32 {sFAST}, 0')
        e('s_cbranch_scc1 L_ch_init_s')

        def maxtree(dst, first, n):
            e(f'v_max3_u32 {dst}, {v(first)}, {v(first+1)}, {v(first+2)}')
            k = 3
            while k < n:
                if k + 1 < n:
                    e(f'v_max3_u32 {dst}, {dst}, {v(first+k)}, {v(first+k+1)}')
                    k += 2
                else:
                    e(f'v_max_u32 {dst}, {dst}, {v(first+k)}')
                    k += 1

        def maxtree2(d0, d1, first, n):
            h = n // 2
            maxtree(d0, first, h)
            maxtree(d1, first + h, n - h)
            e(f'v_max_u32 {d0}, {d0}, {d1}')

        def flagload():
            e(f'buffer_load_dword v58, {v(vFL)}, {WS}, {sPF} offen sc1')
            e(f'buffer_load_dword v59, {v(vFL)}, {WS}, {sPF} offen offset:2048 sc1')

        def flagtake():
            e(f'v_readlane_b32 {sK1}, v58, 0')
            e('v_readlane_b32 s92, v58, 1')
            e(f'v_readlane_b32 {sK2}, v59, 0')
            e('v_readlane_b32 s93, v59, 1')
            e(f's_min_u32 {sK1}, {sK1}, s92')
            e(f's_min_u32 {sK2}, {sK2}, s93')

        def loop(md):
            X_ = '' if md == 'f' else ' sc1'
            tails = []

            def gather(tag, n, vsrc, s0, s4, vlds, ldsoff, young=None, ny=0, G=G, after=None):
                def ld(i):
                    so, im = (s0, 1024 * i) if i < 4 else (s4, 1024 * (i - 4))
                    e(f'buffer_load_dwordx4 {v(G+4*i,4)}, {v(vsrc)}, {WS}, {so} offen offset:{im} sc1')

                def chk(i):
                    e(f'v_max3_u32 v30, {v(G+4*i)}, {v(G+4*i+1)}, {v(G+4*i+2)}')
                    e(f'v_max_u32 v30, v30, {v(G+4*i+3)}')
                    e('v_cmp_eq_u32 vcc, -1, v30')
                for i in range(n):
                    ld(i)
                if young:
                    young()
                for i in range(n):
                    e(f's_waitcnt vmcnt({n-1-i+ny})')
                    e(f'L_{tag}c{i}_{md}:')
                    chk(i)
                    e(f's_cbranch_vccnz L_{tag}r{i}_{md}')
                    e(f'L_{tag}p{i}_{md}:')
                    e(f'ds_write_b128 {vlds}, {v(G+4*i,4)} offset:{ldsoff+1024*i}')
                    if after:
                        after(i)

                def tail():
                    for i in range(n):
                        e(f'L_{tag}r{i}_{md}:')
                        for j in range(i, n):
                            ld(j)
                        if self.opt['lean']:
                            e(f's_waitcnt vmcnt({n-1-i})')
                            e(f'L_{tag}l{i}_{md}:')
                            chk(i)
                            e(f's_cbranch_vccz L_{tag}p{i}_{md}')
                            ld(i)
                            e(f's_sub_u32 {sSPIN}, {sSPIN}, 1')
                            e('s_cbranch_scc1 L_fail')
                            e('s_waitcnt vmcnt(0)')
                            e(f's_branch L_{tag}l{i}_{md}')
                        else:
                            if ny:
                                flagload()
                            e(f's_sub_u32 {sSPIN}, {sSPIN}, 1')
                            e('s_cbranch_scc1 L_fail')
                            e(f's_waitcnt vmcnt({n-1-i+ny})')
                            e(f's_branch L_{tag}c{i}_{md}')
                tails.append(tail)

            def nextkv_steps():
                yield lambda: (e(f's_add_u32 s92, {sS}, 1'), e(f's_and_b32 s60, {sS}, {RQ-1}'))
                yield lambda: (e(f's_mul_i32 {sQ1}, s60, {QKV_SEG}'), e(f's_add_u32 {sQ1}, {sQ1}, {QKV}'))
                yield lambda: (e(f's_cmp_lt_u32 {sS}, 64'), e(f's_cselect_b32 {sN1}, s92, 0'),
                               e(f's_cselect_b32 {sQ1}, {sQ1}, s10'))
                yield lambda: (e(f's_sub_u32 s60, {sS}, {L}'), e(f's_and_b32 s60, s60, {RQ-1}'))
                yield lambda: (e(f's_mul_i32 {sQ2}, s60, {QKV_SEG}'), e(f's_add_u32 {sQ2}, {sQ2}, {QKV + self.QL2}'))
                yield lambda: (e(f's_sub_u32 s92, s92, {L}'), e(f's_cmp_ge_u32 {sS}, {L}'))
                yield lambda: (e(f's_cselect_b32 {sN2}, s92, 0'), e(f's_cselect_b32 {sQ2}, {sQ2}, s10'))
                yield lambda: (e(f's_cmp_ge_u32 {sS}, {64 + L}'), e(f's_cselect_b32 {sN2}, 0, {sN2}'),
                               e(f's_cselect_b32 {sQ2}, s10, {sQ2}'))

            def ready():
                e(f's_cmp_gt_u32 {sN1}, {sK1}')
                e('s_cselect_b32 s30, 1, 0')
                e(f's_cmp_gt_u32 {sN2}, {sK2}')
                e('s_cselect_b32 s30, 1, s30')

            kvl = [f'buffer_load_dwordx4 {v(KX,4)}, {v(vK)}, {WS}, {sQ1} offen sc1',
                   f'buffer_load_dwordx4 {v(KX+4,4)}, {v(vK)}, {WS}, {sQ1} offen offset:2048 sc1',
                   f'buffer_load_dwordx4 {v(KX+8,4)}, {v(vK)}, {WS}, {sQ2} offen sc1',
                   f'buffer_load_dwordx4 {v(KX+12,4)}, {v(vK)}, {WS}, {sQ2} offen offset:2048 sc1',
                   f'buffer_load_dwordx4 {v(VX,4)}, {v(vV)}, {WS}, {sQ1} offen sc1',
                   f'buffer_load_dwordx4 {v(VX+4,4)}, {v(vV)}, {WS}, {sQ2} offen sc1']

            def scalars():
                e(f's_and_b32 s60, {sS}, 3')
                e(f's_mul_i32 s92, {sS if XB_ else "s60"}, {AG_S}')
                e(f's_add_u32 {cAG}, s92, {sAGr}')
                e(f's_add_u32 {cAG4}, {cAG}, 4096')
                e(f's_mul_i32 s92, s60, {S_S}')
                e(f's_add_u32 {cSw}, s92, {sSw}')
                e(f's_add_u32 {cSa}, s92, {sSa}')
                e(f's_add_u32 {cSb}, s92, {sSb}')
                e(f's_mul_i32 s92, s60, {O_S}')
                e(f's_add_u32 {cOw}, s92, {sOw}')
                e(f's_add_u32 {cOr}, s92, {sOr}')
                e(f's_add_u32 {cOr4}, {cOr}, 4096')
                e('s_xor_b32 s60, s60, 2')
                e(f's_mul_i32 s92, s60, {O_S}')
                e(f's_add_u32 {rO}, s92, {sOw}')
                e(f's_mul_i32 s92, s60, {S_S}')
                e(f's_add_u32 {rS}, s92, {sSw}')
                e(f's_cmp_eq_u32 {sW}, 3')
                e(f's_cselect_b32 {rS}, s27, {rS}')
                e(f's_and_b32 s60, {sS}, {self.opt["crring"]-1}')
                e(f's_mul_i32 {cCw}, s60, {CR_S}')
                e(f's_add_u32 s92, {sS}, 1')
                e('s_and_b32 s93, s92, 3')
                e(f's_mul_i32 s94, {"s92" if XB_ else "s93"}, {AG_S}')
                e(f's_add_u32 {nAGw}, s94, {sAGw}')
                e('s_xor_b32 s93, s93, 2')
                e(f's_mul_i32 s94, s93, {AG_S}')
                e(f's_add_u32 {rAG}, s94, {sAGw}')
                e(f's_cmp_lt_u32 {sS}, 64')
                e(f's_cselect_b32 {xV0}, -1, 0')
                e(f's_cselect_b32 {xK}, 0x00ff00ff, 0')
                e(f's_cmp_ge_u32 {sS}, {L}')
                e(f's_cselect_b32 {xV1}, -1, 0')
                e('s_cselect_b32 s92, 0xff00ff00, 0')
                e(f's_or_b32 {xK}, {xK}, s92')
                e(f's_mov_b32 s25, {xK}')
                e(f's_and_b32 s60, {sS}, {RQ-1}')
                e(f's_mul_i32 {cK1}, s60, {KM_SEG}')
                e(f's_sub_u32 s60, {sS}, {L}')
                e(f's_and_b32 s60, s60, {RQ-1}')
                e(f's_mul_i32 {cK2}, s60, {KM_SEG}')
                e(f's_cmp_eq_u32 {sS}, 0')
                e('s_cselect_b32 s26, 1, 0')
                e(f's_cmp_eq_u32 {sS}, {L}')
                e('s_cselect_b32 s26, 1, s26')
                e(f'v_add_u32 v29, {sW5}, {v(vL16)}')

            e(f'L_ch_init_{md}:')
            for x in nextkv_steps():
                x()
            e('s_mov_b32 s30, 1')
            e(f's_mov_b32 s31, {6000 if self.opt["anchor"] else 16}')
            e('s_mov_b32 s28, 0')
            scalars()
            e(f'L_ch_step_{md}:')
            e('s_cmp_lg_u32 s26, 0')
            e(f's_cbranch_scc1 L_ch_sp_{md}')
            if self.opt['agdelay']:
                e(f's_sleep {self.opt["agdelay"]}')

            def qk(k):
                e(f'v_mfma_f32_16x16x32_bf16 {v(QA,4)}, {a(4*k,4)}, {v(MEM+4*k,4)}, {"0" if k==0 else v(QA,4)}')
                e(f'v_mfma_f32_16x16x32_bf16 {v(KA,4)}, {a(80+4*k,4)}, {v(MEM+4*k,4)}, {"0" if k==0 else v(KA,4)}')

            def agyoung():
                flagload()
                for g in range(3):
                    e(f'v_add_u32 {v(G+16+g)}, s{33+g}, {v(vL16)}')
            NPRE = self.opt['npre']
            gather('ag', 5, vGA, cAG, cAG4, 'v29', 0, agyoung, 2, MEM, lambda i: qk(i) if i < NPRE else None)
            e(f'L_ch_ag_{md}:')

            def special():
                e(f'L_ch_sp_{md}:')
                e('v_and_b32 v28, 7, v0')
                e('v_mul_u32_u24 v28, 1280, v28')
                e('v_lshrrev_b32 v30, 4, v0')
                e('v_lshl_add_u32 v28, v30, 4, v28')
                e(f's_mul_i32 s60, {sW}, 320')
                e('v_add_u32 v28, s60, v28')
                for i in range(5):
                    e(f'buffer_load_dwordx4 {v(G+4*i,4)}, v28, {SRA}, 0 offen offset:{64*i}')
                e(f's_mov_b64 {mT}, -1')
                e(f's_cmp_eq_u32 {sS}, 0')
                e(f's_cbranch_scc1 L_ch_sq_{md}')
                e(f's_mov_b64 {mT}, {mL2}')
                e(f'L_ch_sr_{md}:')
                for i in range(5):
                    so, im = (cAG, 1024 * i) if i < 4 else (cAG4, 0)
                    e(f'buffer_load_dwordx4 {v(MEM+4*i,4)}, {v(vGA)}, {WS}, {so} offen offset:{im} sc1')
                e('s_waitcnt vmcnt(0)')
                maxtree2('v28', 'v30', MEM, 20)
                e('v_cmp_eq_u32 vcc, -1, v28')
                e(f's_cbranch_vccz L_ch_sq_{md}')
                self.spin(f'L_ch_sr_{md}')
                e(f'L_ch_sq_{md}:')
                e('s_waitcnt vmcnt(0)')
                for i in range(20):
                    e(f'v_cndmask_b32 {v(MEM+i)}, {v(MEM+i)}, {v(G+i)}, {mT}')
                for i in range(5):
                    e(f'ds_write_b128 v29, {v(MEM+4*i,4)} offset:{1024*i}')
                agyoung()
                for i in range(NPRE):
                    qk(i)
                e(f's_branch L_ch_ag_{md}')
                e(f'L_ch_fl_{md}:')
                flagload()
                e('s_waitcnt vmcnt(0)')
                flagtake()
                ready()
                e('s_cmp_eq_u32 s30, 0')
                e(f's_cbranch_scc1 L_ch_fc_{md}')
                self.spin(f'L_ch_fl_{md}', 2)
            tails.append(special)
            self.stamp(7)
            self.note(11, sSPIN)
            self.flush()
            self.stamp(0)
            self.stamp(15, real=True)
            e('s_waitcnt lgkmcnt(0)')
            e('s_barrier')
            PF = 8

            def mrd(k):
                e(f'ds_read_b128 {v(MEM+4*k,4)}, {v(G + 15 + k//5)} offset:{1024*(k%5)}')
            for k in range(5, 5 + PF):
                mrd(k)
            e(f's_mov_b32 {cAGw}, {nAGw}')
            e('s_waitcnt vmcnt(0)')
            flagtake()
            ready()
            e('s_cmp_lg_u32 s30, 0')
            e(f's_cbranch_scc1 L_ch_fl_{md}')
            e(f'L_ch_fc_{md}:')
            kq = list(kvl)
            for k in range(NPRE, 5):
                qk(k)
                for _ in range(2):
                    if len(kq) > 2:
                        e(kq.pop(0))
            for k in range(5, 20):
                if k + PF < 20:
                    mrd(k + PF)
                e(f's_waitcnt lgkmcnt({min(PF, 19-k)})')
                qk(k)
                if kq and (len(kq) > 2 or k >= self.opt['vat']):
                    e(kq.pop(0))
                if 13 <= k < 17:
                    e(f'v_mov_b32 {v(ONESQ+k-13)}, 0x3f803f80')
                if k == 17:
                    e(f'v_add_u32 v30, {sQW}, {v(vL16)}')
                if k == 18:
                    e(f'v_add_u32 v31, {sW10}, {v(vL16)}')
            vk = [0]

            def vm(n):
                for _ in range(n):
                    k = vk[0]
                    if k < 20:
                        e(f'v_mfma_f32_16x16x32_bf16 {v(VA_,4)}, {v(MEM+4*k,4)}, {a(160+4*k,4)}, {"0" if k==0 else v(VA_,4)}')
                        vk[0] += 1
            vm(1)
            e(f'v_cvt_pk_bf16_f32 {v(G)}, {v(QA)}, {v(QA+1)}')
            e(f'v_cvt_pk_bf16_f32 {v(G+1)}, {v(QA+2)}, {v(QA+3)}')
            e(f'ds_write_b64 v30, {v(G,2)} offset:{QX}')
            e(f'v_cvt_pk_bf16_f32 {v(G+2)}, {v(KA)}, {v(KA+1)}')
            e(f'v_cvt_pk_bf16_f32 {v(G+3)}, {v(KA+2)}, {v(KA+3)}')
            e(f'ds_write_b64 v30, {v(G+2,2)} offset:{KXL}')
            vm(3)
            e('s_waitcnt lgkmcnt(0)')
            e('s_barrier')
            self.stamp(1)
            S4 = G + 4
            e(f'ds_read_b128 {v(QF,4)}, {v(vL16)} offset:{QX}')
            e(f'ds_read_b128 {v(QF+4,4)}, {v(vL16)} offset:{QX+1024}')
            e(f'ds_read_b128 {v(KF,4)}, {v(vL16)} offset:{KXL}')
            e(f'ds_read_b128 {v(KF+4,4)}, {v(vL16)} offset:{KXL+1024}')
            XA_ = G + 12
            def export_addr():
                e(f'v_mov_b32 {v(XA_+3)}, {cK1}')
                e(f'v_mov_b32 {v(XA_+2)}, {cK2}')
                e('s_mov_b32 s92, 0')
                e('s_mov_b32 s93, -1')
                e(f'v_cndmask_b32 {v(XA_)}, {v(XA_+3)}, {v(XA_+2)}, {mL2}')
                e(f'v_cndmask_b32 {v(XA_+1)}, {v(XA_+3)}, {v(XA_+2)}, {mT}')
                e(f'v_add_u32 {v(XA_)}, {v(XA_)}, {v(vKM)}')
                e(f'v_add_u32 {v(XA_+1)}, {v(XA_+1)}, {v(vVM)}')

            def export_v():
                e('s_mov_b64 exec, s[22:23]')
                e(f'buffer_store_dwordx2 {v(VMP,2)}, {v(XA_+1)}, {WS}, 0 offen{X_}')
                e('s_mov_b64 exec, -1')

            def export_k():
                e('s_mov_b64 exec, s[24:25]')
                e(f'buffer_store_dwordx4 {v(KF,4)}, {v(XA_)}, {WS}, 0 offen{X_}')
                e(f'buffer_store_dwordx4 {v(KF+4,4)}, {v(XA_)}, {WS}, 0 offen offset:512{X_}')
                e('s_mov_b64 exec, -1')

            vm(4)
            save = vk[0]
            R0, R1 = MEM + 16, MEM
            lw2, lw3, lwe = A.lab('w2'), A.lab('w3'), A.lab('we')

            def ld2(r):
                e(f'buffer_load_dwordx4 {v(r,4)}, {v(vL16)}, {WS}, {cSa} offen sc1')
                e(f'buffer_load_dwordx4 {v(r+4,4)}, {v(vL16)}, {WS}, {cSb} offen sc1')

            def exchange(mm):
                lsp, lso = A.lab('sp'), A.lab('so')
                e(f'buffer_store_dwordx4 {v(S4,4)}, {v(vL16)}, {WS}, {cSw} offen{X_}')
                self.xstamp(8)
                vm(self.opt['sv1'])
                ld2(R1)
                vm(20)
                if mm:
                    e('v_mov_b32 v28, 0xff800000')
                    for i in range(4):
                        e(f'v_cndmask_b32 {v(S4+4+i)}, {v(S4+i)}, v28, {mINV}')
                own = S4 + 4 if mm else S4
                ld2(R0)
                export_addr()

                def add(r):
                    e(f'v_pk_add_f32 {v(r+8,2)}, {v(r,2)}, {v(r+4,2)}')
                    e(f'v_pk_add_f32 {v(r+10,2)}, {v(r+2,2)}, {v(r+6,2)}')
                    e(f'v_cmp_u_f32 vcc, {v(r+8)}, {v(r+9)}')
                    e(f'v_cmp_u_f32 {mT}, {v(r+10)}, {v(r+11)}')
                    e(f'v_pk_add_f32 {v(QA,2)}, {v(own,2)}, {v(r+8,2)}')
                    e(f'v_pk_add_f32 {v(QA+2,2)}, {v(own+2,2)}, {v(r+10,2)}')
                    e(f's_or_b64 vcc, vcc, {mT}')
                e(f'v_cvt_pk_bf16_f32 {v(VMP)}, {v(VA_)}, {v(VA_+1)}')
                e(f'v_cvt_pk_bf16_f32 {v(VMP+1)}, {v(VA_+2)}, {v(VA_+3)}')
                e('s_waitcnt vmcnt(2)')
                self.xstamp(9)
                add(R1)
                e(f's_cbranch_vccnz {lsp}')
                e(f'{lso}:')
                self.stamp(12)
                self.note(8, sSPIN)
                e(f'ds_write_b128 v31, {v(QA,4)} offset:{SL}')

                def stail():
                    e(f'{lsp}:')
                    for r in (R1, R0):
                        maxtree2('v30', v(KA), r, 8)
                        e('v_cmp_eq_u32 vcc, -1, v30')
                        e(f's_cbranch_vccz {lso}')
                        ld2(r)
                        e('s_waitcnt vmcnt(2)')
                        add(R0 if r == R1 else R1)
                        e(f's_cbranch_vccz {lso}')
                    self.spin(lsp)
                tails.append(stail)
            e(f's_cmp_ge_u32 {sW}, 2')
            e(f's_cbranch_scc1 {lw2}')
            e('s_waitcnt vmcnt(2) lgkmcnt(2)')
            self.xstamp(10)
            e(f'v_mfma_f32_16x16x32_bf16 {v(QA,4)}, {v(KX,4)}, {v(QF,4)}, 0')
            e(f'v_mfma_f32_16x16x32_bf16 {v(KA,4)}, {v(KX+8,4)}, {v(QF,4)}, 0')
            e(f'v_mfma_f32_16x16x32_bf16 {v(QA,4)}, {v(KX+4,4)}, {v(QF+4,4)}, {v(QA,4)}')
            e(f'v_mfma_f32_16x16x32_bf16 {v(KA,4)}, {v(KX+12,4)}, {v(QF+4,4)}, {v(KA,4)}')
            vm(1)
            for i in range(4):
                e(f'v_cndmask_b32 {v(S4+i)}, {v(QA+i)}, {v(KA+i)}, {mL2}')
            exchange(False)
            e(f'{lwe}:')

            def others():
                e(f'{lw2}:')
                e(f's_cmp_eq_u32 {sW}, 3')
                e(f's_cbranch_scc1 {lw3}')
                e('s_waitcnt lgkmcnt(0)')
                e(f'v_mfma_f32_16x16x32_bf16 {v(S4,4)}, {v(KF,4)}, {v(QF,4)}, 0')
                e(f'v_mfma_f32_16x16x32_bf16 {v(S4,4)}, {v(KF+4,4)}, {v(QF+4,4)}, {v(S4,4)}')
                vk[0] = save
                vm(1)
                exchange(True)
                e(f's_branch {lwe}')
                e(f'{lw3}:')
                vk[0] = save
                vm(20)
                export_addr()
                e('s_waitcnt lgkmcnt(0)')
                export_k()
                e(f'v_cvt_pk_bf16_f32 {v(VMP)}, {v(VA_)}, {v(VA_+1)}')
                e(f'v_cvt_pk_bf16_f32 {v(VMP+1)}, {v(VA_+2)}, {v(VA_+3)}')
                e('s_waitcnt vmcnt(2)')
                e(f's_branch {lwe}')
            tails.append(others)
            e(f's_mov_b32 s60, {f2u(SCALE_LOG2E):#x}')
            e('s_waitcnt lgkmcnt(0)')
            e('s_barrier')
            self.stamp(2)
            X = G
            for t in range(3):
                e(f'ds_read_b128 {v(X+4*t,4)}, {v(vL16)} offset:{SL+1024*t}')
            export_v()
            e('s_waitcnt lgkmcnt(1)')
            e(f'v_max3_f32 v30, {v(X)}, {v(X+1)}, {v(X+2)}')
            e(f'v_max3_f32 v31, {v(X+3)}, {v(X+4)}, {v(X+5)}')
            e(f'v_max3_f32 v30, v30, {v(X+6)}, {v(X+7)}')
            e('s_waitcnt lgkmcnt(0)')
            e(f'v_max3_f32 v31, v31, {v(X+8)}, {v(X+9)}')
            e(f'v_max3_f32 v30, v30, {v(X+10)}, {v(X+11)}')
            e('v_max_f32 v30, v30, v31')
            e('v_mov_b32 v31, v30')
            e('v_permlane32_swap_b32 v31, v30')
            e('v_max_f32 v30, v30, v31')
            e('v_mov_b32 v31, v30')
            e('v_permlane16_swap_b32 v31, v30')
            e('v_max_f32 v30, v30, v31')
            e('v_mul_f32 v30, s60, v30')
            order = [8, 9, 10, 11, 0, 1, 2, 3, 4, 5, 6, 7]
            PX, PM = QF, QF + 4
            for i in order[:4]:
                e(f'v_fma_f32 {v(X+i)}, {v(X+i)}, s60, -v30')
            for n, i in enumerate(order):
                e(f'v_exp_f32 {v(X+i)}, {v(X+i)}')
                if n + 4 < 12:
                    j = order[n + 4]
                    e(f'v_fma_f32 {v(X+j)}, {v(X+j)}, s60, -v30')
                if n == 4:
                    e(f'v_cvt_pk_bf16_f32 {v(PM)}, {v(X+8)}, {v(X+9)}')
                    e(f'v_cvt_pk_bf16_f32 {v(PM+1)}, {v(X+10)}, {v(X+11)}')
                if n == 6:
                    e(f'v_mfma_f32_16x16x16_bf16 {v(VA_,4)}, {v(ONESQ,2)}, {v(PM,2)}, 0')
                if n == 7:
                    e(f'v_mfma_f32_16x16x16_bf16 {v(QA,4)}, {v(VMP,2)}, {v(PM,2)}, 0')
                    e(f'v_cvt_pk_bf16_f32 {v(PX)}, {v(X)}, {v(X+1)}')
                if n == 8:
                    e(f'v_mfma_f32_16x16x16_bf16 {v(KA,4)}, {v(VMP,2)}, {v(PM,2)}, 0')
                    e(f'v_cvt_pk_bf16_f32 {v(PX+1)}, {v(X+2)}, {v(X+3)}')
                if n == 10:
                    e(f'v_cvt_pk_bf16_f32 {v(PX+2)}, {v(X+4)}, {v(X+5)}')
            e(f'v_cvt_pk_bf16_f32 {v(PX+3)}, {v(X+6)}, {v(X+7)}')
            e(f'v_mfma_f32_16x16x32_bf16 {v(VA_,4)}, {v(ONESQ,4)}, {v(PX,4)}, {v(VA_,4)}')
            e(f'v_mfma_f32_16x16x32_bf16 {v(QA,4)}, {v(VX,4)}, {v(PX,4)}, {v(QA,4)}')
            e(f'v_mfma_f32_16x16x32_bf16 {v(KA,4)}, {v(VX+4,4)}, {v(PX,4)}, {v(KA,4)}')
            e(f'v_add_u32 v31, {sW6}, {v(vL16)}')
            e(f's_add_u32 {sS}, {sS}, 1')
            e(f'v_rcp_f32 v30, {v(VA_)}')
            for i in range(4):
                e(f'v_cndmask_b32 {v(X+i)}, {v(QA+i)}, {v(KA+i)}, {mL2}')
            for i in range(4):
                e(f'v_mul_f32 {v(X+i)}, {v(X+i)}, v30')
            e(f'v_cvt_pk_bf16_f32 {v(QF+6)}, {v(X)}, {v(X+1)}')
            e(f'v_cvt_pk_bf16_f32 {v(QF+7)}, {v(X+2)}, {v(X+3)}')
            e(f'v_min_u32 {v(QF+6)}, -2, {v(QF+6)}')
            e(f'v_min_u32 {v(QF+7)}, -2, {v(QF+7)}')
            e(f'buffer_store_dwordx2 {v(QF+6,2)}, {v(vTW)}, {WS}, {cOw} offen{X_}')
            self.stamp(3)

            def sig():
                e(f'v_mov_b32 v29, {sS}')
                e('s_mov_b64 exec, 1')
                e(f'buffer_store_dword v29, off, {WS}, {sPCH}{X_}')
                e('s_mov_b64 exec, -1')
            e(f's_cmp_ge_u32 {sSLOT}, 10')
            e(f's_cbranch_scc1 L_ch_noop_{md}')
            e(f's_cmp_eq_u32 {sS}, 1')
            e(f's_cbranch_scc1 L_ch_wo_{md}')
            e(f'L_ch_wp_{md}:')

            def firstwo():
                e(f'L_ch_wo_{md}:')
                e(f'v_mov_b32 {v(MEM+40)}, v255')
                take_wo(v(MEM + 40), v(MEM + 41))
                e(f's_branch L_ch_wp_{md}')
            tails.append(firstwo)
            if self.opt['odelay']:
                e(f's_sleep {self.opt["odelay"]}')

            def op(k):
                b = v(G + 4 * k, 4) if k < 6 else v(MEM + 4 * (k - 6), 4)
                e(f'v_mfma_f32_16x16x32_bf16 {v(QA,4)}, {Wo(k)}, {b}, {"0" if k==0 else v(QA,4)}')

            def ogyoung():
                for g in range(3):
                    e(f'v_add_u32 {v(QF+3+g)}, s{36+g}, {v(vL16)}')
            OPRE = self.opt['opre']
            gather('og', 6, vGO, cOr, cOr4, 'v31', OL, ogyoung, 0, G, lambda i: op(i) if i < OPRE else None)
            self.stamp(13)
            self.note(9, sSPIN)
            e('s_waitcnt lgkmcnt(0)')
            e('s_barrier')
            self.stamp(4)

            def ord_(k):
                e(f'ds_read_b128 {v(MEM+4*(k-6),4)}, {v(QF + 3 + k//6 - 1)} offset:{OL+1024*(k%6)}')
            for k in range(6, 6 + PF):
                ord_(k)
            sig()
            for k in range(OPRE, 6):
                op(k)
            for k in range(6, 24):
                if k + PF < 24:
                    ord_(k + PF)
                e(f's_waitcnt lgkmcnt({min(PF, 23-k)})')
                op(k)
                if k == 16:
                    e(f'v_add_u32 v28, {cCw}, {v(vTW)}')
                if 17 <= k < 21:
                    e(f'v_mov_b32 {v(KA+k-17)}, -1')
            C = G
            e(f'v_cvt_pk_bf16_f32 {v(C)}, {v(QA)}, {v(QA+1)}')
            e(f'v_cvt_pk_bf16_f32 {v(C+1)}, {v(QA+2)}, {v(QA+3)}')
            e(f'v_min_u32 {v(C)}, -2, {v(C)}')
            e(f'v_min_u32 {v(C+1)}, -2, {v(C+1)}')
            e(f'buffer_store_dwordx2 {v(C,2)}, v28, {WS}, {sCw} offen sc1')
            self.stamp(5)

            def resets(full):
                e(f'buffer_store_dwordx2 {v(KA,2)}, {v(vTW)}, {WS}, {rO} offen{X_}')
                if full and not XB_:
                    e(f'buffer_store_dwordx2 {v(KA,2)}, {v(vTW)}, {WS}, {rAG} offen{X_}')
                e(f'buffer_store_dwordx4 {v(KA,4)}, {v(vL16)}, {WS}, {rS} offen{X_}')
                if not full:
                    e(f's_add_u32 s92, {sS}, 1')
                    e(f's_and_b32 s92, s92, {self.opt["crring"]-1}')
                    e(f's_mul_i32 s92, s92, {CR_S}')
                    e(f's_sub_u32 s93, {sTILE}, 40')
                    e('s_mul_i32 s93, s93, 20480')
                    e('s_add_u32 s92, s92, s93')
                    e(f's_lshl_b32 s93, {sCLS}, 9')
                    e('s_add_u32 s92, s92, s93')
                    e(f's_add_u32 s92, s92, {CH_CR}')
                    for i in range(5):
                        e(f'buffer_store_dwordx2 {v(KA,2)}, {v(vTW)}, {WS}, s92 offen sc1')
                        if i < 4:
                            e('s_add_u32 s92, s92, 4096')
                    if XB_:
                        lh = A.lab('h5')
                        e(f's_cmp_ge_u32 {sTILE}, 45')
                        e(f's_cbranch_scc1 {lh}')
                        e(f's_add_u32 s92, {sS}, 2')
                        e(f's_mul_i32 s92, s92, {AG_S}')
                        e(f's_mul_i32 s93, {sCLS}, 5')
                        e(f's_add_u32 s93, s93, {sTILE}')
                        e('s_sub_u32 s93, s93, 40')
                        e('s_lshl_b32 s93, s93, 9')
                        e('s_add_u32 s92, s92, s93')
                        e(f's_add_u32 s92, s92, {AGG}')
                        e(f'buffer_store_dwordx2 {v(KA,2)}, {v(vTW)}, {WS}, s92 offen sc1')
                        e(f'{lh}:')
            if self.diag:
                e('s_mov_b32 s100, 0')
            lcp, lco = A.lab('cp'), A.lab('co')
            C2 = MEM

            def cld(b=C):
                for i in range(7):
                    e(f'buffer_load_dwordx2 {v(b+2+2*i,2)}, v28, {WS}, {sCR[i]} offen sc1')

            def csum(extra, b=C):
                for j in range(4):
                    if extra is not None:
                        e(f's_waitcnt vmcnt({6-2*j+extra})')
                    e(f'v_mfma_f32_16x16x32_bf16 {v(QA,4)}, {v(SEL,4)}, {v(b+4*j,4)}, {"0" if j==0 else v(QA,4)}')

            def shadow():
                resets(True)
                for x in nextkv_steps():
                    x()
                scalars()
            if self.opt['dense']:
                if self.opt['cdelay']:
                    e(f's_sleep {self.opt["cdelay"]}')
                cld()
                shadow()
                e(f'v_mov_b32 {v(C2)}, {v(C)}')
                e(f'v_mov_b32 {v(C2+1)}, {v(C+1)}')
                if self.opt['cgap']:
                    e(f's_sleep {self.opt["cgap"]}')
                cld(C2)
                csum(10)
            else:
                shadow()
                if self.opt['cdelay']:
                    e(f's_sleep {self.opt["cdelay"]}')
                cld()
                csum(0)
            self.stamp(14)
            e(f'{lcp}:')
            e(f'v_cmp_u_f32 vcc, {v(QA)}, {v(QA+1)}')
            e(f'v_cvt_pk_bf16_f32 {v(VA_)}, {v(QA)}, {v(QA+1)}')
            e(f'v_cvt_pk_bf16_f32 {v(VA_+1)}, {v(QA+2)}, {v(QA+3)}')
            e(f's_cbranch_vccnz {lcp}x')
            e(f'{lco}:')

            def ctail():
                e(f'{lcp}x:')
                maxtree2(v(VA_ + 2), v(VA_ + 3), C + 2, 14)
                e(f'v_cmp_eq_u32 vcc, -1, {v(VA_+2)}')
                e(f's_cbranch_vccz {lco}')
                if not self.opt['dense']:
                    cld()
                    csum(0)
                    self.spin(lcp)
                    return
                e(f'{lcp}y:')
                for re_, ck_ in ((C, C2), (C2, C)):
                    cld(re_)
                    e('s_waitcnt vmcnt(7)')
                    maxtree2(v(VA_ + 2), v(VA_ + 3), ck_ + 2, 14)
                    e(f'v_cmp_eq_u32 vcc, -1, {v(VA_+2)}')
                    e(f's_cbranch_vccz {lcp}z{ck_}')
                self.spin(f'{lcp}y')
                for b in (C, C2):
                    e(f'{lcp}z{b}:')
                    csum(None, b)
                    e(f'v_cvt_pk_bf16_f32 {v(VA_)}, {v(QA)}, {v(QA+1)}')
                    e(f'v_cvt_pk_bf16_f32 {v(VA_+1)}, {v(QA+2)}, {v(QA+3)}')
                    e(f's_branch {lco}')
            tails.append(ctail)
            self.note(10, sSPIN)
            e(f'v_min_u32 {v(VA_)}, -2, {v(VA_)}')
            e(f'v_min_u32 {v(VA_+1)}, -2, {v(VA_+1)}')
            e(f'buffer_store_dwordx2 {v(VA_,2)}, {v(vTW)}, {WS}, {cAGw} offen{" sc1" if XB_ else X_}')
            self.stamp(6)
            e(f'L_ch_next_{md}:')
            if self.opt['dbgt']:
                for st, wd in ((1, 5), (L + 1, 9), (64, 10)):
                    l = A.lab('dx')
                    e(f's_cmp_lg_u32 {sS}, {st}')
                    e(f's_cbranch_scc1 {l}')
                    self.dbgtime(wd)
                    e(f'{l}:')
            e(f's_cmp_lt_u32 {sS}, {self.nsteps}')
            e(f's_cbranch_scc1 L_ch_step_{md}')
            self.dbgtime(6)
            if self.opt['wb']:
                self.writeback(0)
            e('s_endpgm')
            e(f'L_ch_noop_{md}:')
            for i in range(4):
                e(f'v_mov_b32 {v(KA+i)}, -1')
            for x in nextkv_steps():
                x()
            e('s_waitcnt vmcnt(0)')
            sig()
            resets(False)
            scalars()
            if self.opt['warm']:
                e(f's_sub_u32 s92, {sTILE}, 40')
                e('s_lshr_b32 s93, s92, 1')
                e(f's_lshl_b32 s94, {sCLS}, 2')
                e('s_add_u32 s93, s93, s94')
                e(f's_mul_i32 s93, s93, {QKV_HEAD}')
                self.clsoff('s93', 's94', QKV_HEAD, self.QL2)
                e('s_and_b32 s92, s92, 1')
                e('s_add_u32 s92, s92, 1')
                e('s_mul_i32 s92, s92, 12288')
                e('s_add_u32 s92, s92, s93')
                e(f's_add_u32 s92, s92, {sQ1}')
                for i in range(12):
                    e(f'buffer_load_dwordx4 {v(MEM+4*i,4)}, {v(vL16)}, {WS}, s92 offen offset:{1024*(i%4)} sc1')
                    if i % 4 == 3:
                        e('s_add_u32 s92, s92, 4096')
            e(f's_sleep {self.opt["hdelay"]}')
            e('s_waitcnt vmcnt(0)')
            e(f's_branch L_ch_next_{md}')
            k = 0
            while k < len(tails):
                tails[k]()
                k += 1
        loop('f')
        loop('s')
```

```python
from common import *


class QkvMixin:
    def role_qkv(self):
        e = self.A.e
        A = self.A
        e('L_qkv:')
        e(f's_sub_u32 s64, {sSLOT}, 12')
        e('s_lshl_b32 s64, s64, 2')
        e(f's_add_u32 s64, s64, {sW}')
        e(f's_lshl_b32 s65, {sCLS}, 8')
        e('s_lshl_b32 s66, s64, 2')
        e('s_add_u32 s65, s65, s66')
        e(f's_add_u32 s65, s65, {P_QKV}')
        e('s_add_u32 s66, s65, 2048')
        e('v_mov_b32 v4, 0')
        e('s_mov_b64 exec, 1')
        e(f'buffer_store_dword v4, off, {WS}, s65 sc1')
        e(f'buffer_store_dword v4, off, {WS}, s66 sc1')
        e('s_mov_b64 exec, -1')
        self.arrive()
        e('s_mul_i32 s67, s64, 57')
        e('s_lshr_b32 s67, s67, 9')
        e('s_mul_i32 s68, s67, 9')
        e('s_sub_u32 s68, s64, s68')
        e('s_mul_i32 s69, s68, 11')
        e('s_lshr_b32 s69, s69, 5')
        e('s_mul_i32 s70, s69, 3')
        e('s_sub_u32 s70, s68, s70')
        e(f's_lshl_b32 s71, {sCLS}, 2')
        e('s_add_u32 s71, s71, s67')
        e('s_cmp_eq_u32 s69, 1')
        e(f's_cselect_b32 s44, s{PTR["wk"]}, s{PTR["wq"]}')
        e(f's_cselect_b32 s45, s{PTR["wk"]+1}, s{PTR["wq"]+1}')
        e('s_cmp_eq_u32 s69, 2')
        e(f's_cselect_b32 s44, s{PTR["wv"]}, s44')
        e(f's_cselect_b32 s45, s{PTR["wv"]+1}, s45')
        e('s_and_b32 s45, s45, 0xffff')
        e(f's_mov_b32 s46, {NBYTES["wq"]}')
        e('s_mov_b32 s47, 0x20000')
        e('s_mul_i32 s72, s71, 384')
        e('s_lshl_b32 s73, s70, 7')
        e('s_add_u32 s72, s72, s73')
        e('v_lshrrev_b32 v1, 3, v0')
        e('v_mul_u32_u24 v1, 12288, v1')
        e('v_and_b32 v2, 7, v0')
        e('v_lshl_add_u32 v5, v2, 4, v1')
        e('v_add_u32 v5, s72, v5')
        e(f's_mul_i32 s73, {sW}, 40960')
        self.tr_lane('v6', 8, 128, 's73')

        def W(tl, k, u):
            r = 160 * tl + 4 * k + 2 * u
            return a(r, 2) if r < 256 else v(192 + r - 256, 2)

        def Wf(tl, k):
            r = 160 * tl + 4 * k
            return a(r, 4) if r < 256 else v(192 + r - 256, 4)

        def chunk_dma(q):
            e(f's_add_u32 m0, s73, {(q & 1) * 20480}')
            e(f's_mov_b32 s74, {q * 160 * 12288}')
            self.dma(20, 'v5', SRA, 's74', 8 * 12288)

        chunk_dma(0)
        chunk_dma(1)
        for q in range(4):
            e(f's_waitcnt vmcnt({20 if q < 3 else 0})')
            items = []
            for k in range(10):
                for tl in range(2):
                    for u in range(2):
                        items.append((W(tl, 10 * q + k, u), (q & 1) * 20480 + k * 2048 + u * 512 + tl * 64))
            self.trl(items, 'v6', 'v7')
            e('s_waitcnt lgkmcnt(0)')
            if q < 2:
                chunk_dma(q + 2)
        VD, VR = 8, 10
        self.xn_consts(VD, VR)
        e('v_lshlrev_b32 v9, 4, v0')
        e('v_and_b32 v5, 7, v0')
        e('v_lshlrev_b32 v5, 2, v5')
        e(f's_mul_i32 s72, s71, {QKV_HEAD}')
        self.clsoff('s72', 's73', QKV_HEAD, self.QL2)
        e('s_mul_i32 s73, s69, 12288')
        e('s_add_u32 s72, s72, s73')
        e('s_lshl_b32 s73, s70, 12')
        e('s_add_u32 s72, s72, s73')
        e(f's_add_u32 s72, s72, {QKV}')
        self.wait_init('v6', 'v7')
        e('s_barrier')
        self.stamp(1, real=True)
        self.flush()
        RQ = self.opt['rq']
        intra = self.opt['intra']
        assert self.L - RQ <= self.AH <= self.L + RQ or self.L >= 64
        BP = self.on('op') and not self.opt['unsafe']
        e('v_min_u32 v7, 4, v0')
        e('v_lshlrev_b32 v7, 2, v7')
        e(f's_lshl_b32 s82, {sCLS}, 7')
        e(f's_add_u32 s82, s82, {P_OPI}')
        e(f's_mul_i32 s83, {sW}, 10240')
        e(f's_mov_b32 s84, {P_R2}')
        ACC, PK, BR = (16, 48), 80, 96
        sP1, sP2, sO, sX1, sX2, sD, sNR, sNB = 's75', 's76', 's77', 's79', 's81', 's85', 's80', 's86'
        e('v_lshlrev_b32 v6, 2, v0')
        l0, l1 = A.lab('ln'), A.lab('lnok')
        e(f'{l0}:')
        for i in range(8):
            e(f'buffer_load_dword {v(16+i)}, v6, {WS}, 0 offen offset:{P_LN1 + 256*i} sc1')
        e('s_waitcnt vmcnt(0)')
        e('v_min3_u32 v16, v16, v17, v18')
        e('v_min3_u32 v19, v19, v20, v21')
        e('v_min3_u32 v16, v16, v22, v23')
        e('v_min_u32 v16, v16, v19')
        e('v_cmp_eq_u32 vcc, 0, v16')
        e(f's_cbranch_vccz {l1}')
        self.spin(l0, 2)
        e(f'{l1}:')

        def dma_one(i, ssrc, buf):
            if i == 0:
                e(f's_add_u32 m0, s83, {buf}')
            else:
                e('s_add_u32 m0, m0, 896')
            e(f'buffer_load_dwordx4 {v(VD)}, {WS}, {ssrc} offen offset:{i*128} sc1{" nt" if self.opt["xnt"] else ""} lds')

        sE, sOp, sNBp = 's87', 's88', 's89'

        def steps(buf, acc, isV, k0, k1, hooks):
            PF = 4
            if k0 == 0:
                for k in range(PF):
                    e(f'ds_read_b128 {v(BR+4*(k%8),4)}, {v(VR+(k&3))} offset:{buf+(k>>2)*1024}')
            for k in range(k0, k1):
                if k + PF < 40:
                    kk = k + PF
                    e(f'ds_read_b128 {v(BR+4*(kk%8),4)}, {v(VR+(kk&3))} offset:{buf+(kk>>2)*1024}')
                e(f's_waitcnt lgkmcnt({min(PF, 39-k)})')
                b = v(BR + 4 * (k % 8), 4)
                for tl in range(2):
                    d = v(acc + 16 * tl, 16)
                    c = '0' if k == 0 else d
                    if isV:
                        e(f'v_mfma_f32_32x32x16_bf16 {d}, {b}, {Wf(tl,k)}, {c}')
                    else:
                        e(f'v_mfma_f32_32x32x16_bf16 {d}, {Wf(tl,k)}, {b}, {c}')
                for h in hooks.get(k, []):
                    h()

        def epi_parts(acc, ly):
            def cv(tl, h):
                for j in range(4 * h, 4 * h + 4):
                    e(f'v_cvt_pk_bf16_f32 {v(PK+8*tl+j)}, {v(acc+16*tl+2*j)}, {v(acc+16*tl+2*j+1)}')

            def st(tl):
                if BP and tl == 0:
                    lok = A.lab('bp')
                    e(f'v_cmp_gt_u32 vcc, {sNBp}, v3')
                    e(f's_cbranch_vccz {lok}')
                    self.poll('v3', 'v7', 's82', sNBp, imm=32 * ly)
                    e(f'{lok}:')
                self.st_intra([f'buffer_store_dwordx4 {v(PK+8*tl+4*h,4)}, v9, {WS}, {sOp} offen offset:{tl*2048+h*1024}'
                               for h in range(2)])
            return [lambda: cv(0, 0), lambda: cv(0, 1), lambda: st(0), lambda: cv(1, 0), lambda: cv(1, 1), lambda: st(1)]

        def dest(ly, sidx):
            e(f's_and_b32 {sOp}, {sidx}, {RQ-1}')
            if ly:
                e(f's_add_u32 {sOp}, {sOp}, {RQ}')
            e(f's_mul_i32 {sOp}, {sOp}, {QKV_SEG}')
            e(f's_add_u32 {sOp}, {sOp}, s72')
            e(f's_sub_u32 {sNBp}, {sidx}, {RQ-1}')
            e(f's_cselect_b32 {sNBp}, 0, {sNBp}')

        def bpld(ly):
            if BP:
                e(f'buffer_load_dword v3, v7, {WS}, s82 offen offset:{32*ly} sc1')

        def guarded(f):
            def h():
                l = A.lab('ne')
                e(f's_cmp_eq_u32 {sE}, 0')
                e(f's_cbranch_scc1 {l}')
                f()
                e(f'{l}:')
            return h

        def sig_after(n, word, val):
            def h():
                e(f's_waitcnt vmcnt({n})')
                self.signal('v4', word, val, intra=intra)
            return h

        def flags_ld():
            e(f'buffer_load_dword v5, v6, {WS}, s84 offen sc1')
        KS = self.opt['qks']

        def body(isV):
            tag = 'v' if isV else 'q'
            e('v_and_b32 v6, 7, v0')
            e('v_lshlrev_b32 v6, 7, v6')
            e(f's_mov_b32 {sP1}, 0')
            e(f's_mov_b32 {sP2}, 0')
            e(f's_mov_b32 {sX1}, {XN1}')
            odd = self.AH & 1
            for i in range(10):
                dma_one(i, sX1, 40960 * odd)
            e('s_waitcnt vmcnt(0)')
            e('s_barrier')
            lp = f'L_qkv_a_{tag}'
            if odd:
                e(f's_branch {lp}1')
            e(f'{lp}:')
            for half in range(2):
                if half:
                    e(f'{lp}1:')
                e(f's_add_u32 {sX1}, {sX1}, {SEGB}')
                dest(0, sP1)
                hk = {i: [lambda i=i: dma_one(i, sX1, 40960 * (1 - half))] for i in range(10)}
                hk[12] = [lambda: bpld(0)]
                steps(40960 * half, ACC[half], isV, 0, 40, hk)
                e('s_waitcnt vmcnt(0)')
                for f in epi_parts(ACC[half], 0):
                    f()
                e(f's_add_u32 {sP1}, {sP1}, 1')
                sig_after(0, 's65', sP1)()
                e('s_barrier')
            e(f's_cmp_lt_u32 {sP1}, {self.AH}')
            e(f's_cbranch_scc1 {lp}')
            lp2, blk, got2, tail2 = f'L_qkv_b_{tag}', A.lab('blk'), A.lab('got2'), A.lab('tail')
            e(f's_mov_b32 {sE}, 0')
            e(f'{lp2}:')
            self.flush()
            e(f's_add_u32 {sNR}, {sP2}, 1')
            e(f's_mul_i32 {sX2}, {sP2}, {SEGB}')
            e(f's_add_u32 {sX2}, {sX2}, {XN2}')
            ep = epi_parts(ACC[1], 1)
            hk = {k: [guarded(ep[k])] for k in range(6)}
            hk[6] = [flags_ld]
            steps(0, ACC[0], isV, 0, KS, hk)
            sig_after(0, 's66', sP2)()
            dest(0, sP1)
            bpld(0)
            lA, lB2, lC, lD = A.lab('qa'), A.lab('qb'), A.lab('qc'), A.lab('qd')
            e(f'v_cmp_gt_u32 vcc, {sNR}, v5')
            e(f's_cbranch_vccz {lA}')
            K2 = KS + 12
            steps(0, ACC[0], isV, KS, K2, {KS + 3: [flags_ld]})
            e('s_waitcnt vmcnt(0)')
            e(f'v_cmp_gt_u32 vcc, {sNR}, v5')
            e(f's_cbranch_vccz {lB2}')
            steps(0, ACC[0], isV, K2, 40, {34: [flags_ld]})
            e('s_waitcnt vmcnt(0)')
            e(f's_add_u32 {sP1}, {sP1}, 1')
            e(f's_mov_b32 {sE}, 1')
            e(f'v_cmp_gt_u32 vcc, {sNR}, v5')
            e(f's_cbranch_vccz {lD}')
            for f in epi_parts(ACC[0], 0):
                f()
            flags_ld()
            self.stamp(4, real=True)
            sig_after(0, 's65', sP1)()
            e(f's_mov_b32 {sE}, 0')
            e(f'v_cmp_gt_u32 vcc, {sNR}, v5')
            e(f's_cbranch_vccz {lD}')
            e(f'{blk}:')
            if self.on('r'):
                flags_ld()
                e('s_waitcnt vmcnt(0)')
                e(f'v_cmp_gt_u32 vcc, {sNR}, v5')
                lb = A.lab('bok')
                e(f's_cbranch_vccz {lb}')
                self.spin(blk, self.opt['psleep'])
                e(f'{lb}:')
            e(f'{lD}:')
            self.stamp(0, real=True)
            for i in range(10):
                dma_one(i, sX2, 40960)
            e(f's_branch {got2}')
            e(f'{lB2}:')
            steps(0, ACC[0], isV, K2, 40, {K2 + i: [lambda i=i: dma_one(i, sX2, 40960)] for i in range(10)})
            e(f's_branch {lC}')
            e(f'{lA}:')
            steps(0, ACC[0], isV, KS, 40, {KS + 2 * i: [lambda i=i: dma_one(i, sX2, 40960)] for i in range(10)})
            e(f'{lC}:')
            e(f's_add_u32 {sP1}, {sP1}, 1')
            self.stamp(4, real=True)
            e(f's_mov_b32 {sE}, 1')
            e(f'{got2}:')
            e('s_waitcnt vmcnt(0)')
            e('s_barrier')
            self.stamp(1, real=True)
            ep = epi_parts(ACC[0], 0)
            hk = {k: [guarded(ep[k])] for k in range(6)}
            steps(40960, ACC[1], isV, 0, KS, hk)
            sig_after(0, 's65', sP1)()
            dest(1, sP2)
            bpld(1)
            e(f's_add_u32 {sP2}, {sP2}, 1')
            e(f's_cmp_ge_u32 {sP1}, 64')
            e(f's_cbranch_scc1 {tail2}')
            e(f's_add_u32 {sX1}, {sX1}, {SEGB}')
            steps(40960, ACC[1], isV, KS, 40, {KS + 2 * i: [lambda i=i: dma_one(i, sX1, 0)] for i in range(10)})
            self.stamp(2, real=True)
            e(f's_mov_b32 {sE}, 1')
            e('s_waitcnt vmcnt(0)')
            e('s_barrier')
            e(f's_branch {lp2}')
            e(f'{tail2}:')
            steps(40960, ACC[1], isV, KS, 40, {})
            e('s_waitcnt vmcnt(0)')
            for f in epi_parts(ACC[1], 1):
                f()
            self.stamp(2, real=True)
            sig_after(0, 's66', sP2)()
            self.stamp(3, real=True)
            e(f's_cmp_ge_u32 {sP2}, 64')
            e('s_cbranch_scc1 L_qkv_fin')
            e('s_barrier')
            self.flush()
            e(f's_mov_b32 {sE}, 0')
            e(f's_add_u32 {sNR}, {sP2}, 1')
            e(f's_mul_i32 {sX2}, {sP2}, {SEGB}')
            e(f's_add_u32 {sX2}, {sX2}, {XN2}')
            e(f's_branch {blk}')

        e('s_branch L_qkv_go')
        e('L_qkv_fin:')
        if self.opt['wb']:
            self.writeback(12)
        e('s_endpgm')
        e('L_qkv_go:')
        e('s_cmp_eq_u32 s69, 2')
        e('s_cbranch_scc1 L_qkv_v')
        body(False)
        e('L_qkv_v:')
        body(True)
```

```python
import sys, os
sys.path.insert(0, os.path.dirname(os.path.abspath(__file__)))
from asmlib import Asm

from common import *
from chain import ChainMixin
from qkv import QkvMixin
from workers import WorkersMixin


class Gen(ChainMixin, QkvMixin, WorkersMixin):
    def __init__(self, L=6, A=10, roles='all', diag=False, nsteps=None, force_slow=False, opt=None):
        self.A = Asm()
        self.L = L
        self.AH = A
        self.roles = roles
        self.diag = diag
        self.nsteps = nsteps if nsteps is not None else 64 + L
        self.force_slow = force_slow
        self.opt = dict(cdelay=6, agdelay=2, sdelay=0, odelay=0, hdelay=20, rq=4, intra=1, at2delay=6, exact=0, opsig=20, psleep=1, crring=128, ring=64, ratom=1, earlysig=1, svm=11, sgap=2, lite=0, wb=0, dense=1, cgap=0, qks=13, unsafe=0, crnt=0, xnt=0, rnt=1, anchor=0, adn=12, dbgt=0, wnt=0, hold=1, npre=3, opre=4, vat=8, sv1=4, warm=0, xb=0, xwait=14, lean=0, adapt=0, probe=0, fake16=0, keep=0)
        self.opt.update(opt or {})
        self.QL2 = self.opt['rq'] * QKV_SEG
        self.KL2 = self.opt['rq'] * KM_SEG
        self.opt_keep = [i for i in range(16) if self.opt['keep'] >> i & 1]

    def on(self, r):
        return self.roles == 'all' or r in self.roles.split(',')

    def srd(self, dst, name):
        e = self.A.e
        b = int(dst[2:dst.index(':')])
        p = PTR[name]
        e(f's_mov_b32 s{b}, s{p}')
        e(f's_and_b32 s{b+1}, s{p+1}, 0xffff')
        e(f's_mov_b32 s{b+2}, {NBYTES[name]}')
        e(f's_mov_b32 s{b+3}, 0x20000')

    def clsoff(self, dst, tmp, per_head, l2):
        self.A.e(f's_mul_i32 {tmp}, {sCLS}, {2 * l2 - 4 * per_head}')
        self.A.e(f's_add_u32 {dst}, {dst}, {tmp}')

    def spin(self, back, sleep=0):
        e = self.A.e
        if sleep:
            e(f's_sleep {sleep}')
        e(f's_sub_u32 {sSPIN}, {sSPIN}, 1')
        e(f's_cbranch_scc0 {back}')
        e('s_branch L_fail')

    def poll(self, vt, voff, soff, need, sleep=None, imm=0):
        e = self.A.e
        l0, l1 = self.A.lab('poll'), self.A.lab('pok')
        e(f'{l0}:')
        e(f'buffer_load_dword {vt}, {voff}, {WS}, {soff} offen offset:{imm} sc1')
        e('s_waitcnt vmcnt(0)')
        e(f'v_cmp_gt_u32 vcc, {need}, {vt}')
        e(f's_cbranch_vccz {l1}')
        self.spin(l0, self.opt['psleep'] if sleep is None else sleep)
        e(f'{l1}:')

    def st_mode(self, text):
        e = self.A.e
        lines = text if isinstance(text, list) else [text]
        l0, l1 = self.A.lab('sl'), self.A.lab('sd')
        e(f's_cmp_eq_u32 {sFAST}, 0')
        e(f's_cbranch_scc1 {l0}')
        for t in lines:
            e(t)
        e(f's_branch {l1}')
        e(f'{l0}:')
        for t in lines:
            e(t + (' sc1' if t.startswith('buffer_store') else ''))
        e(f'{l1}:')

    def st_intra(self, lines):
        if self.opt['intra']:
            self.st_mode(lines)
        else:
            for t in lines:
                self.A.e(t + ' sc1')

    def signal(self, vt, soff, val, intra=False):
        e = self.A.e
        e(f'v_mov_b32 {vt}, {val}')
        e('s_mov_b64 exec, 1')
        if intra:
            self.st_mode(f'buffer_store_dword {vt}, off, {WS}, {soff}')
        else:
            e(f'buffer_store_dword {vt}, off, {WS}, {soff} sc1')
        e('s_mov_b64 exec, -1')

    def signal_cu(self, vt, vz, ldsaddr, soff, val):
        e = self.A.e
        l = self.A.lab('nl')
        e(f'v_mov_b32 {vt}, 1')
        e(f'v_mov_b32 {vz}, {ldsaddr}')
        e('s_mov_b64 exec, 1')
        e(f'ds_add_rtn_u32 {vt}, {vz}, {vt}')
        e('s_waitcnt lgkmcnt(0)')
        e(f'v_readfirstlane_b32 s60, {vt}')
        e(f'v_mov_b32 {vt}, {val}')
        e('s_and_b32 s60, s60, 3')
        e('s_cmp_lg_u32 s60, 3')
        e(f's_cbranch_scc1 {l}')
        e(f'buffer_store_dword {vt}, off, {WS}, {soff} sc1')
        e(f'{l}:')
        e('s_mov_b64 exec, -1')

    def writeback(self, slot):
        e = self.A.e
        l = self.A.lab('wb')
        e(f's_cmp_lg_u32 {sSLOT}, {slot}')
        e(f's_cbranch_scc1 {l}')
        e(f's_cmp_lg_u32 {sW}, 0')
        e(f's_cbranch_scc1 {l}')
        e('buffer_wbl2 sc1')
        e('s_waitcnt vmcnt(0)')
        e(f'{l}:')

    def lds_zero(self, addrs):
        e = self.A.e
        e('v_mov_b32 v1, 0')
        for ad in addrs:
            e(f'v_mov_b32 v2, {ad}')
            e('ds_write_b32 v2, v1')
        e('s_waitcnt lgkmcnt(0)')
        e('s_barrier')

    def arrive(self):
        e = self.A.e
        l = self.A.lab('arr')
        e('s_waitcnt vmcnt(0)')
        e('s_barrier')
        e(f's_cmp_lg_u32 {sW}, 0')
        e(f's_cbranch_scc1 {l}')
        e('s_and_b32 s60, s2, 7')
        e('s_lshl_b32 s60, s60, 5')
        e('s_add_u32 s60, s60, 16')
        e('v_mov_b32 v1, 1')
        e('s_mov_b64 exec, 1')
        e(f'buffer_atomic_add v1, off, {DBG}, s60')
        e('s_mov_b64 exec, -1')
        e(f'{l}:')

    def wait_init(self, vt, vt2, st='s60', keep=0):
        e = self.A.e
        b = int(st[1:])
        l0, l1 = self.A.lab('wi'), self.A.lab('wid')
        e(f'v_lshlrev_b32 {vt2}, 2, v0')
        e(f'{l0}:')
        e(f'buffer_load_dword {vt}, {vt2}, {DBG}, 0 offen sc1')
        e('s_waitcnt vmcnt(0)')
        e(f'v_cmp_ne_u32 vcc, 32, {vt}')
        e(f's_mov_b32 s{b}, 0x10101010')
        e(f's_mov_b32 s{b+1}, 0x10101010')
        e(f's_and_b64 s[{b+2}:{b+3}], vcc, s[{b}:{b+1}]')
        e(f's_cbranch_scc0 {l1}')
        self.spin(l0, 2)
        e(f'{l1}:')
        e(f's_mov_b32 s{b}, 0x01010101')
        e(f's_mov_b32 s{b+1}, 0x01010101')
        e(f's_and_b64 s[{b+2}:{b+3}], vcc, s[{b}:{b+1}]')
        e(f's_cselect_b32 {sFAST}, 0, 1')
        if self.force_slow:
            e(f's_mov_b32 {sFAST}, 0')

    def trl(self, items, vaddr, vtmp):
        e = self.A.e
        base = None
        for dst, off in items:
            b = (off // 65536) * 65536 if off >= 65536 else 0
            if off - b > 65535:
                raise ValueError
            if b == 0:
                e(f'ds_read_b64_tr_b16 {dst}, {vaddr} offset:{off}')
            else:
                if base != b:
                    e(f'v_add_u32 {vtmp}, {b}, {vaddr}')
                    base = b
                e(f'ds_read_b64_tr_b16 {dst}, {vtmp} offset:{off - b}')

    def dma(self, n, voff, srd, ssoff, sstep, m0step=1024, sc1=False):
        e = self.A.e
        for i in range(n):
            e(f'buffer_load_dwordx4 {voff}, {srd}, {ssoff} offen{" sc1" if sc1 else ""}{" nt" if self.opt["wnt"] and not sc1 else ""} lds')
            if i + 1 < n:
                e(f's_add_u32 m0, m0, {m0step}')
                e(f's_add_u32 {ssoff}, {ssoff}, {sstep}')

    def stamp(self, idx, real=False):
        if not self.diag or (self.opt['lite'] and not real and idx not in self.opt_keep):
            return
        e = self.A.e
        e('s_memrealtime s[98:99]' if real else 's_memtime s[98:99]')
        e('s_waitcnt lgkmcnt(0)')
        e(f'v_writelane_b32 v14, s98, {idx}')

    def xstamp(self, idx):
        if self.diag and self.opt['probe'] == 4:
            e = self.A.e
            e('s_memtime s[98:99]')
            e('s_waitcnt lgkmcnt(0)')
            e(f'v_writelane_b32 v14, s98, {idx}')

    def dbgtime(self, word):
        if not self.opt['dbgt']:
            return
        e = self.A.e
        l = self.A.lab('dt')
        e(f's_cmp_lg_u32 {sCLS}, 0')
        e(f's_cbranch_scc1 {l}')
        e('s_memrealtime s[98:99]')
        e('s_waitcnt lgkmcnt(0)')
        e('s_and_b32 s98, s98, 0xffffff')
        e('v_mov_b32 v15, s98')
        e('s_mov_b64 exec, 1')
        e(f'buffer_atomic_umax v15, off, {DBG}, 0 offset:{4*word}')
        e('s_mov_b64 exec, -1')
        e(f'{l}:')

    def note(self, idx, sreg):
        if self.diag and self.opt['probe'] != 4:
            self.A.e(f'v_writelane_b32 v14, {sreg}, {idx}')

    def flush(self):
        if not self.diag:
            return
        e = self.A.e
        e('v_lshlrev_b32 v15, 2, v0')
        e('s_mov_b64 exec, 0xffff')
        e(f'buffer_store_dword v14, v15, {WS}, s97 offen')
        e('s_mov_b64 exec, -1')
        e('s_add_u32 s97, s97, 64')

    def rowstat(self, val, tmp):
        e = self.A.e
        for r in (8, 4, 2, 1):
            e(f'v_add_f32_dpp {val}, {val}, {val} row_ror:{r} row_mask:0xf bank_mask:0xf')
        e(f'v_mov_b32 {tmp}, {val}')
        e(f'v_permlane16_swap_b32 {tmp}, {val}')
        e(f'v_add_f32 {val}, {val}, {tmp}')

    def bfround(self, r, ):
        e = self.A.e
        e(f'v_cvt_pk_bf16_f32 {r}, {r}, {r}')
        e(f'v_and_b32 {r}, 0xffff0000, {r}')

    def ln_pair(self, X, OUT, T):
        e = self.A.e
        t0, t2, t4 = T, T + 2, T + 4
        e(f'v_pk_add_f32 {v(t0,2)}, {v(X,2)}, {v(X+2,2)}')
        e(f'v_pk_add_f32 {v(t2,2)}, {v(X+4,2)}, {v(X+6,2)}')
        for k in range(8, 20, 4):
            e(f'v_pk_add_f32 {v(t0,2)}, {v(t0,2)}, {v(X+k,2)}')
            e(f'v_pk_add_f32 {v(t2,2)}, {v(t2,2)}, {v(X+k+2,2)}')
        e(f'v_pk_add_f32 {v(t0,2)}, {v(t0,2)}, {v(t2,2)}')
        e(f'v_add_f32 {v(t0)}, {v(t0)}, {v(t0+1)}')
        self.rowstat(v(t0), v(t0 + 1))
        e(f'v_mul_f32 {v(t0)}, {f2u(-1.0/640):#x}, {v(t0)}')
        e(f'v_mov_b32 {v(t0+1)}, {v(t0)}')
        e(f'v_pk_add_f32 {v(t4,2)}, {v(X,2)}, {v(t0,2)}')
        e(f'v_pk_mul_f32 {v(t2,2)}, {v(t4,2)}, {v(t4,2)}')
        for k in range(2, 20, 2):
            e(f'v_pk_add_f32 {v(t4,2)}, {v(X+k,2)}, {v(t0,2)}')
            e(f'v_pk_fma_f32 {v(t2,2)}, {v(t4,2)}, {v(t4,2)}, {v(t2,2)}')
        e(f'v_add_f32 {v(t2)}, {v(t2)}, {v(t2+1)}')
        self.rowstat(v(t2), v(t2 + 1))
        e(f'v_mul_f32 {v(t2)}, {f2u(1.0/640):#x}, {v(t2)}')
        self.bfround(v(t2))
        e(f'v_add_f32 {v(t2)}, {f2u(1e-5):#x}, {v(t2)}')
        self.bfround(v(t2))
        e(f'v_sqrt_f32 {v(t2)}, {v(t2)}')
        self.bfround(v(t2))
        e(f'v_rcp_f32 {v(t2)}, {v(t2)}')
        self.bfround(v(t0))
        e(f'v_mov_b32 {v(t0+1)}, {v(t0)}')
        e(f'v_mov_b32 {v(t2+1)}, {v(t2)}')
        outs = OUT if isinstance(OUT, list) else list(range(OUT, OUT + 10))
        for k in range(0, 20, 2):
            e(f'v_pk_add_f32 {v(X+k,2)}, {v(X+k,2)}, {v(t0,2)}')
        if self.opt['exact']:
            for k in range(0, 20, 2):
                e(f'v_cvt_pk_bf16_f32 {v(X+k+1)}, {v(X+k)}, {v(X+k+1)}')
            for k in range(0, 20, 2):
                e(f'v_lshlrev_b32 {v(X+k)}, 16, {v(X+k+1)}')
                e(f'v_and_b32 {v(X+k+1)}, 0xffff0000, {v(X+k+1)}')
        for k in range(0, 20, 2):
            e(f'v_pk_mul_f32 {v(X+k,2)}, {v(X+k,2)}, {v(t2,2)}')
        for k in range(0, 20, 2):
            e(f'v_cvt_pk_bf16_f32 {v(outs[k//2])}, {v(X+k)}, {v(X+k+1)}')

    def rowlane_addr(self, dst, tmp):
        e = self.A.e
        e(f'v_lshrrev_b32 {dst}, 5, v0')
        e(f'v_mul_u32_u24 {dst}, 1280, {dst}')
        e(f'v_and_b32 {tmp}, 15, v0')
        e(f'v_lshl_add_u32 {dst}, {tmp}, 4, {dst}')
        e(f'v_bfe_u32 {tmp}, v0, 4, 1')
        e(f'v_lshl_add_u32 {dst}, {tmp}, 3, {dst}')

    def unpack(self, dst, src, n):
        e = self.A.e
        for k in range(n):
            e(f'v_lshlrev_b32 {v(dst+2*k)}, 16, {v(src+k)}')
            e(f'v_and_b32 {v(dst+2*k+1)}, 0xffff0000, {v(src+k)}')

    def ln1_phase(self):
        e = self.A.e
        self.srd(SRA, 'x')
        e(f's_sub_u32 s64, {sSLOT}, 21')
        e('s_lshl_b32 s64, s64, 2')
        e(f's_add_u32 s64, s64, {sW}')
        self.rowlane_addr('v2', 'v3')
        e('v_mov_b32 v4, 0')
        e('s_mov_b64 exec, 1')
        e('s_lshl_b32 s65, s64, 5')
        e(f's_lshl_b32 s66, {sCLS}, 2')
        e('s_add_u32 s65, s65, s66')
        e(f'buffer_store_dword v4, off, {WS}, s65 offset:{P_LN1} sc1')
        e('s_cmp_ge_u32 s64, 20')
        l = self.A.lab('z2')
        e(f's_cbranch_scc1 {l}')
        e(f'buffer_store_dword v4, off, {WS}, s65 offset:{P_LN1 + 44*32} sc1')
        e(f'{l}:')
        e('s_mov_b64 exec, -1')

    def ln1_items(self):
        e = self.A.e
        lp, done = self.A.lab('ln1'), self.A.lab('ln1d')
        e(f's_mul_i32 s66, {sCLS}, 5120')
        e(f'{lp}:')
        e(f's_mul_i32 s67, s64, {SEGB}')
        e('s_add_u32 s67, s67, s66')
        for p in range(2):
            for cg in range(5):
                e(f'buffer_load_dwordx2 {v(16+10*p+2*cg,2)}, v2, {SRA}, s67 offen offset:{p*2560+cg*256}')
        e(f's_add_u32 s68, s67, {XN1}')
        for p in range(2):
            e(f's_waitcnt vmcnt({5 if p == 0 else 5})')
            if p == 1:
                e('s_waitcnt vmcnt(5)')
            self.unpack(40, 16 + 10 * p, 10)
            self.ln_pair(40, 60 + 10 * p, 8)
            for cg in range(5):
                e(f'buffer_store_dwordx2 {v(60+10*p+2*cg,2)}, v2, {WS}, s68 offen offset:{p*2560+cg*256} sc1')
        e('s_waitcnt vmcnt(0)')
        e(f's_add_u32 s68, s65, {P_LN1}')
        self.signal('v4', 's68', 1)
        e('s_cmp_ge_u32 s64, 20')
        e(f's_cbranch_scc1 {done}')
        e('s_add_u32 s64, s64, 44')
        e(f's_add_u32 s65, s65, {44*32}')
        e(f's_branch {lp}')
        e(f'{done}:')

    def xn_consts(self, vdma, vrd):
        e = self.A.e
        e('v_lshrrev_b32 v1, 3, v0')
        e('v_and_b32 v2, 7, v0')
        e('v_xor_b32 v2, v2, v1')
        e(f's_and_b32 s60, {sW}, 1')
        e('v_xor_b32 v2, s60, v2')
        e(f's_lshl_b32 s60, {sW}, 3')
        e('v_add_u32 v1, s60, v1')
        e('v_mul_u32_u24 v1, 1280, v1')
        e(f'v_lshl_add_u32 {v(vdma)}, v2, 4, v1')
        e('v_bfe_u32 v1, v0, 3, 2')
        e('v_and_b32 v2, 7, v0')
        e('v_mul_u32_u24 v3, 10240, v1')
        e('v_lshl_add_u32 v3, v2, 7, v3')
        e('v_and_b32 v1, 1, v1')
        e('v_xor_b32 v2, v2, v1')
        e('v_lshrrev_b32 v1, 5, v0')
        e('v_xor_b32 v2, v2, v1')
        for q in range(4):
            e(f'v_xor_b32 v1, {2*q}, v2')
            e(f'v_lshl_add_u32 {v(vrd+q)}, v1, 4, v3')

    def xn_dma(self, vdma, ssoff, ldsbase):
        e = self.A.e
        e(f's_mul_i32 s60, {sW}, 10240')
        e(f's_add_u32 m0, s60, {ldsbase}')
        for cb in range(10):
            if cb:
                e('s_add_u32 m0, m0, 896')
            e(f'buffer_load_dwordx4 {v(vdma)}, {WS}, {ssoff} offen offset:{cb*128} sc1 lds')

    def tile_out(self, acc, pk, vw, vr, vg, soff, imm, relu=False):
        e = self.A.e
        for j in range(8):
            e(f'v_cvt_pk_bf16_f32 {v(pk+j)}, {v(acc+2*j)}, {v(acc+2*j+1)}')
        for j in range(4):
            e(f'ds_write_b64 {v(vw)}, {v(pk+2*j,2)} offset:{16*j}')
        e('s_waitcnt lgkmcnt(0)')
        e(f'ds_read_b128 {v(pk+8,4)}, {v(vr)}')
        e(f'ds_read_b128 {v(pk+12,4)}, {v(vr)} offset:1280')
        e('s_waitcnt lgkmcnt(1)')
        e(f'buffer_store_dwordx4 {v(pk+8,4)}, {v(vg)}, {WS}, {soff} offen offset:{imm} sc1')
        e('s_waitcnt lgkmcnt(0)')
        e(f'buffer_store_dwordx4 {v(pk+12,4)}, {v(vg+1)}, {WS}, {soff} offen offset:{imm} sc1')

    def tile_out_consts(self, vw, vr, vg, ldsbase):
        e = self.A.e
        e(f's_mul_i32 s60, {sW}, 2560')
        e(f's_add_u32 s60, s60, {ldsbase}')
        e('v_and_b32 v1, 31, v0')
        e('v_mul_u32_u24 v1, 80, v1')
        e('v_lshrrev_b32 v2, 5, v0')
        e('v_lshl_add_u32 v1, v2, 3, v1')
        e(f'v_add_u32 {v(vw)}, s60, v1')
        e('v_lshrrev_b32 v1, 2, v0')
        e('v_and_b32 v2, 3, v0')
        e('v_mul_u32_u24 v3, 80, v1')
        e('v_lshl_add_u32 v3, v2, 4, v3')
        e(f'v_add_u32 {v(vr)}, s60, v3')
        e('v_mul_u32_u24 v3, 1280, v1')
        e(f'v_lshl_add_u32 {v(vg)}, v2, 4, v3')
        e(f'v_add_u32 {v(vg+1)}, 20480, {v(vg)}')

    def tr_lane(self, dst, rowmul_hf, pitch, extra_s=None):
        e = self.A.e
        e('v_lshrrev_b32 v1, 5, v0')
        e(f'v_mul_u32_u24 v1, {rowmul_hf}, v1')
        e('v_bfe_u32 v2, v0, 2, 2')
        e('v_add_u32 v1, v1, v2')
        e(f'v_mul_u32_u24 v1, {pitch}, v1')
        e('v_bfe_u32 v2, v0, 4, 1')
        e('v_lshl_add_u32 v1, v2, 5, v1')
        e('v_and_b32 v2, 3, v0')
        e(f'v_lshl_add_u32 {dst}, v2, 3, v1')
        if extra_s:
            e(f'v_add_u32 {dst}, {extra_s}, {dst}')

    def build(self):
        e = self.A.e
        e(f'{NAME}_kernel:')
        e('s_cmp_ge_u32 s2, 256')
        e('s_cbranch_scc1 L_end')
        e('s_load_dwordx16 s[16:31], s[0:1], 0')
        e('s_load_dwordx8 s[32:39], s[0:1], 64')
        e('s_load_dwordx2 s[40:41], s[0:1], 96')
        e(f's_getreg_b32 {sCLS}, hwreg(HW_REG_XCC_ID, 0, 3)')
        e('v_lshrrev_b32 v1, 6, v0')
        e('v_and_b32 v0, 63, v0')
        e(f'v_readfirstlane_b32 {sW}, v1')
        e(f's_mov_b32 {sSPIN}, 0x200000')
        e(f's_mov_b32 {sFAST}, 0')
        e('s_waitcnt lgkmcnt(0)')
        e('s_mov_b32 s8, s40')
        e('s_and_b32 s9, s41, 0xffff')
        e(f's_mov_b32 s10, {WS_BYTES:#x}')
        e('s_mov_b32 s11, 0x20000')
        e('s_mov_b32 s12, s38')
        e('s_and_b32 s13, s39, 0xffff')
        e('s_mov_b32 s14, 256')
        e('s_mov_b32 s15, 0x20000')
        e('v_mov_b32 v3, 0')
        e(f's_cmp_lg_u32 {sW}, 0')
        e('s_cbranch_scc1 L_tk')
        e(f's_lshl_b32 s60, {sCLS}, 5')
        e('v_mov_b32 v2, 1')
        e('s_mov_b64 exec, 1')
        e(f'buffer_atomic_add v2, off, {DBG}, s60 sc0')
        e('s_waitcnt vmcnt(0)')
        e('ds_write_b32 v3, v2')
        e('s_waitcnt lgkmcnt(0)')
        e('s_mov_b64 exec, -1')
        e('L_tk:')
        e('s_barrier')
        e('ds_read_b32 v2, v3')
        e('s_waitcnt lgkmcnt(0)')
        e(f'v_readfirstlane_b32 {sSLOT}, v2')
        e('s_barrier')
        e(f's_cmp_ge_u32 {sSLOT}, 32')
        e('s_cbranch_scc1 L_fail')
        if self.diag:
            e(f's_lshl_b32 s97, {sCLS}, 5')
            e(f's_add_u32 s97, s97, {sSLOT}')
            e('s_lshl_b32 s97, s97, 2')
            e(f's_add_u32 s97, s97, {sW}')
            e('s_lshl_b32 s97, s97, 13')
            e(f's_add_u32 s97, s97, {TS}')
            self.stamp(0, real=True)
        self.dbgtime(2)
        e(f's_cmp_lt_u32 {sSLOT}, 12')
        e('s_cbranch_scc1 L_chain')
        e(f's_cmp_lt_u32 {sSLOT}, 21')
        e('s_cbranch_scc1 L_qkv')
        self.ln1_phase()
        self.rest_roles()
        e('L_fail:')
        e('v_mov_b32 v2, 1')
        e('s_mov_b64 exec, 1')
        e(f'buffer_atomic_add v2, off, {DBG}, 0 offset:4')
        e('s_waitcnt vmcnt(0)')
        e('L_end:')
        e('s_endpgm')
        if self.on('chain'):
            self.role_chain()
        else:
            e('L_chain:')
            self.arrive()
            e('s_endpgm')
        self.role_qkv()
        if self.opt['fake16']:
            import re
            out = []
            cnt = {}
            inattn = False
            for l in self.A.lines:
                if l.startswith('L_at_loop'):
                    inattn = True
                if l.startswith('L_r:'):
                    inattn = False
                m = re.match(r'v_mfma_f32_32x32x16_bf16 v\[(\d+):(\d+)\], (\S+), (\S+), (\S+)', l)
                if m and not inattn:
                    d = int(m.group(1))
                    if m.group(5) == '0':
                        cnt[d] = 0
                    k = cnt[d]
                    cnt[d] += 1
                    for h in range(2):
                        r = d + 4 * h + 8 * (k & 1)
                        c = '0' if k < 2 else v(r, 4)
                        out.append(f'v_mfma_f32_16x16x32_bf16 {v(r,4)}, {m.group(3)}, {m.group(4)}, {c}')
                else:
                    out.append(l)
            self.A.lines = out
        n = self.A.pad()
        head = open(os.path.join(os.path.dirname(os.path.abspath(__file__)), 'head.txt')).read()
        out = head + '; @launch grid=(256,1,1) block=(256,1,1) lds=163840\n'
        out += '.amdgcn_target "amdgcn-amd-amdhsa--gfx950"\n.text\n'
        out += f'.globl {NAME}_kernel\n.p2align 8\n.type {NAME}_kernel,@function\n'
        out += self.A.text()
        out += f'''.section .rodata,"a"
.p2align 6
.amdhsa_kernel {NAME}_kernel
  .amdhsa_next_free_vgpr 512
  .amdhsa_next_free_sgpr 102
  .amdhsa_accum_offset 256
  .amdhsa_group_segment_fixed_size 0
  .amdhsa_kernarg_size 104
  .amdhsa_user_sgpr_count 2
  .amdhsa_user_sgpr_kernarg_segment_ptr 1
  .amdhsa_system_sgpr_workgroup_id_x 1
.end_amdhsa_kernel
'''
        return out, n


if __name__ == '__main__':
    import argparse
    ap = argparse.ArgumentParser()
    ap.add_argument('-o', default='out.s')
    ap.add_argument('--L', type=int, default=6)
    ap.add_argument('--A', type=int, default=6)
    ap.add_argument('--roles', default='all')
    ap.add_argument('--diag', action='store_true')
    ap.add_argument('--slow', action='store_true')
    ap.add_argument('--nsteps', type=int, default=None)
    ap.add_argument('--opt', default='')
    args = ap.parse_args()
    opt = {k: int(x) for k, x in (kv.split('=') for kv in args.opt.split(',') if kv)}
    g = Gen(opt=opt, L=args.L, A=args.A, roles=args.roles, diag=args.diag, nsteps=args.nsteps, force_slow=args.slow)
    txt, n = g.build()
    open(args.o, 'w').write(txt)
    print('wrote', args.o, len(txt), 'bytes; nop states inserted:', n)
```

```python
from common import *


class QkvMixin:
    def role_qkv(self):
        e = self.A.e
        A = self.A
        e('L_qkv:')
        e(f's_sub_u32 s64, {sSLOT}, 12')
        e('s_lshl_b32 s64, s64, 2')
        e(f's_add_u32 s64, s64, {sW}')
        e(f's_lshl_b32 s65, {sCLS}, 8')
        e('s_lshl_b32 s66, s64, 2')
        e('s_add_u32 s65, s65, s66')
        e(f's_add_u32 s65, s65, {P_QKV}')
        e('s_add_u32 s66, s65, 2048')
        e('v_mov_b32 v4, 0')
        e('s_mov_b64 exec, 1')
        e(f'buffer_store_dword v4, off, {WS}, s65 sc1')
        e(f'buffer_store_dword v4, off, {WS}, s66 sc1')
        e('s_mov_b64 exec, -1')
        self.arrive()
        e('s_mul_i32 s67, s64, 57')
        e('s_lshr_b32 s67, s67, 9')
        e('s_mul_i32 s68, s67, 9')
        e('s_sub_u32 s68, s64, s68')
        e('s_mul_i32 s69, s68, 11')
        e('s_lshr_b32 s69, s69, 5')
        e('s_mul_i32 s70, s69, 3')
        e('s_sub_u32 s70, s68, s70')
        e(f's_lshl_b32 s71, {sCLS}, 2')
        e('s_add_u32 s71, s71, s67')
        e('s_cmp_eq_u32 s69, 1')
        e(f's_cselect_b32 s44, s{PTR["wk"]}, s{PTR["wq"]}')
        e(f's_cselect_b32 s45, s{PTR["wk"]+1}, s{PTR["wq"]+1}')
        e('s_cmp_eq_u32 s69, 2')
        e(f's_cselect_b32 s44, s{PTR["wv"]}, s44')
        e(f's_cselect_b32 s45, s{PTR["wv"]+1}, s45')
        e('s_and_b32 s45, s45, 0xffff')
        e(f's_mov_b32 s46, {NBYTES["wq"]}')
        e('s_mov_b32 s47, 0x20000')
        e('s_mul_i32 s72, s71, 384')
        e('s_lshl_b32 s73, s70, 7')
        e('s_add_u32 s72, s72, s73')
        e('v_lshrrev_b32 v1, 3, v0')
        e('v_mul_u32_u24 v1, 12288, v1')
        e('v_and_b32 v2, 7, v0')
        e('v_lshl_add_u32 v5, v2, 4, v1')
        e('v_add_u32 v5, s72, v5')
        e(f's_mul_i32 s73, {sW}, 40960')
        self.tr_lane16('v6', 128, False, 's73')

        def W(ct, k, u):
            r = 80 * ct + 4 * k + 2 * u
            return a(r, 2) if r < 256 else v(192 + r - 256, 2)

        def Wf(ct, k):
            r = 80 * ct + 4 * k
            return a(r, 4) if r < 256 else v(192 + r - 256, 4)

        def chunk_dma(q):
            e(f's_add_u32 m0, s73, {(q & 1) * 20480}')
            e(f's_mov_b32 s74, {q * 160 * 12288}')
            self.dma(20, 'v5', SRA, 's74', 8 * 12288)

        chunk_dma(0)
        chunk_dma(1)
        for q in range(4):
            e(f's_waitcnt vmcnt({20 if q < 3 else 0})')
            items = []
            for k in range(5):
                for ct in range(4):
                    for u in range(2):
                        items.append((W(ct, 5 * q + k, u), (q & 1) * 20480 + k * 4096 + u * 512 + ct * 32))
            self.trl(items, 'v6', 'v7')
            e('s_waitcnt lgkmcnt(0)')
            if q < 2:
                chunk_dma(q + 2)
        VD, VR = 8, 10
        self.xn_consts16(VD, VR)
        self.perm_lane('v9')
        e('v_and_b32 v5, 7, v0')
        e('v_lshlrev_b32 v5, 2, v5')
        e(f's_mul_i32 s72, s71, {QKV_HEAD}')
        self.clsoff('s72', 's73', QKV_HEAD, self.QL2)
        e('s_mul_i32 s73, s69, 12288')
        e('s_add_u32 s72, s72, s73')
        e('s_lshl_b32 s73, s70, 12')
        e('s_add_u32 s72, s72, s73')
        e(f's_add_u32 s72, s72, {QKV}')
        self.wait_init('v6', 'v7')
        e('s_barrier')
        self.stamp(1, real=True)
        self.flush()
        RQ = self.opt['rq']
        intra = self.opt['intra']
        assert self.L - RQ <= self.AH <= self.L + RQ or self.L >= 64
        BP = self.on('op') and not self.opt['unsafe']
        e('v_min_u32 v7, 4, v0')
        e('v_lshlrev_b32 v7, 2, v7')
        e(f's_lshl_b32 s82, {sCLS}, 7')
        e(f's_add_u32 s82, s82, {P_OPI}')
        e(f's_mul_i32 s83, {sW}, 10240')
        e(f's_mov_b32 s84, {P_R2}')
        ACC, PK, BR = (16, 48), 80, 96
        sP1, sP2, sO, sX1, sX2, sD, sNR, sNB = 's75', 's76', 's77', 's79', 's81', 's85', 's80', 's86'
        e('v_lshlrev_b32 v6, 2, v0')
        l0, l1 = A.lab('ln'), A.lab('lnok')
        e(f'{l0}:')
        for i in range(8):
            e(f'buffer_load_dword {v(16+i)}, v6, {WS}, 0 offen offset:{P_LN1 + 256*i} sc1')
        e('s_waitcnt vmcnt(0)')
        e('v_min3_u32 v16, v16, v17, v18')
        e('v_min3_u32 v19, v19, v20, v21')
        e('v_min3_u32 v16, v16, v22, v23')
        e('v_min_u32 v16, v16, v19')
        e('v_cmp_eq_u32 vcc, 0, v16')
        e(f's_cbranch_vccz {l1}')
        self.spin(l0, 2)
        e(f'{l1}:')

        def dma_one(i, ssrc, buf):
            if i == 0:
                e(f's_add_u32 m0, s83, {buf}')
            else:
                e('s_add_u32 m0, m0, 896')
            e(f'buffer_load_dwordx4 {v(VD)}, {WS}, {ssrc} offen offset:{i*128} sc1{" nt" if self.opt["xnt"] else ""} lds')

        sE, sOp, sNBp = 's87', 's88', 's89'

        def steps(buf, acc, isV, k0, k1, hooks):
            PF = 2

            def rd(k):
                for th in range(2):
                    e(f'ds_read_b128 {v(BR+8*(k%4)+4*th,4)}, {v(VR+2*th+(k&1))} offset:{buf+(k>>1)*1024}')
            if k0 == 0:
                for k in range(PF):
                    rd(k)
            for k in range(k0, k1):
                if k + PF < 20:
                    rd(k + PF)
                left = 2 * min(PF, 19 - k)
                for th in range(2):
                    e(f's_waitcnt lgkmcnt({left + 1 - th})')
                    b = v(BR + 8 * (k % 4) + 4 * th, 4)
                    for ct in range(4):
                        d = v(acc + 8 * ct + 4 * th, 4)
                        c = '0' if k == 0 else d
                        if isV:
                            e(f'v_mfma_f32_16x16x32_bf16 {d}, {b}, {Wf(ct,k)}, {c}')
                        else:
                            e(f'v_mfma_f32_16x16x32_bf16 {d}, {Wf(ct,k)}, {b}, {c}')
                    for h in hooks.get(2 * k + th, []):
                        h()

        def epi_parts(acc, ly, isV):
            def cv(tl, h):
                al, be = (acc + 16 * tl + 4 * h, acc + 16 * tl + 8 + 4 * h) if isV else (acc + 16 * tl + 8 * h, acc + 16 * tl + 8 * h + 4)
                p = PK + 8 * tl + 4 * h
                e(f'v_cvt_pk_bf16_f32 {v(p)}, {v(al)}, {v(al+1)}')
                e(f'v_cvt_pk_bf16_f32 {v(p+1)}, {v(al+2)}, {v(al+3)}')
                e(f'v_cvt_pk_bf16_f32 {v(p+2)}, {v(be)}, {v(be+1)}')
                e(f'v_cvt_pk_bf16_f32 {v(p+3)}, {v(be+2)}, {v(be+3)}')

            def sw(tl):
                for h in range(2):
                    p = PK + 8 * tl + 4 * h
                    e(f'v_permlane32_swap_b32 {v(p)}, {v(p+2)}')
                    e(f'v_permlane32_swap_b32 {v(p+1)}, {v(p+3)}')

            def st(tl):
                sw(tl)
                if BP and tl == 0:
                    lok = A.lab('bp')
                    e(f'v_cmp_gt_u32 vcc, {sNBp}, v3')
                    e(f's_cbranch_vccz {lok}')
                    self.poll('v3', 'v7', 's82', sNBp, imm=32 * ly)
                    e(f'{lok}:')
                self.st_intra([f'buffer_store_dwordx4 {v(PK+8*tl+4*h,4)}, v9, {WS}, {sOp} offen offset:{tl*2048+h*1024}'
                               for h in range(2)])
            return [lambda: cv(0, 0), lambda: cv(0, 1), lambda: st(0), lambda: cv(1, 0), lambda: cv(1, 1), lambda: st(1)]

        def dest(ly, sidx):
            e(f's_and_b32 {sOp}, {sidx}, {RQ-1}')
            if ly:
                e(f's_add_u32 {sOp}, {sOp}, {RQ}')
            e(f's_mul_i32 {sOp}, {sOp}, {QKV_SEG}')
            e(f's_add_u32 {sOp}, {sOp}, s72')
            e(f's_sub_u32 {sNBp}, {sidx}, {RQ-1}')
            e(f's_cselect_b32 {sNBp}, 0, {sNBp}')

        def bpld(ly):
            if BP:
                e(f'buffer_load_dword v3, v7, {WS}, s82 offen offset:{32*ly} sc1')

        def guarded(f):
            def h():
                l = A.lab('ne')
                e(f's_cmp_eq_u32 {sE}, 0')
                e(f's_cbranch_scc1 {l}')
                f()
                e(f'{l}:')
            return h

        def sig_after(n, word, val):
            def h():
                e(f's_waitcnt vmcnt({n})')
                self.signal('v4', word, val, intra=intra)
            return h

        def flags_ld():
            e(f'buffer_load_dword v5, v6, {WS}, s84 offen sc1')
        KS = self.opt['qks']

        def body(isV):
            tag = 'v' if isV else 'q'
            e('v_and_b32 v6, 7, v0')
            e('v_lshlrev_b32 v6, 7, v6')
            e(f's_mov_b32 {sP1}, 0')
            e(f's_mov_b32 {sP2}, 0')
            e(f's_mov_b32 {sX1}, {XN1}')
            odd = self.AH & 1
            for i in range(10):
                dma_one(i, sX1, 40960 * odd)
            e('s_waitcnt vmcnt(0)')
            e('s_barrier')
            lp = f'L_qkv_a_{tag}'
            if odd:
                e(f's_branch {lp}1')
            e(f'{lp}:')
            for half in range(2):
                if half:
                    e(f'{lp}1:')
                e(f's_add_u32 {sX1}, {sX1}, {SEGB}')
                dest(0, sP1)
                hk = {i: [lambda i=i: dma_one(i, sX1, 40960 * (1 - half))] for i in range(10)}
                hk[12] = [lambda: bpld(0)]
                steps(40960 * half, ACC[half], isV, 0, 20, hk)
                e('s_waitcnt vmcnt(0)')
                for f in epi_parts(ACC[half], 0, isV):
                    f()
                e(f's_add_u32 {sP1}, {sP1}, 1')
                sig_after(0, 's65', sP1)()
                e('s_barrier')
            e(f's_cmp_lt_u32 {sP1}, {self.AH}')
            e(f's_cbranch_scc1 {lp}')
            lp2, blk, got2, tail2 = f'L_qkv_b_{tag}', A.lab('blk'), A.lab('got2'), A.lab('tail')
            e(f's_mov_b32 {sE}, 0')
            e(f'{lp2}:')
            self.flush()
            e(f's_add_u32 {sNR}, {sP2}, 1')
            e(f's_mul_i32 {sX2}, {sP2}, {SEGB}')
            e(f's_add_u32 {sX2}, {sX2}, {XN2}')
            ep = epi_parts(ACC[1], 1, isV)
            hk = {k: [guarded(ep[k])] for k in range(6)}
            hk[6] = [flags_ld]
            steps(0, ACC[0], isV, 0, KS, hk)
            sig_after(0, 's66', sP2)()
            dest(0, sP1)
            bpld(0)
            lA, lB2, lC, lD = A.lab('qa'), A.lab('qb'), A.lab('qc'), A.lab('qd')
            e(f'v_cmp_gt_u32 vcc, {sNR}, v5')
            e(f's_cbranch_vccz {lA}')
            K2 = KS + 6
            steps(0, ACC[0], isV, KS, K2, {2 * KS + 3: [flags_ld]})
            e('s_waitcnt vmcnt(0)')
            e(f'v_cmp_gt_u32 vcc, {sNR}, v5')
            e(f's_cbranch_vccz {lB2}')
            steps(0, ACC[0], isV, K2, 20, {34: [flags_ld]})
            e('s_waitcnt vmcnt(0)')
            e(f's_add_u32 {sP1}, {sP1}, 1')
            e(f's_mov_b32 {sE}, 1')
            e(f'v_cmp_gt_u32 vcc, {sNR}, v5')
            e(f's_cbranch_vccz {lD}')
            for f in epi_parts(ACC[0], 0, isV):
                f()
            flags_ld()
            self.stamp(4, real=True)
            sig_after(0, 's65', sP1)()
            e(f's_mov_b32 {sE}, 0')
            e(f'v_cmp_gt_u32 vcc, {sNR}, v5')
            e(f's_cbranch_vccz {lD}')
            e(f'{blk}:')
            if self.on('r'):
                flags_ld()
                e('s_waitcnt vmcnt(0)')
                e(f'v_cmp_gt_u32 vcc, {sNR}, v5')
                lb = A.lab('bok')
                e(f's_cbranch_vccz {lb}')
                self.spin(blk, self.opt['psleep'])
                e(f'{lb}:')
            e(f'{lD}:')
            self.stamp(0, real=True)
            for i in range(10):
                dma_one(i, sX2, 40960)
            e(f's_branch {got2}')
            e(f'{lB2}:')
            steps(0, ACC[0], isV, K2, 20, {2 * K2 + i: [lambda i=i: dma_one(i, sX2, 40960)] for i in range(10)})
            e(f's_branch {lC}')
            e(f'{lA}:')
            steps(0, ACC[0], isV, KS, 20, {2 * KS + 2 * i: [lambda i=i: dma_one(i, sX2, 40960)] for i in range(10)})
            e(f'{lC}:')
            e(f's_add_u32 {sP1}, {sP1}, 1')
            self.stamp(4, real=True)
            e(f's_mov_b32 {sE}, 1')
            e(f'{got2}:')
            e('s_waitcnt vmcnt(0)')
            e('s_barrier')
            self.stamp(1, real=True)
            ep = epi_parts(ACC[0], 0, isV)
            hk = {k: [guarded(ep[k])] for k in range(6)}
            steps(40960, ACC[1], isV, 0, KS, hk)
            sig_after(0, 's65', sP1)()
            dest(1, sP2)
            bpld(1)
            e(f's_add_u32 {sP2}, {sP2}, 1')
            e(f's_cmp_ge_u32 {sP1}, 64')
            e(f's_cbranch_scc1 {tail2}')
            e(f's_add_u32 {sX1}, {sX1}, {SEGB}')
            steps(40960, ACC[1], isV, KS, 20, {2 * KS + 2 * i: [lambda i=i: dma_one(i, sX1, 0)] for i in range(10)})
            self.stamp(2, real=True)
            e(f's_mov_b32 {sE}, 1')
            e('s_waitcnt vmcnt(0)')
            e('s_barrier')
            e(f's_branch {lp2}')
            e(f'{tail2}:')
            steps(40960, ACC[1], isV, KS, 20, {})
            e('s_waitcnt vmcnt(0)')
            for f in epi_parts(ACC[1], 1, isV):
                f()
            self.stamp(2, real=True)
            sig_after(0, 's66', sP2)()
            self.stamp(3, real=True)
            e(f's_cmp_ge_u32 {sP2}, 64')
            e('s_cbranch_scc1 L_qkv_fin')
            e('s_barrier')
            self.flush()
            e(f's_mov_b32 {sE}, 0')
            e(f's_add_u32 {sNR}, {sP2}, 1')
            e(f's_mul_i32 {sX2}, {sP2}, {SEGB}')
            e(f's_add_u32 {sX2}, {sX2}, {XN2}')
            e(f's_branch {blk}')

        e('s_branch L_qkv_go')
        e('L_qkv_fin:')
        if self.opt['wb']:
            self.writeback(12)
        e('s_endpgm')
        e('L_qkv_go:')
        e('s_cmp_eq_u32 s69, 2')
        e('s_cbranch_scc1 L_qkv_v')
        body(False)
        e('L_qkv_v:')
        body(True)
```

```python
import sys, os
sys.path.insert(0, os.path.dirname(os.path.abspath(__file__)))
from asmlib import Asm

from common import *
from chain import ChainMixin
from qkv import QkvMixin
from workers import WorkersMixin


class Gen(ChainMixin, QkvMixin, WorkersMixin):
    def __init__(self, L=6, A=10, roles='all', diag=False, nsteps=None, force_slow=False, opt=None):
        self.A = Asm()
        self.L = L
        self.AH = A
        self.roles = roles
        self.diag = diag
        self.nsteps = nsteps if nsteps is not None else 64 + L
        self.force_slow = force_slow
        self.opt = dict(cdelay=6, agdelay=2, sdelay=0, odelay=0, hdelay=20, rq=4, intra=1, at2delay=6, exact=0, opsig=20, psleep=1, crring=128, ring=64, ratom=1, earlysig=1, svm=11, sgap=2, lite=0, wb=0, dense=1, cgap=0, qks=7, unsafe=0, crnt=0, xnt=0, rnt=1, anchor=0, adn=12, dbgt=0, wnt=0, hold=1, npre=3, opre=4, vat=8, sv1=4, warm=0, xb=0, xwait=14, lean=0, adapt=0, probe=0, fake16=0, keep=0)
        self.opt.update(opt or {})
        self.QL2 = self.opt['rq'] * QKV_SEG
        self.KL2 = self.opt['rq'] * KM_SEG
        self.opt_keep = [i for i in range(16) if self.opt['keep'] >> i & 1]

    def on(self, r):
        return self.roles == 'all' or r in self.roles.split(',')

    def srd(self, dst, name):
        e = self.A.e
        b = int(dst[2:dst.index(':')])
        p = PTR[name]
        e(f's_mov_b32 s{b}, s{p}')
        e(f's_and_b32 s{b+1}, s{p+1}, 0xffff')
        e(f's_mov_b32 s{b+2}, {NBYTES[name]}')
        e(f's_mov_b32 s{b+3}, 0x20000')

    def clsoff(self, dst, tmp, per_head, l2):
        self.A.e(f's_mul_i32 {tmp}, {sCLS}, {2 * l2 - 4 * per_head}')
        self.A.e(f's_add_u32 {dst}, {dst}, {tmp}')

    def spin(self, back, sleep=0):
        e = self.A.e
        if sleep:
            e(f's_sleep {sleep}')
        e(f's_sub_u32 {sSPIN}, {sSPIN}, 1')
        e(f's_cbranch_scc0 {back}')
        e('s_branch L_fail')

    def poll(self, vt, voff, soff, need, sleep=None, imm=0):
        e = self.A.e
        l0, l1 = self.A.lab('poll'), self.A.lab('pok')
        e(f'{l0}:')
        e(f'buffer_load_dword {vt}, {voff}, {WS}, {soff} offen offset:{imm} sc1')
        e('s_waitcnt vmcnt(0)')
        e(f'v_cmp_gt_u32 vcc, {need}, {vt}')
        e(f's_cbranch_vccz {l1}')
        self.spin(l0, self.opt['psleep'] if sleep is None else sleep)
        e(f'{l1}:')

    def st_mode(self, text):
        e = self.A.e
        lines = text if isinstance(text, list) else [text]
        l0, l1 = self.A.lab('sl'), self.A.lab('sd')
        e(f's_cmp_eq_u32 {sFAST}, 0')
        e(f's_cbranch_scc1 {l0}')
        for t in lines:
            e(t)
        e(f's_branch {l1}')
        e(f'{l0}:')
        for t in lines:
            e(t + (' sc1' if t.startswith('buffer_store') else ''))
        e(f'{l1}:')

    def st_intra(self, lines):
        if self.opt['intra']:
            self.st_mode(lines)
        else:
            for t in lines:
                self.A.e(t + ' sc1')

    def signal(self, vt, soff, val, intra=False):
        e = self.A.e
        e(f'v_mov_b32 {vt}, {val}')
        e('s_mov_b64 exec, 1')
        if intra:
            self.st_mode(f'buffer_store_dword {vt}, off, {WS}, {soff}')
        else:
            e(f'buffer_store_dword {vt}, off, {WS}, {soff} sc1')
        e('s_mov_b64 exec, -1')

    def signal_cu(self, vt, vz, ldsaddr, soff, val):
        e = self.A.e
        l = self.A.lab('nl')
        e(f'v_mov_b32 {vt}, 1')
        e(f'v_mov_b32 {vz}, {ldsaddr}')
        e('s_mov_b64 exec, 1')
        e(f'ds_add_rtn_u32 {vt}, {vz}, {vt}')
        e('s_waitcnt lgkmcnt(0)')
        e(f'v_readfirstlane_b32 s60, {vt}')
        e(f'v_mov_b32 {vt}, {val}')
        e('s_and_b32 s60, s60, 3')
        e('s_cmp_lg_u32 s60, 3')
        e(f's_cbranch_scc1 {l}')
        e(f'buffer_store_dword {vt}, off, {WS}, {soff} sc1')
        e(f'{l}:')
        e('s_mov_b64 exec, -1')

    def writeback(self, slot):
        e = self.A.e
        l = self.A.lab('wb')
        e(f's_cmp_lg_u32 {sSLOT}, {slot}')
        e(f's_cbranch_scc1 {l}')
        e(f's_cmp_lg_u32 {sW}, 0')
        e(f's_cbranch_scc1 {l}')
        e('buffer_wbl2 sc1')
        e('s_waitcnt vmcnt(0)')
        e(f'{l}:')

    def lds_zero(self, addrs):
        e = self.A.e
        e('v_mov_b32 v1, 0')
        for ad in addrs:
            e(f'v_mov_b32 v2, {ad}')
            e('ds_write_b32 v2, v1')
        e('s_waitcnt lgkmcnt(0)')
        e('s_barrier')

    def arrive(self):
        e = self.A.e
        l = self.A.lab('arr')
        e('s_waitcnt vmcnt(0)')
        e('s_barrier')
        e(f's_cmp_lg_u32 {sW}, 0')
        e(f's_cbranch_scc1 {l}')
        e('s_and_b32 s60, s2, 7')
        e('s_lshl_b32 s60, s60, 5')
        e('s_add_u32 s60, s60, 16')
        e('v_mov_b32 v1, 1')
        e('s_mov_b64 exec, 1')
        e(f'buffer_atomic_add v1, off, {DBG}, s60')
        e('s_mov_b64 exec, -1')
        e(f'{l}:')

    def wait_init(self, vt, vt2, st='s60', keep=0):
        e = self.A.e
        b = int(st[1:])
        l0, l1 = self.A.lab('wi'), self.A.lab('wid')
        e(f'v_lshlrev_b32 {vt2}, 2, v0')
        e(f'{l0}:')
        e(f'buffer_load_dword {vt}, {vt2}, {DBG}, 0 offen sc1')
        e('s_waitcnt vmcnt(0)')
        e(f'v_cmp_ne_u32 vcc, 32, {vt}')
        e(f's_mov_b32 s{b}, 0x10101010')
        e(f's_mov_b32 s{b+1}, 0x10101010')
        e(f's_and_b64 s[{b+2}:{b+3}], vcc, s[{b}:{b+1}]')
        e(f's_cbranch_scc0 {l1}')
        self.spin(l0, 2)
        e(f'{l1}:')
        e(f's_mov_b32 s{b}, 0x01010101')
        e(f's_mov_b32 s{b+1}, 0x01010101')
        e(f's_and_b64 s[{b+2}:{b+3}], vcc, s[{b}:{b+1}]')
        e(f's_cselect_b32 {sFAST}, 0, 1')
        if self.force_slow:
            e(f's_mov_b32 {sFAST}, 0')

    def trl(self, items, vaddr, vtmp):
        e = self.A.e
        base = None
        for dst, off in items:
            b = (off // 65536) * 65536 if off >= 65536 else 0
            if off - b > 65535:
                raise ValueError
            if b == 0:
                e(f'ds_read_b64_tr_b16 {dst}, {vaddr} offset:{off}')
            else:
                if base != b:
                    e(f'v_add_u32 {vtmp}, {b}, {vaddr}')
                    base = b
                e(f'ds_read_b64_tr_b16 {dst}, {vtmp} offset:{off - b}')

    def dma(self, n, voff, srd, ssoff, sstep, m0step=1024, sc1=False):
        e = self.A.e
        for i in range(n):
            e(f'buffer_load_dwordx4 {voff}, {srd}, {ssoff} offen{" sc1" if sc1 else ""}{" nt" if self.opt["wnt"] and not sc1 else ""} lds')
            if i + 1 < n:
                e(f's_add_u32 m0, m0, {m0step}')
                e(f's_add_u32 {ssoff}, {ssoff}, {sstep}')

    def stamp(self, idx, real=False):
        if not self.diag or (self.opt['lite'] and not real and idx not in self.opt_keep):
            return
        e = self.A.e
        e('s_memrealtime s[98:99]' if real else 's_memtime s[98:99]')
        e('s_waitcnt lgkmcnt(0)')
        e(f'v_writelane_b32 v14, s98, {idx}')

    def xstamp(self, idx):
        if self.diag and self.opt['probe'] == 4:
            e = self.A.e
            e('s_memtime s[98:99]')
            e('s_waitcnt lgkmcnt(0)')
            e(f'v_writelane_b32 v14, s98, {idx}')

    def dbgtime(self, word):
        if not self.opt['dbgt']:
            return
        e = self.A.e
        l = self.A.lab('dt')
        e(f's_cmp_lg_u32 {sCLS}, 0')
        e(f's_cbranch_scc1 {l}')
        e('s_memrealtime s[98:99]')
        e('s_waitcnt lgkmcnt(0)')
        e('s_and_b32 s98, s98, 0xffffff')
        e('v_mov_b32 v15, s98')
        e('s_mov_b64 exec, 1')
        e(f'buffer_atomic_umax v15, off, {DBG}, 0 offset:{4*word}')
        e('s_mov_b64 exec, -1')
        e(f'{l}:')

    def note(self, idx, sreg):
        if self.diag and self.opt['probe'] != 4:
            self.A.e(f'v_writelane_b32 v14, {sreg}, {idx}')

    def flush(self):
        if not self.diag:
            return
        e = self.A.e
        e('v_lshlrev_b32 v15, 2, v0')
        e('s_mov_b64 exec, 0xffff')
        e(f'buffer_store_dword v14, v15, {WS}, s97 offen')
        e('s_mov_b64 exec, -1')
        e('s_add_u32 s97, s97, 64')

    def rowstat(self, val, tmp):
        e = self.A.e
        for r in (8, 4, 2, 1):
            e(f'v_add_f32_dpp {val}, {val}, {val} row_ror:{r} row_mask:0xf bank_mask:0xf')
        e(f'v_mov_b32 {tmp}, {val}')
        e(f'v_permlane16_swap_b32 {tmp}, {val}')
        e(f'v_add_f32 {val}, {val}, {tmp}')

    def bfround(self, r, ):
        e = self.A.e
        e(f'v_cvt_pk_bf16_f32 {r}, {r}, {r}')
        e(f'v_and_b32 {r}, 0xffff0000, {r}')

    def ln_pair(self, X, OUT, T):
        e = self.A.e
        t0, t2, t4 = T, T + 2, T + 4
        e(f'v_pk_add_f32 {v(t0,2)}, {v(X,2)}, {v(X+2,2)}')
        e(f'v_pk_add_f32 {v(t2,2)}, {v(X+4,2)}, {v(X+6,2)}')
        for k in range(8, 20, 4):
            e(f'v_pk_add_f32 {v(t0,2)}, {v(t0,2)}, {v(X+k,2)}')
            e(f'v_pk_add_f32 {v(t2,2)}, {v(t2,2)}, {v(X+k+2,2)}')
        e(f'v_pk_add_f32 {v(t0,2)}, {v(t0,2)}, {v(t2,2)}')
        e(f'v_add_f32 {v(t0)}, {v(t0)}, {v(t0+1)}')
        self.rowstat(v(t0), v(t0 + 1))
        e(f'v_mul_f32 {v(t0)}, {f2u(-1.0/640):#x}, {v(t0)}')
        e(f'v_mov_b32 {v(t0+1)}, {v(t0)}')
        e(f'v_pk_add_f32 {v(t4,2)}, {v(X,2)}, {v(t0,2)}')
        e(f'v_pk_mul_f32 {v(t2,2)}, {v(t4,2)}, {v(t4,2)}')
        for k in range(2, 20, 2):
            e(f'v_pk_add_f32 {v(t4,2)}, {v(X+k,2)}, {v(t0,2)}')
            e(f'v_pk_fma_f32 {v(t2,2)}, {v(t4,2)}, {v(t4,2)}, {v(t2,2)}')
        e(f'v_add_f32 {v(t2)}, {v(t2)}, {v(t2+1)}')
        self.rowstat(v(t2), v(t2 + 1))
        e(f'v_mul_f32 {v(t2)}, {f2u(1.0/640):#x}, {v(t2)}')
        self.bfround(v(t2))
        e(f'v_add_f32 {v(t2)}, {f2u(1e-5):#x}, {v(t2)}')
        self.bfround(v(t2))
        e(f'v_sqrt_f32 {v(t2)}, {v(t2)}')
        self.bfround(v(t2))
        e(f'v_rcp_f32 {v(t2)}, {v(t2)}')
        self.bfround(v(t0))
        e(f'v_mov_b32 {v(t0+1)}, {v(t0)}')
        e(f'v_mov_b32 {v(t2+1)}, {v(t2)}')
        outs = OUT if isinstance(OUT, list) else list(range(OUT, OUT + 10))
        for k in range(0, 20, 2):
            e(f'v_pk_add_f32 {v(X+k,2)}, {v(X+k,2)}, {v(t0,2)}')
        if self.opt['exact']:
            for k in range(0, 20, 2):
                e(f'v_cvt_pk_bf16_f32 {v(X+k+1)}, {v(X+k)}, {v(X+k+1)}')
            for k in range(0, 20, 2):
                e(f'v_lshlrev_b32 {v(X+k)}, 16, {v(X+k+1)}')
                e(f'v_and_b32 {v(X+k+1)}, 0xffff0000, {v(X+k+1)}')
        for k in range(0, 20, 2):
            e(f'v_pk_mul_f32 {v(X+k,2)}, {v(X+k,2)}, {v(t2,2)}')
        for k in range(0, 20, 2):
            e(f'v_cvt_pk_bf16_f32 {v(outs[k//2])}, {v(X+k)}, {v(X+k+1)}')

    def rowlane_addr(self, dst, tmp):
        e = self.A.e
        e(f'v_lshrrev_b32 {dst}, 5, v0')
        e(f'v_mul_u32_u24 {dst}, 1280, {dst}')
        e(f'v_and_b32 {tmp}, 15, v0')
        e(f'v_lshl_add_u32 {dst}, {tmp}, 4, {dst}')
        e(f'v_bfe_u32 {tmp}, v0, 4, 1')
        e(f'v_lshl_add_u32 {dst}, {tmp}, 3, {dst}')

    def unpack(self, dst, src, n):
        e = self.A.e
        for k in range(n):
            e(f'v_lshlrev_b32 {v(dst+2*k)}, 16, {v(src+k)}')
            e(f'v_and_b32 {v(dst+2*k+1)}, 0xffff0000, {v(src+k)}')

    def ln1_phase(self):
        e = self.A.e
        self.srd(SRA, 'x')
        e(f's_sub_u32 s64, {sSLOT}, 21')
        e('s_lshl_b32 s64, s64, 2')
        e(f's_add_u32 s64, s64, {sW}')
        self.rowlane_addr('v2', 'v3')
        e('v_mov_b32 v4, 0')
        e('s_mov_b64 exec, 1')
        e('s_lshl_b32 s65, s64, 5')
        e(f's_lshl_b32 s66, {sCLS}, 2')
        e('s_add_u32 s65, s65, s66')
        e(f'buffer_store_dword v4, off, {WS}, s65 offset:{P_LN1} sc1')
        e('s_cmp_ge_u32 s64, 20')
        l = self.A.lab('z2')
        e(f's_cbranch_scc1 {l}')
        e(f'buffer_store_dword v4, off, {WS}, s65 offset:{P_LN1 + 44*32} sc1')
        e(f'{l}:')
        e('s_mov_b64 exec, -1')

    def ln1_items(self):
        e = self.A.e
        lp, done = self.A.lab('ln1'), self.A.lab('ln1d')
        e(f's_mul_i32 s66, {sCLS}, 5120')
        e(f'{lp}:')
        e(f's_mul_i32 s67, s64, {SEGB}')
        e('s_add_u32 s67, s67, s66')
        for p in range(2):
            for cg in range(5):
                e(f'buffer_load_dwordx2 {v(16+10*p+2*cg,2)}, v2, {SRA}, s67 offen offset:{p*2560+cg*256}')
        e(f's_add_u32 s68, s67, {XN1}')
        for p in range(2):
            e(f's_waitcnt vmcnt({5 if p == 0 else 5})')
            if p == 1:
                e('s_waitcnt vmcnt(5)')
            self.unpack(40, 16 + 10 * p, 10)
            self.ln_pair(40, 60 + 10 * p, 8)
            for cg in range(5):
                e(f'buffer_store_dwordx2 {v(60+10*p+2*cg,2)}, v2, {WS}, s68 offen offset:{p*2560+cg*256} sc1')
        e('s_waitcnt vmcnt(0)')
        e(f's_add_u32 s68, s65, {P_LN1}')
        self.signal('v4', 's68', 1)
        e('s_cmp_ge_u32 s64, 20')
        e(f's_cbranch_scc1 {done}')
        e('s_add_u32 s64, s64, 44')
        e(f's_add_u32 s65, s65, {44*32}')
        e(f's_branch {lp}')
        e(f'{done}:')

    def xn_consts(self, vdma, vrd):
        e = self.A.e
        e('v_lshrrev_b32 v1, 3, v0')
        e('v_and_b32 v2, 7, v0')
        e('v_xor_b32 v2, v2, v1')
        e(f's_and_b32 s60, {sW}, 1')
        e('v_xor_b32 v2, s60, v2')
        e(f's_lshl_b32 s60, {sW}, 3')
        e('v_add_u32 v1, s60, v1')
        e('v_mul_u32_u24 v1, 1280, v1')
        e(f'v_lshl_add_u32 {v(vdma)}, v2, 4, v1')
        e('v_bfe_u32 v1, v0, 3, 2')
        e('v_and_b32 v2, 7, v0')
        e('v_mul_u32_u24 v3, 10240, v1')
        e('v_lshl_add_u32 v3, v2, 7, v3')
        e('v_and_b32 v1, 1, v1')
        e('v_xor_b32 v2, v2, v1')
        e('v_lshrrev_b32 v1, 5, v0')
        e('v_xor_b32 v2, v2, v1')
        for q in range(4):
            e(f'v_xor_b32 v1, {2*q}, v2')
            e(f'v_lshl_add_u32 {v(vrd+q)}, v1, 4, v3')

    def xn_consts16(self, vdma, vrd):
        e = self.A.e
        e('v_lshrrev_b32 v1, 3, v0')
        e('v_and_b32 v2, 7, v0')
        e('v_xor_b32 v2, v2, v1')
        e(f's_lshl_b32 s60, {sW}, 3')
        e('v_add_u32 v1, s60, v1')
        e('v_mul_u32_u24 v1, 1280, v1')
        e(f'v_lshl_add_u32 {v(vdma)}, v2, 4, v1')
        e('v_bfe_u32 v1, v0, 3, 1')
        e('v_and_b32 v2, 7, v0')
        e('v_mul_u32_u24 v3, 10240, v1')
        e('v_lshl_add_u32 v3, v2, 7, v3')
        e('v_lshrrev_b32 v1, 4, v0')
        e('v_xor_b32 v2, v2, v1')
        for par in range(2):
            e(f'v_xor_b32 v1, {4*par}, v2')
            e(f'v_lshl_add_u32 {v(vrd+par)}, v1, 4, v3')
            e(f'v_add_u32 {v(vrd+2+par)}, 20480, {v(vrd+par)}')

    def perm_lane(self, dst):
        e = self.A.e
        e('v_bfe_u32 v1, v0, 4, 1')
        e('v_lshrrev_b32 v2, 5, v0')
        e('v_lshlrev_b32 v1, 5, v1')
        e('v_lshl_add_u32 v1, v2, 4, v1')
        e('v_and_b32 v2, 15, v0')
        e('v_add_u32 v1, v1, v2')
        e(f'v_lshlrev_b32 {dst}, 4, v1')

    def tr_lane16(self, dst, pitch, perm, extra_s=None):
        e = self.A.e
        if perm:
            e('v_lshrrev_b32 v1, 5, v0')
            e('v_lshlrev_b32 v1, 4, v1')
            e('v_bfe_u32 v2, v0, 4, 1')
            e('v_lshl_add_u32 v1, v2, 2, v1')
        else:
            e('v_lshrrev_b32 v1, 4, v0')
            e('v_lshlrev_b32 v1, 3, v1')
        e('v_bfe_u32 v2, v0, 2, 2')
        e('v_add_u32 v1, v1, v2')
        e(f'v_mul_u32_u24 v1, {pitch}, v1')
        e('v_and_b32 v2, 3, v0')
        e(f'v_lshl_add_u32 {dst}, v2, 3, v1')
        if extra_s:
            e(f'v_add_u32 {dst}, {extra_s}, {dst}')

    def xn_dma(self, vdma, ssoff, ldsbase):
        e = self.A.e
        e(f's_mul_i32 s60, {sW}, 10240')
        e(f's_add_u32 m0, s60, {ldsbase}')
        for cb in range(10):
            if cb:
                e('s_add_u32 m0, m0, 896')
            e(f'buffer_load_dwordx4 {v(vdma)}, {WS}, {ssoff} offen offset:{cb*128} sc1 lds')

    def tile_out(self, acc, pk, vw, vr, vg, soff, imm, relu=False):
        e = self.A.e
        for j in range(8):
            e(f'v_cvt_pk_bf16_f32 {v(pk+j)}, {v(acc+2*j)}, {v(acc+2*j+1)}')
        for j in range(4):
            e(f'ds_write_b64 {v(vw)}, {v(pk+2*j,2)} offset:{16*j}')
        e('s_waitcnt lgkmcnt(0)')
        e(f'ds_read_b128 {v(pk+8,4)}, {v(vr)}')
        e(f'ds_read_b128 {v(pk+12,4)}, {v(vr)} offset:1280')
        e('s_waitcnt lgkmcnt(1)')
        e(f'buffer_store_dwordx4 {v(pk+8,4)}, {v(vg)}, {WS}, {soff} offen offset:{imm} sc1')
        e('s_waitcnt lgkmcnt(0)')
        e(f'buffer_store_dwordx4 {v(pk+12,4)}, {v(vg+1)}, {WS}, {soff} offen offset:{imm} sc1')

    def tile_out_consts(self, vw, vr, vg, ldsbase):
        e = self.A.e
        e(f's_mul_i32 s60, {sW}, 2560')
        e(f's_add_u32 s60, s60, {ldsbase}')
        e('v_and_b32 v1, 31, v0')
        e('v_mul_u32_u24 v1, 80, v1')
        e('v_lshrrev_b32 v2, 5, v0')
        e('v_lshl_add_u32 v1, v2, 3, v1')
        e(f'v_add_u32 {v(vw)}, s60, v1')
        e('v_lshrrev_b32 v1, 2, v0')
        e('v_and_b32 v2, 3, v0')
        e('v_mul_u32_u24 v3, 80, v1')
        e('v_lshl_add_u32 v3, v2, 4, v3')
        e(f'v_add_u32 {v(vr)}, s60, v3')
        e('v_mul_u32_u24 v3, 1280, v1')
        e(f'v_lshl_add_u32 {v(vg)}, v2, 4, v3')
        e(f'v_add_u32 {v(vg+1)}, 20480, {v(vg)}')

    def tr_lane(self, dst, rowmul_hf, pitch, extra_s=None):
        e = self.A.e
        e('v_lshrrev_b32 v1, 5, v0')
        e(f'v_mul_u32_u24 v1, {rowmul_hf}, v1')
        e('v_bfe_u32 v2, v0, 2, 2')
        e('v_add_u32 v1, v1, v2')
        e(f'v_mul_u32_u24 v1, {pitch}, v1')
        e('v_bfe_u32 v2, v0, 4, 1')
        e('v_lshl_add_u32 v1, v2, 5, v1')
        e('v_and_b32 v2, 3, v0')
        e(f'v_lshl_add_u32 {dst}, v2, 3, v1')
        if extra_s:
            e(f'v_add_u32 {dst}, {extra_s}, {dst}')

    def build(self):
        e = self.A.e
        e(f'{NAME}_kernel:')
        e('s_cmp_ge_u32 s2, 256')
        e('s_cbranch_scc1 L_end')
        e('s_load_dwordx16 s[16:31], s[0:1], 0')
        e('s_load_dwordx8 s[32:39], s[0:1], 64')
        e('s_load_dwordx2 s[40:41], s[0:1], 96')
        e(f's_getreg_b32 {sCLS}, hwreg(HW_REG_XCC_ID, 0, 3)')
        e('v_lshrrev_b32 v1, 6, v0')
        e('v_and_b32 v0, 63, v0')
        e(f'v_readfirstlane_b32 {sW}, v1')
        e(f's_mov_b32 {sSPIN}, 0x200000')
        e(f's_mov_b32 {sFAST}, 0')
        e('s_waitcnt lgkmcnt(0)')
        e('s_mov_b32 s8, s40')
        e('s_and_b32 s9, s41, 0xffff')
        e(f's_mov_b32 s10, {WS_BYTES:#x}')
        e('s_mov_b32 s11, 0x20000')
        e('s_mov_b32 s12, s38')
        e('s_and_b32 s13, s39, 0xffff')
        e('s_mov_b32 s14, 256')
        e('s_mov_b32 s15, 0x20000')
        e('v_mov_b32 v3, 0')
        e(f's_cmp_lg_u32 {sW}, 0')
        e('s_cbranch_scc1 L_tk')
        e(f's_lshl_b32 s60, {sCLS}, 5')
        e('v_mov_b32 v2, 1')
        e('s_mov_b64 exec, 1')
        e(f'buffer_atomic_add v2, off, {DBG}, s60 sc0')
        e('s_waitcnt vmcnt(0)')
        e('ds_write_b32 v3, v2')
        e('s_waitcnt lgkmcnt(0)')
        e('s_mov_b64 exec, -1')
        e('L_tk:')
        e('s_barrier')
        e('ds_read_b32 v2, v3')
        e('s_waitcnt lgkmcnt(0)')
        e(f'v_readfirstlane_b32 {sSLOT}, v2')
        e('s_barrier')
        e(f's_cmp_ge_u32 {sSLOT}, 32')
        e('s_cbranch_scc1 L_fail')
        if self.diag:
            e(f's_lshl_b32 s97, {sCLS}, 5')
            e(f's_add_u32 s97, s97, {sSLOT}')
            e('s_lshl_b32 s97, s97, 2')
            e(f's_add_u32 s97, s97, {sW}')
            e('s_lshl_b32 s97, s97, 13')
            e(f's_add_u32 s97, s97, {TS}')
            self.stamp(0, real=True)
        self.dbgtime(2)
        e(f's_cmp_lt_u32 {sSLOT}, 12')
        e('s_cbranch_scc1 L_chain')
        e(f's_cmp_lt_u32 {sSLOT}, 21')
        e('s_cbranch_scc1 L_qkv')
        self.ln1_phase()
        self.rest_roles()
        e('L_fail:')
        e('v_mov_b32 v2, 1')
        e('s_mov_b64 exec, 1')
        e(f'buffer_atomic_add v2, off, {DBG}, 0 offset:4')
        e('s_waitcnt vmcnt(0)')
        e('L_end:')
        e('s_endpgm')
        if self.on('chain'):
            self.role_chain()
        else:
            e('L_chain:')
            self.arrive()
            e('s_endpgm')
        self.role_qkv()
        if self.opt['fake16']:
            import re
            out = []
            cnt = {}
            inattn = False
            for l in self.A.lines:
                if l.startswith('L_at_loop'):
                    inattn = True
                if l.startswith('L_r:'):
                    inattn = False
                m = re.match(r'v_mfma_f32_32x32x16_bf16 v\[(\d+):(\d+)\], (\S+), (\S+), (\S+)', l)
                if m and not inattn:
                    d = int(m.group(1))
                    if m.group(5) == '0':
                        cnt[d] = 0
                    k = cnt[d]
                    cnt[d] += 1
                    for h in range(2):
                        r = d + 4 * h + 8 * (k & 1)
                        c = '0' if k < 2 else v(r, 4)
                        out.append(f'v_mfma_f32_16x16x32_bf16 {v(r,4)}, {m.group(3)}, {m.group(4)}, {c}')
                else:
                    out.append(l)
            self.A.lines = out
        n = self.A.pad()
        head = open(os.path.join(os.path.dirname(os.path.abspath(__file__)), 'head.txt')).read()
        out = head + '; @launch grid=(256,1,1) block=(256,1,1) lds=163840\n'
        out += '.amdgcn_target "amdgcn-amd-amdhsa--gfx950"\n.text\n'
        out += f'.globl {NAME}_kernel\n.p2align 8\n.type {NAME}_kernel,@function\n'
        out += self.A.text()
        out += f'''.section .rodata,"a"
.p2align 6
.amdhsa_kernel {NAME}_kernel
  .amdhsa_next_free_vgpr 512
  .amdhsa_next_free_sgpr 102
  .amdhsa_accum_offset 256
  .amdhsa_group_segment_fixed_size 0
  .amdhsa_kernarg_size 104
  .amdhsa_user_sgpr_count 2
  .amdhsa_user_sgpr_kernarg_segment_ptr 1
  .amdhsa_system_sgpr_workgroup_id_x 1
.end_amdhsa_kernel
'''
        return out, n


if __name__ == '__main__':
    import argparse
    ap = argparse.ArgumentParser()
    ap.add_argument('-o', default='out.s')
    ap.add_argument('--L', type=int, default=6)
    ap.add_argument('--A', type=int, default=6)
    ap.add_argument('--roles', default='all')
    ap.add_argument('--diag', action='store_true')
    ap.add_argument('--slow', action='store_true')
    ap.add_argument('--nsteps', type=int, default=None)
    ap.add_argument('--opt', default='')
    args = ap.parse_args()
    opt = {k: int(x) for k, x in (kv.split('=') for kv in args.opt.split(',') if kv)}
    g = Gen(opt=opt, L=args.L, A=args.A, roles=args.roles, diag=args.diag, nsteps=args.nsteps, force_slow=args.slow)
    txt, n = g.build()
    open(args.o, 'w').write(txt)
    print('wrote', args.o, len(txt), 'bytes; nop states inserted:', n)
```

```python
from common import *


class ChainMixin:
    def role_chain(self):
        e = self.A.e
        A = self.A
        L = self.L
        RQ = self.opt['rq']
        e('L_chain:')
        sHH, sP, sTILE, sS = 's64', 's65', 's66', 's67'
        sAGr, sAGw = 's68', 's69'
        sSw, sSa, sSb = 's71', 's73', 's74'
        sOw, sOr, sCw = 's75', 's77', 's78'
        sN1, sN2, sQ1, sQ2, sPF, sPCH = 's82', 's83', 's84', 's85', 's86', 's87'
        mL2, mINV, mT, mU = 's[88:89]', 's[90:91]', 's[92:93]', 's[94:95]'
        sHEAD = 's96'
        sK1, sK2 = 's42', 's43'
        sCR = ['s%d' % i for i in range(48, 55)]
        cAG, cAG4, cSw, cSa, cSb, cOw, cOr, cOr4, cCw, cAGw = 's55', 's56', 's57', 's58', 's59', 's70', 's72', 's76', 's79', 's80'
        sW5, sW6, sQW, sW10 = 's81', 's61', 's62', 's63'
        nAGw, cK1, cK2, rO, rS, rAG, xV0, xV1, xK = 's16', 's17', 's18', 's19', 's20', 's21', 's22', 's23', 's24'
        e(f's_mul_i32 {sHH}, {sSLOT}, 11')
        e(f's_lshr_b32 {sHH}, {sHH}, 5')
        e(f's_mul_i32 s60, {sHH}, 3')
        e(f's_sub_u32 {sP}, {sSLOT}, s60')
        e(f's_lshl_b32 {sTILE}, {sSLOT}, 2')
        e(f's_add_u32 {sTILE}, {sTILE}, {sW}')
        e(f's_lshl_b32 {sHEAD}, {sCLS}, 2')
        e(f's_add_u32 {sHEAD}, {sHEAD}, {sHH}')
        vVM, vL16, vTW, vGA, vGO, vFL, vK, SEL, vV, vKM = 1, 2, 3, 4, 5, 6, 7, 8, 12, 13
        e(f'v_lshlrev_b32 {v(vL16)}, 4, v0')
        e('v_and_b32 v16, 15, v0')
        e('v_lshrrev_b32 v17, 4, v0')
        e('v_lshlrev_b32 v18, 5, v16')
        e(f'v_lshl_add_u32 {v(vTW)}, v17, 3, v18')
        e('v_lshrrev_b32 v19, 1, v17')
        e('v_and_b32 v20, 1, v17')
        e('v_lshl_add_u32 v18, v19, 9, v18')
        e('v_lshl_add_u32 v18, v20, 4, v18')
        e(f's_mul_i32 s60, {sW}, 5120')
        e(f'v_add_u32 {v(vGA)}, s60, v18')
        e(f's_mul_i32 s60, {sW}, 6144')
        e(f'v_add_u32 {v(vGO)}, s60, v18')
        XB_ = self.opt['xb']
        if XB_:
            e(f's_mov_b32 {sAGr}, {AGG}')
        else:
            e(f's_mul_i32 s60, {sCLS}, {AG_C}')
            e(f's_add_u32 {sAGr}, s60, {CH_AG}')
        e(f's_lshl_b32 s61, {sTILE}, 9')
        e(f's_add_u32 {sAGw}, {sAGr}, s61')
        e(f's_mul_i32 s60, {sCLS}, {S_C}')
        e(f's_add_u32 s60, s60, {CH_S}')
        e(f's_lshl_b32 s61, {sW}, 10')
        e('s_add_u32 s60, s60, s61')
        e(f's_mul_i32 s61, {sSLOT}, 3072')
        e(f's_add_u32 {sSw}, s60, s61')
        e(f's_add_u32 s61, {sP}, 1')
        e('s_cmp_eq_u32 s61, 3')
        e('s_cselect_b32 s61, 0, s61')
        e(f's_mul_i32 s62, {sHH}, 3')
        e('s_add_u32 s63, s62, s61')
        e('s_mul_i32 s63, s63, 3072')
        e(f's_add_u32 {sSa}, s60, s63')
        e('s_add_u32 s61, s61, 1')
        e('s_cmp_eq_u32 s61, 3')
        e('s_cselect_b32 s61, 0, s61')
        e('s_add_u32 s63, s62, s61')
        e('s_mul_i32 s63, s63, 3072')
        e(f's_add_u32 {sSb}, s60, s63')
        e(f's_mul_i32 s60, {sCLS}, {O_C}')
        e(f's_add_u32 {sOr}, s60, {CH_O}')
        e(f's_lshl_b32 s61, {sTILE}, 9')
        e(f's_add_u32 {sOw}, {sOr}, s61')
        e(f's_lshl_b32 s60, {sTILE}, 12')
        e(f's_lshl_b32 s61, {sCLS}, 9')
        e('s_add_u32 s60, s60, s61')
        e(f's_add_u32 {sCw}, s60, {CH_CR}')
        e(f's_lshl_b32 s60, {sCLS}, 8')
        e(f's_lshl_b32 s61, {sTILE}, 2')
        e('s_add_u32 s60, s60, s61')
        e(f's_add_u32 {sPCH}, s60, {P_CH}')
        SENT = 24
        for r in range(4):
            e(f'v_mov_b32 v{SENT+r}, -1')
        e('v_mov_b32 v28, 0')
        e('s_mov_b64 exec, 1')
        e(f'buffer_store_dword v28, off, {WS}, {sPCH} sc1')
        e('s_mov_b64 exec, -1')
        for sl in range(2):
            e(f's_add_u32 s60, {sOw}, {sl*O_S}')
            e(f'buffer_store_dwordx2 {v(SENT,2)}, {v(vTW)}, {WS}, s60 offen sc1')
        l3 = A.lab('i3')
        e(f's_cmp_eq_u32 {sW}, 3')
        e(f's_cbranch_scc1 {l3}')
        for sl in range(2):
            e(f's_add_u32 s60, {sSw}, {sl*S_S}')
            e(f'buffer_store_dwordx4 {v(SENT,4)}, {v(vL16)}, {WS}, s60 offen sc1')
        e(f'{l3}:')
        l4 = A.lab('i4')
        e(f's_cmp_ge_u32 {sTILE}, 40')
        e(f's_cbranch_scc1 {l4}')
        for sl in range(2):
            e(f's_add_u32 s60, {sCw}, {sl*CR_S}')
            e(f'buffer_store_dwordx2 {v(SENT,2)}, {v(vTW)}, {WS}, s60 offen sc1')
            e(f's_add_u32 s60, {sAGw}, {(sl+1)*AG_S}')
            e(f'buffer_store_dwordx2 {v(SENT,2)}, {v(vTW)}, {WS}, s60 offen sc1')
        e(f'{l4}:')
        self.arrive()
        self.srd(SRA, 'wq')
        self.srd(SRB, 'wk')
        self.srd(SRC, 'wv')
        self.srd(SRD, 'wo')
        e('v_lshrrev_b32 v21, 3, v0')
        e('v_and_b32 v22, 7, v0')
        e(f's_mul_i32 s60, {sW}, 40')
        e('v_add_u32 v23, s60, v21')
        e('s_mov_b32 s61, 12288')
        e('v_mul_lo_u32 v30, s61, v23')
        e('v_lshl_add_u32 v30, v22, 4, v30')
        e(f's_mul_i32 s60, {sHEAD}, 384')
        e(f's_lshl_b32 s61, {sP}, 7')
        e('s_add_u32 s60, s60, s61')
        e('v_add_u32 v30, s60, v30')

        def unit(cn):
            buf = 102400 * (1 - (cn & 1))
            for m, srd in enumerate((SRA, SRB, SRC)):
                e(f's_mul_i32 s60, {sW}, 5120')
                e(f's_add_u32 m0, s60, {buf + 20480 * m}')
                e(f's_mov_b32 s61, {cn * 160 * 12288}')
                self.dma(5, 'v30', srd, 's61', 8 * 12288)
        unit(0)
        unit(1)
        self.stamp(2, real=True)
        e(f's_min_u32 s61, {sSLOT}, 9')
        e('s_lshl_b32 s61, s61, 7')
        e(f's_mul_i32 s60, {sCLS}, {768*1280}')
        e('s_add_u32 s60, s60, s61')
        e(f's_mul_i32 s61, {sW}, 192')
        e('v_add_u32 v23, s61, v21')
        e('v_mul_u32_u24 v31, 1280, v23')
        e('v_lshl_add_u32 v31, v22, 4, v31')
        e('v_add_u32 v31, s60, v31')
        e('v_bfe_u32 v21, v0, 2, 2')
        e('v_lshl_add_u32 v21, v17, 3, v21')
        e('v_lshlrev_b32 v21, 7, v21')
        e('v_bfe_u32 v22, v0, 1, 1')
        e('v_lshl_add_u32 v33, v22, 5, v21')
        e('v_and_b32 v22, 1, v0')
        e('v_lshl_add_u32 v33, v22, 3, v33')
        e(f's_lshr_b32 s60, {sW}, 1')
        e('s_lshl_b32 s60, s60, 6')
        e(f's_and_b32 s61, {sW}, 1')
        e('s_lshl_b32 s61, s61, 4')
        e('s_add_u32 s60, s60, s61')
        e('v_add_u32 v33, s60, v33')
        e('v_and_b32 v22, 3, v0')
        e('v_lshl_add_u32 v34, v22, 3, v21')
        e(f's_lshl_b32 s60, {sW}, 5')
        e('v_add_u32 v34, s60, v34')
        e('v_add_u32 v32, 102400, v33')
        e('v_add_u32 v35, 102400, v34')

        def Wo(k, n=4, u=0):
            r = 4 * k + 2 * u
            return a(240 + r, n) if r < 16 else v(176 + r - 16, n)

        def take(cn, n_left):
            e(f's_waitcnt vmcnt({n_left})')
            e('s_barrier')
            done = A.lab('tk')
            for w in range(4):
                nx = A.lab('tw')
                if w < 3:
                    e(f's_cmp_lg_u32 {sW}, {w}')
                    e(f's_cbranch_scc1 {nx}')
                gj = (cn - w) & 3
                for m in range(3):
                    ad = (('v33', 'v33', 'v34'), ('v32', 'v32', 'v35'))[1 - (cn & 1)][m]
                    for j in range(5):
                        for u in range(2):
                            e(f'ds_read_b64_tr_b16 {a(80*m + 4*(5*gj+j) + 2*u, 2)}, {ad} offset:{20480*m + j*4096 + u*512}')
                if w < 3:
                    e(f's_branch {done}')
                    e(f'{nx}:')
            e(f'{done}:')
            e('s_waitcnt lgkmcnt(0)')
            e('s_barrier')

        def take_wo(vad, vt):
            for gj in range(4):
                e(f's_add_u32 s60, {sW}, {gj}')
                e('s_and_b32 s60, s60, 3')
                if self.opt['oks']:
                    e('s_lshl_b32 s60, s60, 5')
                    e(f's_mul_i32 s92, {sW}, 24544')
                    e('s_add_u32 s60, s60, s92')
                else:
                    e('s_mul_i32 s60, s60, 24576')
                e('s_add_u32 s60, s60, 61440')
                e(f'v_add_u32 {vt}, s60, {vad}')
                for j in range(6):
                    for u in range(2):
                        e(f'ds_read_b64_tr_b16 {Wo(6*gj+j, 2, u)}, {vt} offset:{j*4096+u*512}')
            e('s_waitcnt lgkmcnt(0)')
        e('v_lshrrev_b32 v21, 3, v16')
        e('v_lshlrev_b32 v21, 4, v21')
        e('v_bfe_u32 v22, v16, 2, 1')
        e('v_lshl_add_u32 v21, v22, 2, v21')
        e('v_and_b32 v22, 3, v16')
        e('v_add_u32 v21, v21, v22')
        e(f's_and_b32 s60, {sW}, 1')
        e('s_lshl_b32 s60, s60, 3')
        e('v_add_u32 v21, s60, v21')
        e('v_lshl_add_u32 v21, v20, 5, v21')
        e('v_lshlrev_b32 v21, 4, v21')
        e('v_lshl_add_u32 v21, v19, 10, v21')
        e(f's_mul_i32 s60, {sHEAD}, {QKV_HEAD}')
        self.clsoff('s60', 's61', QKV_HEAD, self.QL2)
        e(f's_lshl_b32 s61, {sP}, 12')
        e('s_add_u32 s60, s60, s61')
        e('s_add_u32 s61, s60, 12288')
        e(f'v_add_u32 {v(vK)}, s61, v21')
        e(f's_and_b32 s62, {sW}, 1')
        e('s_lshl_b32 s62, s62, 4')
        e('v_add_u32 v21, s62, v16')
        e('v_lshl_add_u32 v22, v20, 5, v21')
        e('v_lshlrev_b32 v22, 4, v22')
        e('v_lshl_add_u32 v22, v19, 10, v22')
        e(f's_lshr_b32 s63, {sW}, 1')
        e('s_lshl_b32 s61, s63, 11')
        e('s_add_u32 s61, s61, s60')
        e('s_add_u32 s61, s61, 24576')
        e(f'v_add_u32 {v(vV)}, s61, v22')
        l2off = self.KL2
        e('v_lshlrev_b32 v21, 3, v21')
        e('v_lshl_add_u32 v21, v20, 8, v21')
        e(f's_mov_b32 s61, {l2off}')
        e('v_mul_lo_u32 v22, s61, v19')
        e('v_add_u32 v21, v21, v22')
        e(f's_mul_i32 s60, {sHEAD}, {KM_HEAD}')
        self.clsoff('s60', 's62', KM_HEAD, self.KL2)
        e(f's_lshl_b32 s62, {sP}, 10')
        e('s_add_u32 s60, s60, s62')
        e(f's_add_u32 s60, s60, {KMVM}')
        e('s_lshl_b32 s62, s63, 9')
        e('s_add_u32 s62, s62, s60')
        e('s_add_u32 s62, s62, 3072')
        e(f'v_add_u32 {v(vVM)}, s62, v21')
        e('v_lshrrev_b32 v21, 3, v16')
        e('v_mul_lo_u32 v21, s61, v21')
        e('v_and_b32 v22, 7, v16')
        e('v_lshl_add_u32 v21, v22, 4, v21')
        e('v_lshl_add_u32 v21, v17, 7, v21')
        e(f'v_add_u32 {v(vKM)}, s60, v21')
        e(f's_mul_i32 s60, {sHH}, 9')
        e(f's_add_u32 s60, s60, {sP}')
        e('s_add_u32 s60, s60, 3')
        e('v_and_b32 v21, 1, v0')
        e('v_mul_u32_u24 v21, 3, v21')
        e('v_add_u32 v21, s60, v21')
        e(f'v_lshlrev_b32 {v(vFL)}, 2, v21')
        e(f's_lshl_b32 s60, {sCLS}, 8')
        e(f's_add_u32 {sPF}, s60, {P_QKV}')
        e('s_mov_b32 s88, 0xff00ff00')
        e('s_mov_b32 s89, 0xff00ff00')
        e('s_mov_b32 s90, 0xff00ff00')
        e('s_mov_b32 s91, 0x00ff00ff')
        e('v_lshrrev_b32 v21, 2, v16')
        e('v_and_b32 v22, 3, v16')
        e('v_cmp_ne_u32 vcc, v21, v17')
        e('v_cndmask_b32 v22, v22, 15, vcc')
        e('v_mov_b32 v21, 0x3f80')
        e('v_mov_b32 v23, 0x3f800000')
        for d in range(2):
            e(f'v_cmp_eq_u32 vcc, {2*d}, v22')
            e(f'v_cndmask_b32 {v(SEL+d)}, 0, v21, vcc')
            e(f'v_cmp_eq_u32 vcc, {2*d+1}, v22')
            e(f'v_cndmask_b32 {v(SEL+d)}, {v(SEL+d)}, v23, vcc')
            e(f'v_mov_b32 {v(SEL+2+d)}, {v(SEL+d)}')
        take(0, 15)
        unit(2)
        self.stamp(3, real=True)
        take(1, 15)
        unit(3)
        self.stamp(4, real=True)
        take(2, 15)
        e(f's_mul_i32 s60, {sW}, 24576')
        e('s_add_u32 m0, s60, 61440')
        e('s_mov_b32 s61, 0')
        self.dma(24, 'v31', SRD, 's61', 8 * 1280)
        self.stamp(5, real=True)
        take(3, 24)
        QA, KA, VA_, VMP = 16, 20, 24, 28
        KX, VX, QF, KF, G, MEM = 32, 48, 56, 64, 72, 96
        ONESQ = G + 20
        QX, KXL, SL, OL = 45056, 47104, 49152, 20480
        e('v_mov_b32 v58, 0')
        e('v_mov_b32 v59, 0')
        self.srd(SRA, 'mem0')
        for i in range(7):
            e(f's_add_u32 s60, {sCLS}, {i+1}')
            e('s_and_b32 s60, s60, 7')
            e('s_lshl_b32 s60, s60, 9')
            e(f's_lshl_b32 {sCR[i]}, {sTILE}, 12')
            e(f's_add_u32 {sCR[i]}, {sCR[i]}, s60')
            e(f's_add_u32 {sCR[i]}, {sCR[i]}, {CH_CR}')
        e(f's_mul_i32 s32, {sTILE}, 52')
        e('s_lshr_b32 s32, s32, 8')
        e(f's_cmp_eq_u32 s32, {sCLS}')
        e('s_cselect_b32 s32, 1, 0')
        for g in range(3):
            e(f's_add_u32 s60, {sW}, {g+1}')
            e('s_and_b32 s60, s60, 3')
            e(f's_mul_i32 s{33+g}, s60, 5120')
            if self.opt['oks']:
                e(f's_mul_i32 s{36+g}, s60, 3072')
                e(f's_add_u32 s{36+g}, s{36+g}, {1024*g}')
            else:
                e(f's_mul_i32 s{36+g}, s60, 6144')
        e(f's_mul_i32 s27, {sCLS}, 12')
        e(f's_add_u32 s27, s27, {sSLOT}')
        e('s_lshl_b32 s27, s27, 10')
        e(f's_add_u32 s27, s27, {SCRATCH}')
        e(f's_mul_i32 {sW5}, {sW}, 5120')
        e(f's_mul_i32 {sW6}, {sW}, {3072 if self.opt["oks"] else 6144}')
        e(f's_lshl_b32 {sW10}, {sW}, 10')
        e(f's_lshr_b32 {sQW}, {sW}, 1')
        e(f's_lshl_b32 {sQW}, {sQW}, 10')
        e(f's_and_b32 s60, {sW}, 1')
        e('s_lshl_b32 s60, s60, 3')
        e(f's_add_u32 {sQW}, {sQW}, s60')
        self.stamp(6, real=True)
        e('v_mov_b32 v255, v34')
        self.wait_init('v21', 'v22', 's92')
        self.stamp(1, real=True)
        self.dbgtime(3)
        self.flush()
        e(f's_mov_b32 {sS}, 0')
        e(f's_mov_b32 {sK1}, 0')
        e(f's_mov_b32 {sK2}, 0')
        e(f's_cmp_eq_u32 {sFAST}, 0')
        e('s_cbranch_scc1 L_ch_init_s')

        def maxtree(dst, first, n):
            e(f'v_max3_u32 {dst}, {v(first)}, {v(first+1)}, {v(first+2)}')
            k = 3
            while k < n:
                if k + 1 < n:
                    e(f'v_max3_u32 {dst}, {dst}, {v(first+k)}, {v(first+k+1)}')
                    k += 2
                else:
                    e(f'v_max_u32 {dst}, {dst}, {v(first+k)}')
                    k += 1

        def maxtree2(d0, d1, first, n):
            h = n // 2
            maxtree(d0, first, h)
            maxtree(d1, first + h, n - h)
            e(f'v_max_u32 {d0}, {d0}, {d1}')

        def flagload():
            e(f'buffer_load_dword v58, {v(vFL)}, {WS}, {sPF} offen sc1')
            e(f'buffer_load_dword v59, {v(vFL)}, {WS}, {sPF} offen offset:2048 sc1')

        def flagtake():
            e(f'v_readlane_b32 {sK1}, v58, 0')
            e('v_readlane_b32 s92, v58, 1')
            e(f'v_readlane_b32 {sK2}, v59, 0')
            e('v_readlane_b32 s93, v59, 1')
            e(f's_min_u32 {sK1}, {sK1}, s92')
            e(f's_min_u32 {sK2}, {sK2}, s93')

        def loop(md):
            X_ = '' if md == 'f' else ' sc1'
            tails = []

            def gather(tag, n, vsrc, s0, s4, vlds, ldsoff, young=None, ny=0, G=G, after=None):
                def ld(i):
                    so, im = (s0, 1024 * i) if i < 4 else (s4, 1024 * (i - 4))
                    e(f'buffer_load_dwordx4 {v(G+4*i,4)}, {v(vsrc)}, {WS}, {so} offen offset:{im} sc1')

                def chk(i):
                    e(f'v_max3_u32 v30, {v(G+4*i)}, {v(G+4*i+1)}, {v(G+4*i+2)}')
                    e(f'v_max_u32 v30, v30, {v(G+4*i+3)}')
                    e('v_cmp_eq_u32 vcc, -1, v30')
                for i in range(n):
                    ld(i)
                if young:
                    young()
                for i in range(n):
                    e(f's_waitcnt vmcnt({n-1-i+ny})')
                    e(f'L_{tag}c{i}_{md}:')
                    chk(i)
                    e(f's_cbranch_vccnz L_{tag}r{i}_{md}')
                    e(f'L_{tag}p{i}_{md}:')
                    if vlds:
                        e(f'ds_write_b128 {vlds}, {v(G+4*i,4)} offset:{ldsoff+1024*i}')
                    if after:
                        after(i)

                def tail():
                    for i in range(n):
                        e(f'L_{tag}r{i}_{md}:')
                        for j in range(i, n):
                            ld(j)
                        if self.opt['lean']:
                            e(f's_waitcnt vmcnt({n-1-i})')
                            e(f'L_{tag}l{i}_{md}:')
                            chk(i)
                            e(f's_cbranch_vccz L_{tag}p{i}_{md}')
                            ld(i)
                            e(f's_sub_u32 {sSPIN}, {sSPIN}, 1')
                            e('s_cbranch_scc1 L_fail')
                            e('s_waitcnt vmcnt(0)')
                            e(f's_branch L_{tag}l{i}_{md}')
                        else:
                            if ny:
                                flagload()
                            e(f's_sub_u32 {sSPIN}, {sSPIN}, 1')
                            e('s_cbranch_scc1 L_fail')
                            e(f's_waitcnt vmcnt({n-1-i+ny})')
                            e(f's_branch L_{tag}c{i}_{md}')
                tails.append(tail)

            def nextkv_steps():
                yield lambda: (e(f's_add_u32 s92, {sS}, 1'), e(f's_and_b32 s60, {sS}, {RQ-1}'))
                yield lambda: (e(f's_mul_i32 {sQ1}, s60, {QKV_SEG}'), e(f's_add_u32 {sQ1}, {sQ1}, {QKV}'))
                yield lambda: (e(f's_cmp_lt_u32 {sS}, 64'), e(f's_cselect_b32 {sN1}, s92, 0'),
                               e(f's_cselect_b32 {sQ1}, {sQ1}, s10'))
                yield lambda: (e(f's_sub_u32 s60, {sS}, {L}'), e(f's_and_b32 s60, s60, {RQ-1}'))
                yield lambda: (e(f's_mul_i32 {sQ2}, s60, {QKV_SEG}'), e(f's_add_u32 {sQ2}, {sQ2}, {QKV + self.QL2}'))
                yield lambda: (e(f's_sub_u32 s92, s92, {L}'), e(f's_cmp_ge_u32 {sS}, {L}'))
                yield lambda: (e(f's_cselect_b32 {sN2}, s92, 0'), e(f's_cselect_b32 {sQ2}, {sQ2}, s10'))
                yield lambda: (e(f's_cmp_ge_u32 {sS}, {64 + L}'), e(f's_cselect_b32 {sN2}, 0, {sN2}'),
                               e(f's_cselect_b32 {sQ2}, s10, {sQ2}'))

            def ready():
                e(f's_cmp_gt_u32 {sN1}, {sK1}')
                e('s_cselect_b32 s30, 1, 0')
                e(f's_cmp_gt_u32 {sN2}, {sK2}')
                e('s_cselect_b32 s30, 1, s30')

            kvl = [f'buffer_load_dwordx4 {v(KX,4)}, {v(vK)}, {WS}, {sQ1} offen sc1',
                   f'buffer_load_dwordx4 {v(KX+4,4)}, {v(vK)}, {WS}, {sQ1} offen offset:2048 sc1',
                   f'buffer_load_dwordx4 {v(KX+8,4)}, {v(vK)}, {WS}, {sQ2} offen sc1',
                   f'buffer_load_dwordx4 {v(KX+12,4)}, {v(vK)}, {WS}, {sQ2} offen offset:2048 sc1',
                   f'buffer_load_dwordx4 {v(VX,4)}, {v(vV)}, {WS}, {sQ1} offen sc1',
                   f'buffer_load_dwordx4 {v(VX+4,4)}, {v(vV)}, {WS}, {sQ2} offen sc1']

            def scalars():
                e(f's_and_b32 s60, {sS}, 3')
                e(f's_mul_i32 s92, {sS if XB_ else "s60"}, {AG_S}')
                e(f's_add_u32 {cAG}, s92, {sAGr}')
                e(f's_add_u32 {cAG4}, {cAG}, 4096')
                e(f's_mul_i32 s92, s60, {S_S}')
                e(f's_add_u32 {cSw}, s92, {sSw}')
                e(f's_add_u32 {cSa}, s92, {sSa}')
                e(f's_add_u32 {cSb}, s92, {sSb}')
                e(f's_mul_i32 s92, s60, {O_S}')
                e(f's_add_u32 {cOw}, s92, {sOw}')
                e(f's_add_u32 {cOr}, s92, {sOr}')
                e(f's_add_u32 {cOr4}, {cOr}, 4096')
                e('s_xor_b32 s60, s60, 2')
                e(f's_mul_i32 s92, s60, {O_S}')
                e(f's_add_u32 {rO}, s92, {sOw}')
                e(f's_mul_i32 s92, s60, {S_S}')
                e(f's_add_u32 {rS}, s92, {sSw}')
                e(f's_cmp_eq_u32 {sW}, 3')
                e(f's_cselect_b32 {rS}, s27, {rS}')
                e(f's_and_b32 s60, {sS}, {self.opt["crring"]-1}')
                e(f's_mul_i32 {cCw}, s60, {CR_S}')
                e(f's_add_u32 s92, {sS}, 1')
                e('s_and_b32 s93, s92, 3')
                e(f's_mul_i32 s94, {"s92" if XB_ else "s93"}, {AG_S}')
                e(f's_add_u32 {nAGw}, s94, {sAGw}')
                e('s_xor_b32 s93, s93, 2')
                e(f's_mul_i32 s94, s93, {AG_S}')
                e(f's_add_u32 {rAG}, s94, {sAGw}')
                e(f's_cmp_lt_u32 {sS}, 64')
                e(f's_cselect_b32 {xV0}, -1, 0')
                e(f's_cselect_b32 {xK}, 0x00ff00ff, 0')
                e(f's_cmp_ge_u32 {sS}, {L}')
                e(f's_cselect_b32 {xV1}, -1, 0')
                e('s_cselect_b32 s92, 0xff00ff00, 0')
                e(f's_or_b32 {xK}, {xK}, s92')
                e(f's_mov_b32 s25, {xK}')
                e(f's_and_b32 s60, {sS}, {RQ-1}')
                e(f's_mul_i32 {cK1}, s60, {KM_SEG}')
                e(f's_sub_u32 s60, {sS}, {L}')
                e(f's_and_b32 s60, s60, {RQ-1}')
                e(f's_mul_i32 {cK2}, s60, {KM_SEG}')
                e(f's_cmp_eq_u32 {sS}, 0')
                e('s_cselect_b32 s26, 1, 0')
                e(f's_cmp_eq_u32 {sS}, {L}')
                e('s_cselect_b32 s26, 1, s26')
                e(f'v_add_u32 v29, {sW5}, {v(vL16)}')

            e(f'L_ch_init_{md}:')
            for x in nextkv_steps():
                x()
            e('s_mov_b32 s30, 1')
            e(f's_mov_b32 s31, {6000 if self.opt["anchor"] else 16}')
            e('s_mov_b32 s28, 0')
            scalars()
            e(f'L_ch_step_{md}:')
            e('s_cmp_lg_u32 s26, 0')
            e(f's_cbranch_scc1 L_ch_sp_{md}')
            if self.opt['agdelay']:
                e(f's_sleep {self.opt["agdelay"]}')

            def qk(k):
                e(f'v_mfma_f32_16x16x32_bf16 {v(QA,4)}, {a(4*k,4)}, {v(MEM+4*k,4)}, {"0" if k==0 else v(QA,4)}')
                e(f'v_mfma_f32_16x16x32_bf16 {v(KA,4)}, {a(80+4*k,4)}, {v(MEM+4*k,4)}, {"0" if k==0 else v(KA,4)}')

            def agyoung():
                flagload()
                for g in range(3):
                    e(f'v_add_u32 {v(G+16+g)}, s{33+g}, {v(vL16)}')
            NPRE = self.opt['npre']
            gather('ag', 5, vGA, cAG, cAG4, 'v29', 0, agyoung, 2, MEM, lambda i: qk(i) if i < NPRE else None)
            e(f'L_ch_ag_{md}:')

            def special():
                e(f'L_ch_sp_{md}:')
                e('v_and_b32 v28, 7, v0')
                e('v_mul_u32_u24 v28, 1280, v28')
                e('v_lshrrev_b32 v30, 4, v0')
                e('v_lshl_add_u32 v28, v30, 4, v28')
                e(f's_mul_i32 s60, {sW}, 320')
                e('v_add_u32 v28, s60, v28')
                for i in range(5):
                    e(f'buffer_load_dwordx4 {v(G+4*i,4)}, v28, {SRA}, 0 offen offset:{64*i}')
                e(f's_mov_b64 {mT}, -1')
                e(f's_cmp_eq_u32 {sS}, 0')
                e(f's_cbranch_scc1 L_ch_sq_{md}')
                e(f's_mov_b64 {mT}, {mL2}')
                e(f'L_ch_sr_{md}:')
                for i in range(5):
                    so, im = (cAG, 1024 * i) if i < 4 else (cAG4, 0)
                    e(f'buffer_load_dwordx4 {v(MEM+4*i,4)}, {v(vGA)}, {WS}, {so} offen offset:{im} sc1')
                e('s_waitcnt vmcnt(0)')
                maxtree2('v28', 'v30', MEM, 20)
                e('v_cmp_eq_u32 vcc, -1, v28')
                e(f's_cbranch_vccz L_ch_sq_{md}')
                self.spin(f'L_ch_sr_{md}')
                e(f'L_ch_sq_{md}:')
                e('s_waitcnt vmcnt(0)')
                for i in range(20):
                    e(f'v_cndmask_b32 {v(MEM+i)}, {v(MEM+i)}, {v(G+i)}, {mT}')
                for i in range(5):
                    e(f'ds_write_b128 v29, {v(MEM+4*i,4)} offset:{1024*i}')
                agyoung()
                for i in range(NPRE):
                    qk(i)
                e(f's_branch L_ch_ag_{md}')
                e(f'L_ch_fl_{md}:')
                flagload()
                e('s_waitcnt vmcnt(0)')
                flagtake()
                ready()
                e('s_cmp_eq_u32 s30, 0')
                e(f's_cbranch_scc1 L_ch_fc_{md}')
                self.spin(f'L_ch_fl_{md}', 2)
            tails.append(special)
            self.stamp(7)
            self.note(11, sSPIN)
            self.flush()
            self.stamp(0)
            self.stamp(15, real=True)
            e('s_waitcnt lgkmcnt(0)')
            e('s_barrier')
            PF = 8

            def mrd(k):
                e(f'ds_read_b128 {v(MEM+4*k,4)}, {v(G + 15 + k//5)} offset:{1024*(k%5)}')
            for k in range(5, 5 + PF):
                mrd(k)
            e(f's_mov_b32 {cAGw}, {nAGw}')
            e('s_waitcnt vmcnt(0)')
            flagtake()
            ready()
            e('s_cmp_lg_u32 s30, 0')
            e(f's_cbranch_scc1 L_ch_fl_{md}')
            e(f'L_ch_fc_{md}:')
            kq = list(kvl)
            for k in range(NPRE, 5):
                qk(k)
                for _ in range(2):
                    if len(kq) > 2:
                        e(kq.pop(0))
            for k in range(5, 20):
                if k + PF < 20:
                    mrd(k + PF)
                e(f's_waitcnt lgkmcnt({min(PF, 19-k)})')
                qk(k)
                if kq and (len(kq) > 2 or k >= self.opt['vat']):
                    e(kq.pop(0))
                if 13 <= k < 17:
                    e(f'v_mov_b32 {v(ONESQ+k-13)}, 0x3f803f80')
                if k == 17:
                    e(f'v_add_u32 v30, {sQW}, {v(vL16)}')
                if k == 18:
                    e(f'v_add_u32 v31, {sW10}, {v(vL16)}')
            vk = [0]

            def vm(n):
                for _ in range(n):
                    k = vk[0]
                    if k < 20:
                        e(f'v_mfma_f32_16x16x32_bf16 {v(VA_,4)}, {v(MEM+4*k,4)}, {a(160+4*k,4)}, {"0" if k==0 else v(VA_,4)}')
                        vk[0] += 1
            vm(1)
            e(f'v_cvt_pk_bf16_f32 {v(G)}, {v(QA)}, {v(QA+1)}')
            e(f'v_cvt_pk_bf16_f32 {v(G+1)}, {v(QA+2)}, {v(QA+3)}')
            e(f'ds_write_b64 v30, {v(G,2)} offset:{QX}')
            e(f'v_cvt_pk_bf16_f32 {v(G+2)}, {v(KA)}, {v(KA+1)}')
            e(f'v_cvt_pk_bf16_f32 {v(G+3)}, {v(KA+2)}, {v(KA+3)}')
            e(f'ds_write_b64 v30, {v(G+2,2)} offset:{KXL}')
            vm(3)
            e('s_waitcnt lgkmcnt(0)')
            e('s_barrier')
            self.stamp(1)
            S4 = G + 4
            e(f'ds_read_b128 {v(QF,4)}, {v(vL16)} offset:{QX}')
            e(f'ds_read_b128 {v(QF+4,4)}, {v(vL16)} offset:{QX+1024}')
            e(f'ds_read_b128 {v(KF,4)}, {v(vL16)} offset:{KXL}')
            e(f'ds_read_b128 {v(KF+4,4)}, {v(vL16)} offset:{KXL+1024}')
            XA_ = G + 12
            def export_addr():
                e(f'v_mov_b32 {v(XA_+3)}, {cK1}')
                e(f'v_mov_b32 {v(XA_+2)}, {cK2}')
                e('s_mov_b32 s92, 0')
                e('s_mov_b32 s93, -1')
                e(f'v_cndmask_b32 {v(XA_)}, {v(XA_+3)}, {v(XA_+2)}, {mL2}')
                e(f'v_cndmask_b32 {v(XA_+1)}, {v(XA_+3)}, {v(XA_+2)}, {mT}')
                e(f'v_add_u32 {v(XA_)}, {v(XA_)}, {v(vKM)}')
                e(f'v_add_u32 {v(XA_+1)}, {v(XA_+1)}, {v(vVM)}')

            def export_v():
                e('s_mov_b64 exec, s[22:23]')
                e(f'buffer_store_dwordx2 {v(VMP,2)}, {v(XA_+1)}, {WS}, 0 offen{X_}')
                e('s_mov_b64 exec, -1')

            def export_k():
                e('s_mov_b64 exec, s[24:25]')
                e(f'buffer_store_dwordx4 {v(KF,4)}, {v(XA_)}, {WS}, 0 offen{X_}')
                e(f'buffer_store_dwordx4 {v(KF+4,4)}, {v(XA_)}, {WS}, 0 offen offset:512{X_}')
                e('s_mov_b64 exec, -1')

            vm(4)
            save = vk[0]
            R0, R1 = MEM + 16, MEM
            lw2, lw3, lwe = A.lab('w2'), A.lab('w3'), A.lab('we')

            def ld2(r):
                e(f'buffer_load_dwordx4 {v(r,4)}, {v(vL16)}, {WS}, {cSa} offen sc1')
                e(f'buffer_load_dwordx4 {v(r+4,4)}, {v(vL16)}, {WS}, {cSb} offen sc1')

            def exchange(mm):
                lsp, lso = A.lab('sp'), A.lab('so')
                e(f'buffer_store_dwordx4 {v(S4,4)}, {v(vL16)}, {WS}, {cSw} offen{X_}')
                self.xstamp(8)
                vm(self.opt['sv1'])
                ld2(R1)
                vm(20)
                if mm:
                    e('v_mov_b32 v28, 0xff800000')
                    for i in range(4):
                        e(f'v_cndmask_b32 {v(S4+4+i)}, {v(S4+i)}, v28, {mINV}')
                own = S4 + 4 if mm else S4
                ld2(R0)
                export_addr()

                def add(r):
                    e(f'v_pk_add_f32 {v(r+8,2)}, {v(r,2)}, {v(r+4,2)}')
                    e(f'v_pk_add_f32 {v(r+10,2)}, {v(r+2,2)}, {v(r+6,2)}')
                    e(f'v_cmp_u_f32 vcc, {v(r+8)}, {v(r+9)}')
                    e(f'v_cmp_u_f32 {mT}, {v(r+10)}, {v(r+11)}')
                    e(f'v_pk_add_f32 {v(QA,2)}, {v(own,2)}, {v(r+8,2)}')
                    e(f'v_pk_add_f32 {v(QA+2,2)}, {v(own+2,2)}, {v(r+10,2)}')
                    e(f's_or_b64 vcc, vcc, {mT}')
                e(f'v_cvt_pk_bf16_f32 {v(VMP)}, {v(VA_)}, {v(VA_+1)}')
                e(f'v_cvt_pk_bf16_f32 {v(VMP+1)}, {v(VA_+2)}, {v(VA_+3)}')
                e('s_waitcnt vmcnt(2)')
                self.xstamp(9)
                add(R1)
                e(f's_cbranch_vccnz {lsp}')
                e(f'{lso}:')
                self.stamp(12)
                self.note(8, sSPIN)
                e(f'ds_write_b128 v31, {v(QA,4)} offset:{SL}')

                def stail():
                    e(f'{lsp}:')
                    for r in (R1, R0):
                        maxtree2('v30', v(KA), r, 8)
                        e('v_cmp_eq_u32 vcc, -1, v30')
                        e(f's_cbranch_vccz {lso}')
                        ld2(r)
                        e('s_waitcnt vmcnt(2)')
                        add(R0 if r == R1 else R1)
                        e(f's_cbranch_vccz {lso}')
                    self.spin(lsp)
                tails.append(stail)
            e(f's_cmp_ge_u32 {sW}, 2')
            e(f's_cbranch_scc1 {lw2}')
            e('s_waitcnt vmcnt(2) lgkmcnt(2)')
            self.xstamp(10)
            e(f'v_mfma_f32_16x16x32_bf16 {v(QA,4)}, {v(KX,4)}, {v(QF,4)}, 0')
            e(f'v_mfma_f32_16x16x32_bf16 {v(KA,4)}, {v(KX+8,4)}, {v(QF,4)}, 0')
            e(f'v_mfma_f32_16x16x32_bf16 {v(QA,4)}, {v(KX+4,4)}, {v(QF+4,4)}, {v(QA,4)}')
            e(f'v_mfma_f32_16x16x32_bf16 {v(KA,4)}, {v(KX+12,4)}, {v(QF+4,4)}, {v(KA,4)}')
            vm(1)
            for i in range(4):
                e(f'v_cndmask_b32 {v(S4+i)}, {v(QA+i)}, {v(KA+i)}, {mL2}')
            exchange(False)
            e(f'{lwe}:')

            def others():
                e(f'{lw2}:')
                e(f's_cmp_eq_u32 {sW}, 3')
                e(f's_cbranch_scc1 {lw3}')
                e('s_waitcnt lgkmcnt(0)')
                e(f'v_mfma_f32_16x16x32_bf16 {v(S4,4)}, {v(KF,4)}, {v(QF,4)}, 0')
                e(f'v_mfma_f32_16x16x32_bf16 {v(S4,4)}, {v(KF+4,4)}, {v(QF+4,4)}, {v(S4,4)}')
                vk[0] = save
                vm(1)
                exchange(True)
                e(f's_branch {lwe}')
                e(f'{lw3}:')
                vk[0] = save
                vm(20)
                export_addr()
                e('s_waitcnt lgkmcnt(0)')
                export_k()
                e(f'v_cvt_pk_bf16_f32 {v(VMP)}, {v(VA_)}, {v(VA_+1)}')
                e(f'v_cvt_pk_bf16_f32 {v(VMP+1)}, {v(VA_+2)}, {v(VA_+3)}')
                e('s_waitcnt vmcnt(2)')
                e(f's_branch {lwe}')
            tails.append(others)
            e(f's_mov_b32 s60, {f2u(SCALE_LOG2E):#x}')
            e('s_waitcnt lgkmcnt(0)')
            e('s_barrier')
            self.stamp(2)
            X = G
            for t in range(3):
                e(f'ds_read_b128 {v(X+4*t,4)}, {v(vL16)} offset:{SL+1024*t}')
            export_v()
            e('s_waitcnt lgkmcnt(1)')
            e(f'v_max3_f32 v30, {v(X)}, {v(X+1)}, {v(X+2)}')
            e(f'v_max3_f32 v31, {v(X+3)}, {v(X+4)}, {v(X+5)}')
            e(f'v_max3_f32 v30, v30, {v(X+6)}, {v(X+7)}')
            e('s_waitcnt lgkmcnt(0)')
            e(f'v_max3_f32 v31, v31, {v(X+8)}, {v(X+9)}')
            e(f'v_max3_f32 v30, v30, {v(X+10)}, {v(X+11)}')
            e('v_max_f32 v30, v30, v31')
            e('v_mov_b32 v31, v30')
            e('v_permlane32_swap_b32 v31, v30')
            e('v_max_f32 v30, v30, v31')
            e('v_mov_b32 v31, v30')
            e('v_permlane16_swap_b32 v31, v30')
            e('v_max_f32 v30, v30, v31')
            e('v_mul_f32 v30, s60, v30')
            order = [8, 9, 10, 11, 0, 1, 2, 3, 4, 5, 6, 7]
            PX, PM = QF, QF + 4
            for i in order[:4]:
                e(f'v_fma_f32 {v(X+i)}, {v(X+i)}, s60, -v30')
            for n, i in enumerate(order):
                e(f'v_exp_f32 {v(X+i)}, {v(X+i)}')
                if n + 4 < 12:
                    j = order[n + 4]
                    e(f'v_fma_f32 {v(X+j)}, {v(X+j)}, s60, -v30')
                if n == 4:
                    e(f'v_cvt_pk_bf16_f32 {v(PM)}, {v(X+8)}, {v(X+9)}')
                    e(f'v_cvt_pk_bf16_f32 {v(PM+1)}, {v(X+10)}, {v(X+11)}')
                if n == 6:
                    e(f'v_mfma_f32_16x16x16_bf16 {v(VA_,4)}, {v(ONESQ,2)}, {v(PM,2)}, 0')
                if n == 7:
                    e(f'v_mfma_f32_16x16x16_bf16 {v(QA,4)}, {v(VMP,2)}, {v(PM,2)}, 0')
                    e(f'v_cvt_pk_bf16_f32 {v(PX)}, {v(X)}, {v(X+1)}')
                if n == 8:
                    e(f'v_mfma_f32_16x16x16_bf16 {v(KA,4)}, {v(VMP,2)}, {v(PM,2)}, 0')
                    e(f'v_cvt_pk_bf16_f32 {v(PX+1)}, {v(X+2)}, {v(X+3)}')
                if n == 10:
                    e(f'v_cvt_pk_bf16_f32 {v(PX+2)}, {v(X+4)}, {v(X+5)}')
            e(f'v_cvt_pk_bf16_f32 {v(PX+3)}, {v(X+6)}, {v(X+7)}')
            e(f'v_mfma_f32_16x16x32_bf16 {v(VA_,4)}, {v(ONESQ,4)}, {v(PX,4)}, {v(VA_,4)}')
            e(f'v_mfma_f32_16x16x32_bf16 {v(QA,4)}, {v(VX,4)}, {v(PX,4)}, {v(QA,4)}')
            e(f'v_mfma_f32_16x16x32_bf16 {v(KA,4)}, {v(VX+4,4)}, {v(PX,4)}, {v(KA,4)}')
            e(f'v_add_u32 v31, {sW6}, {v(vL16)}')
            e(f's_add_u32 {sS}, {sS}, 1')
            e(f'v_rcp_f32 v30, {v(VA_)}')
            for i in range(4):
                e(f'v_cndmask_b32 {v(X+i)}, {v(QA+i)}, {v(KA+i)}, {mL2}')
            for i in range(4):
                e(f'v_mul_f32 {v(X+i)}, {v(X+i)}, v30')
            e(f'v_cvt_pk_bf16_f32 {v(QF+6)}, {v(X)}, {v(X+1)}')
            e(f'v_cvt_pk_bf16_f32 {v(QF+7)}, {v(X+2)}, {v(X+3)}')
            e(f'v_min_u32 {v(QF+6)}, -2, {v(QF+6)}')
            e(f'v_min_u32 {v(QF+7)}, -2, {v(QF+7)}')
            e(f'buffer_store_dwordx2 {v(QF+6,2)}, {v(vTW)}, {WS}, {cOw} offen{X_}')
            self.stamp(3)

            def sig():
                e(f'v_mov_b32 v29, {sS}')
                e('s_mov_b64 exec, 1')
                e(f'buffer_store_dword v29, off, {WS}, {sPCH}{X_}')
                e('s_mov_b64 exec, -1')
            e(f's_cmp_ge_u32 {sSLOT}, 10')
            e(f's_cbranch_scc1 L_ch_noop_{md}')
            e(f's_cmp_eq_u32 {sS}, 1')
            e(f's_cbranch_scc1 L_ch_wo_{md}')
            e(f'L_ch_wp_{md}:')

            def firstwo():
                e(f'L_ch_wo_{md}:')
                e(f'v_mov_b32 {v(MEM+40)}, v255')
                take_wo(v(MEM + 40), v(MEM + 41))
                e(f's_branch L_ch_wp_{md}')
            tails.append(firstwo)
            if self.opt['odelay']:
                e(f's_sleep {self.opt["odelay"]}')

            def op(k):
                b = v(G + 4 * k, 4) if k < 6 else v(MEM + 4 * (k - 6), 4)
                e(f'v_mfma_f32_16x16x32_bf16 {v(QA,4)}, {Wo(k)}, {b}, {"0" if k==0 else v(QA,4)}')

            def ogyoung():
                for g in range(3):
                    e(f'v_add_u32 {v(QF+3+g)}, s{36+g}, {v(vL16)}')
            if self.opt['oks']:
                accs = [QA, KA, VA_, KF]

                def opk(i):
                    for t in (1, 2, 3, 0):
                        e(f'v_mfma_f32_16x16x32_bf16 {v(accs[t],4)}, {Wo(6*t+i)}, {v(G+4*i,4)}, {"0" if i==0 else v(accs[t],4)}')
                gather('og', 6, vGO, cOr, cOr4, None, 0, ogyoung, 0, G, opk)
                self.stamp(13)
                self.note(9, sSPIN)
                e(f'v_add_u32 v28, {cCw}, {v(vTW)}')
                for t in (1, 2, 3):
                    e(f'ds_write_b128 {v(QF+2+t)}, {v(accs[t],4)} offset:{OL}')
                e('s_waitcnt lgkmcnt(0)')
                e('s_barrier')
                self.stamp(4)
                for t in range(3):
                    e(f'ds_read_b128 {v(MEM+4*t,4)}, v31 offset:{OL+1024*t}')
                sig()
                for i in range(4):
                    e(f'v_mov_b32 {v(KA+i)}, -1')
                e('s_waitcnt lgkmcnt(1)')
                for h in range(2):
                    e(f'v_pk_add_f32 {v(MEM+2*h,2)}, {v(MEM+2*h,2)}, {v(MEM+4+2*h,2)}')
                e('s_waitcnt lgkmcnt(0)')
                for h in range(2):
                    e(f'v_pk_add_f32 {v(QA+2*h,2)}, {v(QA+2*h,2)}, {v(MEM+8+2*h,2)}')
                for h in range(2):
                    e(f'v_pk_add_f32 {v(QA+2*h,2)}, {v(QA+2*h,2)}, {v(MEM+2*h,2)}')
            else:
                OPRE = self.opt['opre']
                gather('og', 6, vGO, cOr, cOr4, 'v31', OL, ogyoung, 0, G, lambda i: op(i) if i < OPRE else None)
                self.stamp(13)
                self.note(9, sSPIN)
                e('s_waitcnt lgkmcnt(0)')
                e('s_barrier')
                self.stamp(4)

                def ord_(k):
                    e(f'ds_read_b128 {v(MEM+4*(k-6),4)}, {v(QF + 3 + k//6 - 1)} offset:{OL+1024*(k%6)}')
                for k in range(6, 6 + PF):
                    ord_(k)
                sig()
                for k in range(OPRE, 6):
                    op(k)
                for k in range(6, 24):
                    if k + PF < 24:
                        ord_(k + PF)
                    e(f's_waitcnt lgkmcnt({min(PF, 23-k)})')
                    op(k)
                    if k == 16:
                        e(f'v_add_u32 v28, {cCw}, {v(vTW)}')
                    if 17 <= k < 21:
                        e(f'v_mov_b32 {v(KA+k-17)}, -1')
            C = G
            e(f'v_cvt_pk_bf16_f32 {v(C)}, {v(QA)}, {v(QA+1)}')
            e(f'v_cvt_pk_bf16_f32 {v(C+1)}, {v(QA+2)}, {v(QA+3)}')
            e(f'v_min_u32 {v(C)}, -2, {v(C)}')
            e(f'v_min_u32 {v(C+1)}, -2, {v(C+1)}')
            e(f'buffer_store_dwordx2 {v(C,2)}, v28, {WS}, {sCw} offen sc1')
            self.stamp(5)

            def resets(full):
                e(f'buffer_store_dwordx2 {v(KA,2)}, {v(vTW)}, {WS}, {rO} offen{X_}')
                if full and not XB_:
                    e(f'buffer_store_dwordx2 {v(KA,2)}, {v(vTW)}, {WS}, {rAG} offen{X_}')
                e(f'buffer_store_dwordx4 {v(KA,4)}, {v(vL16)}, {WS}, {rS} offen{X_}')
                if not full:
                    e(f's_add_u32 s92, {sS}, 1')
                    e(f's_and_b32 s92, s92, {self.opt["crring"]-1}')
                    e(f's_mul_i32 s92, s92, {CR_S}')
                    e(f's_sub_u32 s93, {sTILE}, 40')
                    e('s_mul_i32 s93, s93, 20480')
                    e('s_add_u32 s92, s92, s93')
                    e(f's_lshl_b32 s93, {sCLS}, 9')
                    e('s_add_u32 s92, s92, s93')
                    e(f's_add_u32 s92, s92, {CH_CR}')
                    for i in range(5):
                        e(f'buffer_store_dwordx2 {v(KA,2)}, {v(vTW)}, {WS}, s92 offen sc1')
                        if i < 4:
                            e('s_add_u32 s92, s92, 4096')
                    if XB_:
                        lh = A.lab('h5')
                        e(f's_cmp_ge_u32 {sTILE}, 45')
                        e(f's_cbranch_scc1 {lh}')
                        e(f's_add_u32 s92, {sS}, 2')
                        e(f's_mul_i32 s92, s92, {AG_S}')
                        e(f's_mul_i32 s93, {sCLS}, 5')
                        e(f's_add_u32 s93, s93, {sTILE}')
                        e('s_sub_u32 s93, s93, 40')
                        e('s_lshl_b32 s93, s93, 9')
                        e('s_add_u32 s92, s92, s93')
                        e(f's_add_u32 s92, s92, {AGG}')
                        e(f'buffer_store_dwordx2 {v(KA,2)}, {v(vTW)}, {WS}, s92 offen sc1')
                        e(f'{lh}:')
            if self.diag:
                e('s_mov_b32 s100, 0')
            lcp, lco = A.lab('cp'), A.lab('co')
            C2 = MEM

            def cld(b=C):
                for i in range(7):
                    e(f'buffer_load_dwordx2 {v(b+2+2*i,2)}, v28, {WS}, {sCR[i]} offen sc1')

            def csum(extra, b=C):
                for j in range(4):
                    if extra is not None:
                        e(f's_waitcnt vmcnt({6-2*j+extra})')
                    e(f'v_mfma_f32_16x16x32_bf16 {v(QA,4)}, {v(SEL,4)}, {v(b+4*j,4)}, {"0" if j==0 else v(QA,4)}')

            def shadow():
                resets(True)
                for x in nextkv_steps():
                    x()
                scalars()
            if self.opt['dense']:
                if self.opt['cdelay']:
                    e(f's_sleep {self.opt["cdelay"]}')
                cld()
                shadow()
                e(f'v_mov_b32 {v(C2)}, {v(C)}')
                e(f'v_mov_b32 {v(C2+1)}, {v(C+1)}')
                if self.opt['cgap']:
                    e(f's_sleep {self.opt["cgap"]}')
                cld(C2)
                csum(10)
            else:
                shadow()
                if self.opt['cdelay']:
                    e(f's_sleep {self.opt["cdelay"]}')
                cld()
                csum(0)
            self.stamp(14)
            e(f'{lcp}:')
            e(f'v_cmp_u_f32 vcc, {v(QA)}, {v(QA+1)}')
            e(f'v_cvt_pk_bf16_f32 {v(VA_)}, {v(QA)}, {v(QA+1)}')
            e(f'v_cvt_pk_bf16_f32 {v(VA_+1)}, {v(QA+2)}, {v(QA+3)}')
            e(f's_cbranch_vccnz {lcp}x')
            e(f'{lco}:')

            def ctail():
                e(f'{lcp}x:')
                maxtree2(v(VA_ + 2), v(VA_ + 3), C + 2, 14)
                e(f'v_cmp_eq_u32 vcc, -1, {v(VA_+2)}')
                e(f's_cbranch_vccz {lco}')
                if not self.opt['dense']:
                    cld()
                    csum(0)
                    self.spin(lcp)
                    return
                e(f'{lcp}y:')
                for re_, ck_ in ((C, C2), (C2, C)):
                    cld(re_)
                    e('s_waitcnt vmcnt(7)')
                    maxtree2(v(VA_ + 2), v(VA_ + 3), ck_ + 2, 14)
                    e(f'v_cmp_eq_u32 vcc, -1, {v(VA_+2)}')
                    e(f's_cbranch_vccz {lcp}z{ck_}')
                self.spin(f'{lcp}y')
                for b in (C, C2):
                    e(f'{lcp}z{b}:')
                    csum(None, b)
                    e(f'v_cvt_pk_bf16_f32 {v(VA_)}, {v(QA)}, {v(QA+1)}')
                    e(f'v_cvt_pk_bf16_f32 {v(VA_+1)}, {v(QA+2)}, {v(QA+3)}')
                    e(f's_branch {lco}')
            tails.append(ctail)
            self.note(10, sSPIN)
            e(f'v_min_u32 {v(VA_)}, -2, {v(VA_)}')
            e(f'v_min_u32 {v(VA_+1)}, -2, {v(VA_+1)}')
            e(f'buffer_store_dwordx2 {v(VA_,2)}, {v(vTW)}, {WS}, {cAGw} offen{" sc1" if XB_ else X_}')
            self.stamp(6)
            e(f'L_ch_next_{md}:')
            if self.opt['dbgt']:
                for st, wd in ((1, 5), (L + 1, 9), (64, 10)):
                    l = A.lab('dx')
                    e(f's_cmp_lg_u32 {sS}, {st}')
                    e(f's_cbranch_scc1 {l}')
                    self.dbgtime(wd)
                    e(f'{l}:')
            e(f's_cmp_lt_u32 {sS}, {self.nsteps}')
            e(f's_cbranch_scc1 L_ch_step_{md}')
            self.dbgtime(6)
            if self.opt['wb']:
                self.writeback(0)
            e('s_endpgm')
            e(f'L_ch_noop_{md}:')
            for i in range(4):
                e(f'v_mov_b32 {v(KA+i)}, -1')
            for x in nextkv_steps():
                x()
            e('s_waitcnt vmcnt(0)')
            sig()
            resets(False)
            scalars()
            if self.opt['warm']:
                e(f's_sub_u32 s92, {sTILE}, 40')
                e('s_lshr_b32 s93, s92, 1')
                e(f's_lshl_b32 s94, {sCLS}, 2')
                e('s_add_u32 s93, s93, s94')
                e(f's_mul_i32 s93, s93, {QKV_HEAD}')
                self.clsoff('s93', 's94', QKV_HEAD, self.QL2)
                e('s_and_b32 s92, s92, 1')
                e('s_add_u32 s92, s92, 1')
                e('s_mul_i32 s92, s92, 12288')
                e('s_add_u32 s92, s92, s93')
                e(f's_add_u32 s92, s92, {sQ1}')
                for i in range(12):
                    e(f'buffer_load_dwordx4 {v(MEM+4*i,4)}, {v(vL16)}, {WS}, s92 offen offset:{1024*(i%4)} sc1')
                    if i % 4 == 3:
                        e('s_add_u32 s92, s92, 4096')
            e(f's_sleep {self.opt["hdelay"]}')
            e('s_waitcnt vmcnt(0)')
            e(f's_branch L_ch_next_{md}')
            k = 0
            while k < len(tails):
                tails[k]()
                k += 1
        loop('f')
        loop('s')
```

```python
from common import *


class QkvMixin:
    def role_qkv(self):
        e = self.A.e
        A = self.A
        e('L_qkv:')
        e(f's_sub_u32 s64, {sSLOT}, 12')
        e('s_lshl_b32 s64, s64, 2')
        e(f's_add_u32 s64, s64, {sW}')
        e(f's_lshl_b32 s65, {sCLS}, 8')
        e('s_lshl_b32 s66, s64, 2')
        e('s_add_u32 s65, s65, s66')
        e(f's_add_u32 s65, s65, {P_QKV}')
        e('s_add_u32 s66, s65, 2048')
        e('v_mov_b32 v4, 0')
        e('s_mov_b64 exec, 1')
        e(f'buffer_store_dword v4, off, {WS}, s65 sc1')
        e(f'buffer_store_dword v4, off, {WS}, s66 sc1')
        e('s_mov_b64 exec, -1')
        self.arrive()
        e('s_mul_i32 s67, s64, 57')
        e('s_lshr_b32 s67, s67, 9')
        e('s_mul_i32 s68, s67, 9')
        e('s_sub_u32 s68, s64, s68')
        e('s_mul_i32 s69, s68, 11')
        e('s_lshr_b32 s69, s69, 5')
        e('s_mul_i32 s70, s69, 3')
        e('s_sub_u32 s70, s68, s70')
        e(f's_lshl_b32 s71, {sCLS}, 2')
        e('s_add_u32 s71, s71, s67')
        e('s_cmp_eq_u32 s69, 1')
        e(f's_cselect_b32 s44, s{PTR["wk"]}, s{PTR["wq"]}')
        e(f's_cselect_b32 s45, s{PTR["wk"]+1}, s{PTR["wq"]+1}')
        e('s_cmp_eq_u32 s69, 2')
        e(f's_cselect_b32 s44, s{PTR["wv"]}, s44')
        e(f's_cselect_b32 s45, s{PTR["wv"]+1}, s45')
        e('s_and_b32 s45, s45, 0xffff')
        e(f's_mov_b32 s46, {NBYTES["wq"]}')
        e('s_mov_b32 s47, 0x20000')
        e('s_mul_i32 s72, s71, 384')
        e('s_lshl_b32 s73, s70, 7')
        e('s_add_u32 s72, s72, s73')
        e('v_lshrrev_b32 v1, 3, v0')
        e('v_mul_u32_u24 v1, 12288, v1')
        e('v_and_b32 v2, 7, v0')
        e('v_lshl_add_u32 v5, v2, 4, v1')
        e('v_add_u32 v5, s72, v5')
        e(f's_mul_i32 s73, {sW}, 40960')
        self.tr_lane16('v6', 128, False, 's73')

        def W(ct, k, u):
            r = 80 * ct + 4 * k + 2 * u
            return a(r, 2) if r < 256 else v(192 + r - 256, 2)

        def Wf(ct, k):
            r = 80 * ct + 4 * k
            return a(r, 4) if r < 256 else v(192 + r - 256, 4)

        def chunk_dma(q):
            e(f's_add_u32 m0, s73, {(q & 1) * 20480}')
            e(f's_mov_b32 s74, {q * 160 * 12288}')
            self.dma(20, 'v5', SRA, 's74', 8 * 12288)

        chunk_dma(0)
        chunk_dma(1)
        for q in range(4):
            e(f's_waitcnt vmcnt({20 if q < 3 else 0})')
            items = []
            for k in range(5):
                for ct in range(4):
                    for u in range(2):
                        items.append((W(ct, 5 * q + k, u), (q & 1) * 20480 + k * 4096 + u * 512 + ct * 32))
            self.trl(items, 'v6', 'v7')
            e('s_waitcnt lgkmcnt(0)')
            if q < 2:
                chunk_dma(q + 2)
        VD, VR = 8, 10
        self.xn_consts16(VD, VR)
        self.perm_lane('v9')
        e('v_and_b32 v5, 7, v0')
        e('v_lshlrev_b32 v5, 2, v5')
        e(f's_mul_i32 s72, s71, {QKV_HEAD}')
        self.clsoff('s72', 's73', QKV_HEAD, self.QL2)
        e('s_mul_i32 s73, s69, 12288')
        e('s_add_u32 s72, s72, s73')
        e('s_lshl_b32 s73, s70, 12')
        e('s_add_u32 s72, s72, s73')
        e(f's_add_u32 s72, s72, {QKV}')
        self.wait_init('v6', 'v7')
        e('s_barrier')
        self.stamp(1, real=True)
        self.flush()
        RQ = self.opt['rq']
        intra = self.opt['intra']
        assert self.L - RQ <= self.AH <= self.L + RQ or self.L >= 64
        BP = self.on('op') and not self.opt['unsafe']
        e('v_min_u32 v7, 4, v0')
        e('v_lshlrev_b32 v7, 2, v7')
        e(f's_lshl_b32 s82, {sCLS}, 7')
        e(f's_add_u32 s82, s82, {P_OPI}')
        e(f's_mul_i32 s83, {sW}, 10240')
        e(f's_mov_b32 s84, {P_R2}')
        ACC, PK, BR = (16, 48), 80, 96
        sP1, sP2, sO, sX1, sX2, sD, sNR, sNB = 's75', 's76', 's77', 's79', 's81', 's85', 's80', 's86'
        e('v_lshlrev_b32 v6, 2, v0')
        l0, l1 = A.lab('ln'), A.lab('lnok')
        e(f'{l0}:')
        for i in range(8):
            e(f'buffer_load_dword {v(16+i)}, v6, {WS}, 0 offen offset:{P_LN1 + 256*i} sc1')
        e('s_waitcnt vmcnt(0)')
        e('v_min3_u32 v16, v16, v17, v18')
        e('v_min3_u32 v19, v19, v20, v21')
        e('v_min3_u32 v16, v16, v22, v23')
        e('v_min_u32 v16, v16, v19')
        e('v_cmp_eq_u32 vcc, 0, v16')
        e(f's_cbranch_vccz {l1}')
        self.spin(l0, 2)
        e(f'{l1}:')

        def dma_one(i, ssrc, buf):
            if i == 0:
                e(f's_add_u32 m0, s83, {buf}')
            else:
                e('s_add_u32 m0, m0, 896')
            e(f'buffer_load_dwordx4 {v(VD)}, {WS}, {ssrc} offen offset:{i*128} sc1{" nt" if self.opt["xnt"] else ""} lds')

        sE, sOp, sNBp = 's87', 's88', 's89'

        def steps(buf, acc, isV, k0, k1, hooks):
            PF = 2

            def rd(k):
                for th in range(2):
                    e(f'ds_read_b128 {v(BR+8*(k%4)+4*th,4)}, {v(VR+2*th+(k&1))} offset:{buf+(k>>1)*1024}')
            if k0 == 0:
                for k in range(PF):
                    rd(k)
            for k in range(k0, k1):
                if k + PF < 20:
                    rd(k + PF)
                left = 2 * min(PF, 19 - k)
                for th in range(2):
                    e(f's_waitcnt lgkmcnt({left + 1 - th})')
                    b = v(BR + 8 * (k % 4) + 4 * th, 4)
                    for ct in range(4):
                        d = v(acc + 8 * ct + 4 * th, 4)
                        c = '0' if k == 0 else d
                        if isV:
                            e(f'v_mfma_f32_16x16x32_bf16 {d}, {b}, {Wf(ct,k)}, {c}')
                        else:
                            e(f'v_mfma_f32_16x16x32_bf16 {d}, {Wf(ct,k)}, {b}, {c}')
                    for h in hooks.get(2 * k + th, []):
                        h()

        def epi_parts(acc, ly, isV):
            def cv(tl, h):
                al, be = (acc + 16 * tl + 4 * h, acc + 16 * tl + 8 + 4 * h) if isV else (acc + 16 * tl + 8 * h, acc + 16 * tl + 8 * h + 4)
                p = PK + 8 * tl + 4 * h
                e(f'v_cvt_pk_bf16_f32 {v(p)}, {v(al)}, {v(al+1)}')
                e(f'v_cvt_pk_bf16_f32 {v(p+1)}, {v(al+2)}, {v(al+3)}')
                e(f'v_cvt_pk_bf16_f32 {v(p+2)}, {v(be)}, {v(be+1)}')
                e(f'v_cvt_pk_bf16_f32 {v(p+3)}, {v(be+2)}, {v(be+3)}')

            def sw(tl):
                for h in range(2):
                    p = PK + 8 * tl + 4 * h
                    e(f'v_permlane32_swap_b32 {v(p)}, {v(p+2)}')
                    e(f'v_permlane32_swap_b32 {v(p+1)}, {v(p+3)}')

            def st(tl):
                sw(tl)
                if BP and tl == 0:
                    lok = A.lab('bp')
                    e(f'v_cmp_gt_u32 vcc, {sNBp}, v3')
                    e(f's_cbranch_vccz {lok}')
                    self.poll('v3', 'v7', 's82', sNBp, imm=32 * ly)
                    e(f'{lok}:')
                self.st_intra([f'buffer_store_dwordx4 {v(PK+8*tl+4*h,4)}, v9, {WS}, {sOp} offen offset:{tl*2048+h*1024}'
                               for h in range(2)])
            return [lambda: cv(0, 0), lambda: cv(0, 1), lambda: st(0), lambda: cv(1, 0), lambda: cv(1, 1), lambda: st(1)]

        def fine_hooks(acc, ly, isV):
            hk = {}
            for j in range(4):
                tl, h = j >> 1, j & 1
                al, be = (acc + 16 * tl + 4 * h, acc + 16 * tl + 8 + 4 * h) if isV else (acc + 16 * tl + 8 * h, acc + 16 * tl + 8 * h + 4)
                p = PK + 4 * j
                hk.setdefault(3 * j, []).append(lambda al=al, be=be, p=p: (
                    e(f'v_cvt_pk_bf16_f32 {v(p)}, {v(al)}, {v(al+1)}'), e(f'v_cvt_pk_bf16_f32 {v(p+2)}, {v(be)}, {v(be+1)}')))
                hk.setdefault(3 * j + 1, []).append(lambda al=al, be=be, p=p: (
                    e(f'v_cvt_pk_bf16_f32 {v(p+1)}, {v(al+2)}, {v(al+3)}'), e(f'v_cvt_pk_bf16_f32 {v(p+3)}, {v(be+2)}, {v(be+3)}')))
                hk.setdefault(3 * j + 2, []).append(lambda p=p: (
                    e(f'v_permlane32_swap_b32 {v(p)}, {v(p+2)}'), e(f'v_permlane32_swap_b32 {v(p+1)}, {v(p+3)}')))
                hk.setdefault(3 * j + 3, []).insert(0, lambda p=p, j=j: e(
                    f'buffer_store_dwordx4 {v(p,4)}, v9, {WS}, {sOp} offen offset:{1024*j}{"" if intra else " sc1"}'))
            return hk

        def head(buf, acc, isV, pacc, ply, extra):
            l0, l1 = A.lab('h0'), A.lab('h1')
            e(f's_cmp_eq_u32 {sE}, 0')
            e(f's_cbranch_scc1 {l0}')
            if BP:
                lok = A.lab('bp')
                e(f'v_cmp_gt_u32 vcc, {sNBp}, v3')
                e(f's_cbranch_vccz {lok}')
                self.poll('v3', 'v7', 's82', sNBp, imm=32 * ply)
                e(f'{lok}:')
            hk = fine_hooks(pacc, ply, isV)
            for k, fs in extra.items():
                hk.setdefault(k, []).extend(fs)
            steps(buf, acc, isV, 0, KS, hk)
            e(f's_branch {l1}')
            e(f'{l0}:')
            steps(buf, acc, isV, 0, KS, extra)
            e(f'{l1}:')

        def defer_or_flush(acc, ly, isV):
            l = A.lab('df')
            e(f's_mov_b32 {sE}, {sFAST}')
            e(f's_cmp_lg_u32 {sFAST}, 0')
            e(f's_cbranch_scc1 {l}')
            e('s_waitcnt vmcnt(0)')
            for f in epi_parts(acc, ly, isV):
                f()
            e(f'{l}:')

        def dest(ly, sidx):
            e(f's_and_b32 {sOp}, {sidx}, {RQ-1}')
            if ly:
                e(f's_add_u32 {sOp}, {sOp}, {RQ}')
            e(f's_mul_i32 {sOp}, {sOp}, {QKV_SEG}')
            e(f's_add_u32 {sOp}, {sOp}, s72')
            e(f's_sub_u32 {sNBp}, {sidx}, {RQ-1}')
            e(f's_cselect_b32 {sNBp}, 0, {sNBp}')

        def bpld(ly):
            if BP:
                e(f'buffer_load_dword v3, v7, {WS}, s82 offen offset:{32*ly} sc1')

        def guarded(f):
            def h():
                l = A.lab('ne')
                e(f's_cmp_eq_u32 {sE}, 0')
                e(f's_cbranch_scc1 {l}')
                f()
                e(f'{l}:')
            return h

        def sig_after(n, word, val):
            def h():
                e(f's_waitcnt vmcnt({n})')
                self.signal('v4', word, val, intra=intra)
            return h

        def flags_ld():
            e(f'buffer_load_dword v5, v6, {WS}, s84 offen sc1')
        KS = self.opt['qks']

        DS = 1
        assert 2 * (KS + 5) + 10 <= 40

        def body(isV):
            tag = 'v' if isV else 'q'
            e('v_and_b32 v6, 7, v0')
            e('v_lshlrev_b32 v6, 7, v6')
            e(f's_mov_b32 {sP1}, 0')
            e(f's_mov_b32 {sP2}, 0')
            e(f's_mov_b32 {sX1}, {XN1}')
            odd = self.AH & 1
            for i in range(10):
                dma_one(i, sX1, 40960 * odd)
            e('s_waitcnt vmcnt(0)')
            e('s_barrier')
            lp = f'L_qkv_a_{tag}'
            if odd:
                e(f's_branch {lp}1')
            e(f'{lp}:')
            for half in range(2):
                if half:
                    e(f'{lp}1:')
                e(f's_add_u32 {sX1}, {sX1}, {SEGB}')
                dest(0, sP1)
                hk = {i: [lambda i=i: dma_one(i, sX1, 40960 * (1 - half))] for i in range(10)}
                hk[12] = [lambda: bpld(0)]
                steps(40960 * half, ACC[half], isV, 0, 20, hk)
                e('s_waitcnt vmcnt(0)')
                for f in epi_parts(ACC[half], 0, isV):
                    f()
                e(f's_add_u32 {sP1}, {sP1}, 1')
                sig_after(0, 's65', sP1)()
                e('s_barrier')
            e(f's_cmp_lt_u32 {sP1}, {self.AH}')
            e(f's_cbranch_scc1 {lp}')
            lp2, blk, got2, tail2 = f'L_qkv_b_{tag}', A.lab('blk'), A.lab('got2'), A.lab('tail')
            e(f's_mov_b32 {sE}, 0')
            e(f'{lp2}:')
            self.flush()
            e(f's_add_u32 {sNR}, {sP2}, 1')
            e(f's_mul_i32 {sX2}, {sP2}, {SEGB}')
            e(f's_add_u32 {sX2}, {sX2}, {XN2}')
            head(0, ACC[0], isV, ACC[1], 1, {13: [flags_ld]})
            sig_after(0, 's66', sP2)()
            dest(0, sP1)
            bpld(0)
            lA, lB2, lC, lD = A.lab('qa'), A.lab('qb'), A.lab('qc'), A.lab('qd')
            e(f'v_cmp_gt_u32 vcc, {sNR}, v5')
            e(f's_cbranch_vccz {lA}')
            K2 = KS + 5
            steps(0, ACC[0], isV, KS, K2, {2 * KS + 3: [flags_ld]})
            e('s_waitcnt vmcnt(0)')
            e(f'v_cmp_gt_u32 vcc, {sNR}, v5')
            e(f's_cbranch_vccz {lB2}')
            steps(0, ACC[0], isV, K2, 20, {34: [flags_ld]})
            e('s_waitcnt vmcnt(0)')
            e(f's_add_u32 {sP1}, {sP1}, 1')
            e(f's_mov_b32 {sE}, {sFAST}')
            e(f'v_cmp_gt_u32 vcc, {sNR}, v5')
            e(f's_cmp_eq_u32 {sFAST}, 0')
            e(f's_cbranch_scc1 {lD}s')
            e(f's_cbranch_vccz {lD}')
            e(f'{lD}s:')
            for f in epi_parts(ACC[0], 0, isV):
                f()
            flags_ld()
            self.stamp(4, real=True)
            sig_after(0, 's65', sP1)()
            e(f's_mov_b32 {sE}, 0')
            e(f'v_cmp_gt_u32 vcc, {sNR}, v5')
            e(f's_cbranch_vccz {lD}')
            e(f'{blk}:')
            if self.on('r'):
                flags_ld()
                e('s_waitcnt vmcnt(0)')
                e(f'v_cmp_gt_u32 vcc, {sNR}, v5')
                lb = A.lab('bok')
                e(f's_cbranch_vccz {lb}')
                self.spin(blk, self.opt['psleep'])
                e(f'{lb}:')
            e(f'{lD}:')
            self.stamp(0, real=True)
            for i in range(10):
                dma_one(i, sX2, 40960)
            e(f's_branch {got2}')
            e(f'{lB2}:')
            steps(0, ACC[0], isV, K2, 20, {2 * K2 + i: [lambda i=i: dma_one(i, sX2, 40960)] for i in range(10)})
            e(f's_branch {lC}')
            e(f'{lA}:')
            steps(0, ACC[0], isV, KS, 20, {2 * KS + DS * i: [lambda i=i: dma_one(i, sX2, 40960)] for i in range(10)})
            e(f'{lC}:')
            e(f's_add_u32 {sP1}, {sP1}, 1')
            self.stamp(4, real=True)
            defer_or_flush(ACC[0], 0, isV)
            e(f'{got2}:')
            e('s_waitcnt vmcnt(0)')
            e('s_barrier')
            self.stamp(1, real=True)
            self.xstamp(8)
            head(40960, ACC[1], isV, ACC[0], 0, {})
            self.xstamp(9)
            sig_after(0, 's65', sP1)()
            self.xstamp(10)
            dest(1, sP2)
            bpld(1)
            e(f's_add_u32 {sP2}, {sP2}, 1')
            e(f's_cmp_ge_u32 {sP1}, 64')
            e(f's_cbranch_scc1 {tail2}')
            e(f's_add_u32 {sX1}, {sX1}, {SEGB}')
            steps(40960, ACC[1], isV, KS, 20, {2 * KS + DS * i: [lambda i=i: dma_one(i, sX1, 0)] for i in range(10)})
            self.xstamp(11)
            self.stamp(2, real=True)
            defer_or_flush(ACC[1], 1, isV)
            e('s_waitcnt vmcnt(0)')
            e('s_barrier')
            e(f's_branch {lp2}')
            e(f'{tail2}:')
            steps(40960, ACC[1], isV, KS, 20, {})
            e('s_waitcnt vmcnt(0)')
            for f in epi_parts(ACC[1], 1, isV):
                f()
            self.stamp(2, real=True)
            sig_after(0, 's66', sP2)()
            self.stamp(3, real=True)
            e(f's_cmp_ge_u32 {sP2}, 64')
            e('s_cbranch_scc1 L_qkv_fin')
            e('s_barrier')
            self.flush()
            e(f's_mov_b32 {sE}, 0')
            e(f's_add_u32 {sNR}, {sP2}, 1')
            e(f's_mul_i32 {sX2}, {sP2}, {SEGB}')
            e(f's_add_u32 {sX2}, {sX2}, {XN2}')
            e(f's_branch {blk}')

        e('s_branch L_qkv_go')
        e('L_qkv_fin:')
        if self.opt['wb']:
            self.writeback(12)
        e('s_endpgm')
        e('L_qkv_go:')
        e('s_cmp_eq_u32 s69, 2')
        e('s_cbranch_scc1 L_qkv_v')
        body(False)
        e('L_qkv_v:')
        body(True)
```

```python
from common import *


class WorkersMixin:
    def zero_word(self, soff):
        e = self.A.e
        e('v_mov_b32 v4, 0')
        e('s_mov_b64 exec, 1')
        e(f'buffer_store_dword v4, off, {WS}, {soff} sc1')
        e('s_mov_b64 exec, -1')

    def rest_roles(self):
        e = self.A.e
        e(f's_cmp_lt_u32 {sSLOT}, 26')
        e('s_cbranch_scc1 L_op')
        e(f's_cmp_lt_u32 {sSLOT}, 29')
        e('s_cbranch_scc1 L_f')
        table = [0, 1, 4, 8, 2, 5, 6, 9, 3, 7, 10, 11]
        lo = sum(t << (4 * i) for i, t in enumerate(table[:8]))
        hi = sum(t << (4 * i) for i, t in enumerate(table[8:]))
        e(f's_sub_u32 s70, {sSLOT}, 29')
        e('s_lshl_b32 s70, s70, 2')
        e(f's_add_u32 s70, s70, {sW}')
        e('s_lshl_b32 s70, s70, 2')
        e(f's_mov_b32 s72, {lo:#x}')
        e(f's_mov_b32 s73, {hi:#x}')
        e('s_lshr_b64 s[72:73], s[72:73], s70')
        e('s_and_b32 s70, s72, 15')
        e('s_lshr_b32 s71, s70, 2')
        e('s_lshl_b32 s71, s71, 10')
        e(f's_lshl_b32 s72, {sCLS}, 7')
        e('s_add_u32 s71, s71, s72')
        e('s_and_b32 s72, s70, 3')
        e('s_lshl_b32 s72, s72, 2')
        e('s_add_u32 s71, s71, s72')
        e(f's_add_u32 s71, s71, {P_AT}')
        e('s_and_b32 s72, s70, 1')
        e('s_lshl_b32 s72, s72, 11')
        e('s_bfe_u32 s73, s70, 0x10001')
        e('s_lshl_b32 s73, s73, 10')
        e('s_add_u32 s72, s72, s73')
        e(f's_lshl_b32 s73, {sCLS}, 7')
        e('s_add_u32 s72, s72, s73')
        e(f's_add_u32 s72, s72, {P_R1}')
        e('s_cmp_ge_u32 s70, 8')
        e('s_cselect_b32 s71, s72, s71')
        self.zero_word('s71')
        self.arrive()
        self.ln1_items()
        self.wait_init('v6', 'v7')
        e('s_cmp_ge_u32 s70, 8')
        e('s_cbranch_scc1 L_r')
        self.role_attn()
        self.role_r()
        self.role_op()
        self.role_f()

    def role_attn(self):
        e = self.A.e
        A = self.A
        L, RQ = self.L, self.opt['rq']
        if not self.on('attn'):
            e('s_endpgm')
            return
        sLY, sHH, sS, sB, sKB, sFQ, sFC, sT, sN = 's72', 's73', 's74', 's75', 's76', 's77', 's78', 's79', 's80'
        e(f's_lshr_b32 {sLY}, s70, 2')
        e(f's_and_b32 {sHH}, s70, 3')
        e(f's_lshl_b32 s60, {sCLS}, 2')
        e(f's_add_u32 s60, s60, {sHH}')
        e(f's_mul_i32 s81, s60, {QKV_HEAD}')
        self.clsoff('s81', 's61', QKV_HEAD, self.QL2)
        e(f's_mul_i32 s61, {sLY}, {self.QL2}')
        e('s_add_u32 s81, s81, s61')
        e(f's_add_u32 s81, s81, {QKV}')
        e(f's_mul_i32 s82, s60, {KM_HEAD}')
        self.clsoff('s82', 's61', KM_HEAD, self.KL2)
        e(f's_mul_i32 s61, {sLY}, {self.KL2}')
        e('s_add_u32 s82, s82, s61')
        e(f's_add_u32 s82, s82, {KMVM}')
        e(f's_lshl_b32 {sFQ}, {sLY}, 11')
        e(f's_lshl_b32 s61, {sCLS}, 8')
        e(f's_add_u32 {sFQ}, {sFQ}, s61')
        e(f's_mul_i32 s62, {sHH}, 36')
        e(f's_add_u32 {sFQ}, {sFQ}, s62')
        e(f's_add_u32 {sFQ}, {sFQ}, {P_QKV}')
        e(f's_mul_i32 s62, {sHH}, 48')
        e(f's_add_u32 {sFC}, s61, s62')
        e(f's_add_u32 {sFC}, {sFC}, {P_CH}')
        e(f's_mul_i32 s83, {sLY}, {L}')
        vL16, vL8, vKM, vFQ, vFC = 2, 3, 5, 6, 7
        e(f'v_lshlrev_b32 {v(vL16)}, 4, v0')
        e(f'v_lshlrev_b32 {v(vL8)}, 3, v0')
        e('v_and_b32 v8, 7, v0')
        e('v_lshrrev_b32 v9, 5, v0')
        e('v_lshlrev_b32 v8, 4, v8')
        e(f'v_lshl_add_u32 {v(vKM)}, v9, 7, v8')
        e('v_min_u32 v8, 8, v0')
        e(f'v_lshlrev_b32 {v(vFQ)}, 2, v8')
        e('v_min_u32 v8, 11, v0')
        e(f'v_lshlrev_b32 {v(vFC)}, 2, v8')
        BIAS, SX, SM, KMR, VMR, P, OA, PK = 16, 32, 48, 64, 112, 124, 136, 64
        e('v_and_b32 v8, 31, v0')
        e('v_lshlrev_b32 v9, 2, v9')
        e('v_sub_u32 v8, v8, v9')
        e('v_mov_b32 v10, 0xf149f2ca')
        for j in range(4):
            for i in range(4):
                e(f'v_cmp_gt_i32 vcc, {8*j+i}, v8')
                e(f'v_cndmask_b32 {v(BIAS+4*j+i)}, 0, v10, vcc')
        e(f's_mov_b32 s84, {f2u(SCALE_LOG2E):#x}')
        e(f's_mov_b32 {sS}, 0')
        e(f's_mov_b32 {sN}, 1')
        e('L_at_loop:')
        self.poll('v4', v(vFQ), sFQ, sN)
        e('L_at_go:')
        self.flush()
        self.stamp(0, real=True)
        e(f's_and_b32 s60, {sS}, {RQ-1}')
        e(f's_mul_i32 {sB}, s60, {QKV_SEG}')
        e(f's_add_u32 {sB}, {sB}, s81')
        e(f's_mul_i32 {sKB}, s60, {KM_SEG}')
        e(f's_add_u32 {sKB}, {sKB}, s82')
        order = [x for k in range(12) for x in (12 + k, k)] + list(range(24, 36))
        e(f's_add_u32 s85, {sB}, 4096')
        e(f's_add_u32 s86, {sB}, 8192')
        for g in range(3, 9):
            e(f's_add_u32 s{84+g}, {sB}, {4096*g}')
        for n in order:
            so = sB if n < 4 else f's{84 + n // 4}'
            e(f'buffer_load_dwordx4 {a(4*n,4)}, {v(vL16)}, {WS}, {so} offen offset:{1024*(n%4)} sc1')
        for k in range(12):
            e(f's_waitcnt vmcnt({34-2*k})')
            e(f'v_mfma_f32_32x32x16_bf16 {v(SX,16)}, {a(48+4*k,4)}, {a(4*k,4)}, {v(BIAS,16) if k==0 else v(SX,16)}')
        MX, LX = 12, 13
        e(f'v_max3_f32 v8, {v(SX)}, {v(SX+1)}, {v(SX+2)}')
        e(f'v_max3_f32 v9, {v(SX+3)}, {v(SX+4)}, {v(SX+5)}')
        for k in range(6, 14, 4):
            e(f'v_max3_f32 v8, v8, {v(SX+k)}, {v(SX+k+1)}')
            e(f'v_max3_f32 v9, v9, {v(SX+k+2)}, {v(SX+k+3)}')
        e(f'v_max3_f32 v8, v8, {v(SX+14)}, {v(SX+15)}')
        e('v_max_f32 v8, v8, v9')
        e('v_mov_b32 v9, v8')
        e('v_permlane32_swap_b32 v9, v8')
        e('v_max_f32 v8, v8, v9')
        e(f'v_mul_f32 {v(MX)}, s84, v8')
        for i in range(16):
            e(f'v_fma_f32 {v(SX+i)}, {v(SX+i)}, s84, -{v(MX)}')
        for i in range(16):
            e(f'v_exp_f32 {v(SX+i)}, {v(SX+i)}')
        for k in range(8):
            e(f'v_cvt_pk_bf16_f32 {v(P+k)}, {v(SX+2*k)}, {v(SX+2*k+1)}')
        e('s_waitcnt vmcnt(0)')
        for t in range(6):
            o = v(OA + 16 * t, 16)
            e(f'v_mfma_f32_32x32x16_bf16 {o}, {a(96+8*t,4)}, {v(P,4)}, 0')
            e(f'v_mfma_f32_32x32x16_bf16 {o}, {a(100+8*t,4)}, {v(P+4,4)}, {o}')
            if t == 0:
                e(f'v_pk_add_f32 v[8:9], {v(SX,2)}, {v(SX+2,2)}')
                e(f'v_pk_add_f32 v[10:11], {v(SX+4,2)}, {v(SX+6,2)}')
            if t in (1, 2):
                k = 4 + 4 * t
                e(f'v_pk_add_f32 v[8:9], v[8:9], {v(SX+k,2)}')
                e(f'v_pk_add_f32 v[10:11], v[10:11], {v(SX+k+2,2)}')
            if t == 3:
                e('v_pk_add_f32 v[8:9], v[8:9], v[10:11]')
                e(f'v_add_f32 {v(LX)}, v8, v9')
        e(f's_add_u32 {sN}, {sN}, s83')
        self.stamp(1, real=True)
        self.poll('v4', v(vFC), sFC, sN)
        self.stamp(2, real=True)
        if self.opt['at2delay']:
            e(f's_cmp_eq_u32 {sLY}, 0')
            e('s_cbranch_scc1 L_at_nd')
            e(f's_cmp_ge_u32 {sS}, {64 - L}')
            e('s_cbranch_scc1 L_at_nd')
            e(f's_sleep {self.opt["at2delay"]}')
            e('L_at_nd:')
        for k in range(12):
            e(f'buffer_load_dwordx4 {v(KMR+4*k,4)}, {v(vKM)}, {WS}, {sKB} offen offset:{256*k} sc1')
        e(f's_add_u32 {sT}, {sKB}, 3072')
        for t in range(6):
            e(f'buffer_load_dwordx2 {v(VMR+2*t,2)}, {v(vL8)}, {WS}, {sT} offen offset:{512*t} sc1')
        for k in range(12):
            e(f's_waitcnt vmcnt({17-k})')
            e(f'v_mfma_f32_32x32x16_bf16 {v(SM,16)}, {v(KMR+4*k,4)}, {a(4*k,4)}, {"0" if k==0 else v(SM,16)}')
        e(f'v_max3_f32 v8, {v(SM)}, {v(SM+1)}, {v(SM+2)}')
        e(f'v_max_f32 v8, v8, {v(SM+3)}')
        e('v_mov_b32 v9, v8')
        e('v_permlane32_swap_b32 v9, v8')
        e('v_max_f32 v8, v8, v9')
        e('v_mul_f32 v8, s84, v8')
        e(f'v_max_f32 v8, v8, {v(MX)}')
        e(f'v_sub_f32 v10, {v(MX)}, v8')
        for i in range(4):
            e(f'v_fma_f32 {v(SM+i)}, {v(SM+i)}, s84, -v8')
        e('v_exp_f32 v10, v10')
        for i in range(4):
            e(f'v_exp_f32 {v(SM+i)}, {v(SM+i)}')
        e(f'v_add_f32 v8, {v(SM)}, {v(SM+1)}')
        e(f'v_add_f32 v9, {v(SM+2)}, {v(SM+3)}')
        e(f'v_fma_f32 v8, {v(LX)}, v10, v8')
        e('v_add_f32 v8, v8, v9')
        e('v_mov_b32 v9, v8')
        e('v_permlane32_swap_b32 v9, v8')
        e('v_add_f32 v8, v8, v9')
        e('v_rcp_f32 v8, v8')
        e('s_nop 0')
        e('v_mul_f32 v10, v10, v8')
        for i in range(4):
            e(f'v_mul_f32 {v(SM+i)}, {v(SM+i)}, v8')
        e('v_mov_b32 v11, v10')
        e(f'v_cvt_pk_bf16_f32 {v(P+8)}, {v(SM)}, {v(SM+1)}')
        e(f'v_cvt_pk_bf16_f32 {v(P+9)}, {v(SM+2)}, {v(SM+3)}')
        self.stamp(3, real=True)

        def pv(t):
            o = OA + 16 * t
            for k in range(0, 16, 2):
                e(f'v_pk_mul_f32 {v(o+k,2)}, {v(o+k,2)}, v[10:11]')
            if t == 0:
                e('s_waitcnt vmcnt(0)')
            e(f'v_mfma_f32_32x32x8_bf16 {v(o,16)}, {v(VMR+2*t,2)}, {v(P+8,2)}, {v(o,16)}')

        def fin(t):
            o = OA + 16 * t
            pk = PK + 8 * t
            for j in range(8):
                e(f'v_cvt_pk_bf16_f32 {v(pk+j)}, {v(o+2*j)}, {v(o+2*j+1)}')
            if t % 2 == 0:
                e(f's_add_u32 {sT}, {sB}, {2048*t}')
            return [f'buffer_store_dwordx4 {v(pk+4*h,4)}, {v(vL16)}, {WS}, {sT} offen offset:{(t%2)*2048+1024*h}'
                    for h in range(2)]
        for md in ('f', 's'):
            if md == 'f':
                e(f's_cmp_eq_u32 {sFAST}, 0')
                e('s_cbranch_scc1 L_at_os')
            else:
                e('L_at_os:')
            sfx = '' if md == 'f' and self.opt['intra'] else ' sc1'
            pv(0)
            pv(1)
            for t in range(6):
                if t + 2 < 6:
                    pv(t + 2)
                for x in fin(t):
                    e(x + sfx)
            if md == 'f':
                e('s_branch L_at_oe')
        e('L_at_oe:')
        self.stamp(4, real=True)
        e(f'buffer_load_dword v11, {v(vFQ)}, {WS}, {sFQ} offen sc1')
        e(f's_add_u32 {sS}, {sS}, 1')
        e(f's_add_u32 {sN}, {sS}, 1')
        e('s_waitcnt vmcnt(0)')
        self.signal('v4', 's71', sS, intra=self.opt['intra'])
        self.stamp(5, real=True)
        e(f's_cmp_ge_u32 {sS}, 64')
        e('s_cbranch_scc1 L_end')
        e(f'v_cmp_gt_u32 vcc, {sN}, v11')
        e('s_cbranch_vccz L_at_go')
        e('s_branch L_at_loop')

    def role_r(self):
        e = self.A.e
        A = self.A
        e('L_r:')
        if not self.on('r'):
            e('s_endpgm')
            return
        sK, sS, sPB, sPM, sPSt, sFl, sRB, sXB, sNB, sT, sU, sN = ['s%d' % i for i in range(72, 84)]
        e(f's_and_b32 {sK}, s70, 3')

        def pick(dst, vals):
            e(f's_mov_b32 {dst}, {vals[0]}')
            for k in range(1, 4):
                e(f's_cmp_eq_u32 {sK}, {k}')
                e(f's_cselect_b32 {dst}, {vals[k]}, {dst}')
        pick(sPB, [XP1, FP1, XP2, FP2])
        pick(sPM, [self.opt['ring'] - 1, self.opt['ring'] - 1, 63, 63])
        pick(sPSt, [XP_S, FP_S, XP_S, FP_S])
        pick(sFl, [P_OP, P_F, P_OP + 8192, P_F + 2048])
        pick(sRB, [0, XA, XB, XC])
        pick(sXB, [XA, XB, XC, 0])
        pick(sNB, [XNA, XN2, XNC, 0])
        e(f's_mul_i32 s60, {sCLS}, 5120')
        for r in (sPB, sRB, sXB, sNB):
            e(f's_add_u32 {r}, {r}, s60')
        e(f's_cmp_eq_u32 {sK}, 0')
        e(f's_cselect_b32 s48, s{PTR["x"]}, s40')
        e(f's_cselect_b32 s49, s{PTR["x"]+1}, s41')
        e(f's_cselect_b32 s50, {NBYTES["x"]}, s10')
        e('s_and_b32 s49, s49, 0xffff')
        e('s_mov_b32 s51, 0x20000')
        e(f's_cmp_eq_u32 {sK}, 3')
        e(f's_cselect_b32 s52, s{PTR["out"]}, s40')
        e(f's_cselect_b32 s53, s{PTR["out"]+1}, s41')
        e(f's_cselect_b32 s54, {NBYTES["out"]}, s10')
        e('s_and_b32 s53, s53, 0xffff')
        e('s_mov_b32 s55, 0x20000')
        e('v_bfe_u32 v5, v0, 4, 1')
        e('v_lshrrev_b32 v6, 5, v0')
        e('v_mul_u32_u24 v6, 1280, v6')
        e('v_and_b32 v7, 15, v0')
        e('v_lshl_add_u32 v6, v7, 4, v6')
        e('v_lshl_add_u32 v2, v5, 8, v6')
        e('v_mul_u32_u24 v5, 40960, v5')
        e('v_add_u32 v3, v5, v6')
        e(f's_and_b32 s60, {sK}, 1')
        e('s_cmp_eq_u32 s60, 0')
        e('s_cselect_b32 s60, 39, 11')
        e('v_min_u32 v12, s60, v0')
        e('v_lshlrev_b32 v5, 7, v12')
        e('v_cmp_ge_u32 s[84:85], s60, v0')
        e('v_bfe_u32 v12, v0, 3, 1')
        e('v_lshrrev_b32 v13, 5, v0')
        e('v_and_b32 v56, 7, v0')
        e('v_cmp_ne_u32 vcc, v12, v13')
        e('v_cndmask_b32 v56, v56, 15, vcc')
        e('v_mov_b32 v12, 0x3f80')
        e('v_mov_b32 v13, 0x3f800000')
        for d in range(4):
            e(f'v_cmp_eq_u32 vcc, {2*d}, v56')
            e(f'v_cndmask_b32 {v(8+d)}, 0, v12, vcc')
            e(f'v_cmp_eq_u32 vcc, {2*d+1}, v56')
            e(f'v_cndmask_b32 {v(8+d)}, {v(8+d)}, v13, vcc')
        ACC, PB, RES = 16, 60, 220
        e('v_bfe_u32 v1, v0, 4, 1')
        e('v_lshl_add_u32 v1, v1, 3, v6')

        def swaps(base):
            for o in (0, 4):
                e(f'v_permlane16_swap_b32 {v(base+o)}, {v(base+o+2)}')
                e(f'v_permlane16_swap_b32 {v(base+o+1)}, {v(base+o+3)}')

        def rowio(op, base, srd, so, p):
            e(f'buffer_{op}_dwordx4 {v(base,4)}, v2, {srd}, {so} offen offset:{2560*p} sc1')
            e(f'buffer_{op}_dwordx4 {v(base+4,4)}, v2, {srd}, {so} offen offset:{2560*p+512} sc1')
            e(f'buffer_{op}_dwordx2 {v(base+8,2)}, v1, {srd}, {so} offen offset:{2560*p+1024} sc1')

        def loads(p, nj):
            for j in range(nj):
                for cg in range(5):
                    e(f'buffer_load_dwordx4 {v(PB+80*p+20*j+4*cg,4)}, v3, {WS}, s{86+j} offen offset:{p*2560+cg*256} sc1{" nt" if self.opt["rnt"] else ""}')

        def mm(p, nj, left):
            for j in range(nj):
                for cg in range(5):
                    e(f's_waitcnt vmcnt({left + 5*nj - 1 - 5*j - cg})')
                    d = v(ACC + 20 * p + 4 * cg, 4)
                    e(f'v_mfma_f32_16x16x32_bf16 {d}, v[8:11], {v(PB+80*p+20*j+4*cg,4)}, {"0" if j==0 else d}')

        def flags():
            if self.opt['ratom']:
                e('v_mov_b32 v56, -1')
                e('s_mov_b64 exec, s[84:85]')
                e('v_mov_b32 v56, 0')
                e(f'buffer_atomic_add v56, v5, {WS}, {sFl} offen sc0')
                e('s_mov_b64 exec, -1')
            else:
                e(f'buffer_load_dword v56, v5, {WS}, {sFl} offen sc1')

        def check(ok):
            e(f'v_cmp_gt_u32 vcc, {sN}, v56')
            e(f's_cbranch_vccz {ok}')
        e(f's_mov_b32 {sS}, 0')
        e(f's_mov_b32 {sN}, 1')
        e('L_r_poll:')
        flags()
        e('s_waitcnt vmcnt(0)')
        check('L_r_go')
        self.spin('L_r_poll', self.opt['psleep'])
        e('L_r_go:')
        self.flush()
        self.stamp(0, real=True)
        e(f's_and_b32 {sT}, {sS}, {sPM}')
        e(f's_mul_i32 {sT}, {sT}, {sPSt}')
        e(f's_add_u32 {sT}, {sT}, {sPB}')
        e(f's_mul_i32 {sU}, {sS}, {SEGB}')
        e(f's_add_u32 s60, {sU}, {sRB}')
        e(f's_mov_b32 s86, {sT}')
        for j in range(1, 4):
            e(f's_add_u32 s{86+j}, {sT}, {81920*j}')
        e(f's_add_u32 s61, {sU}, {sNB}')
        e(f's_add_u32 s62, {sU}, {sXB}')
        exact = self.opt['exact']

        def post(p, ln):
            T0 = PB
            XPK, NPK, TT = T0 + 4 + 32 * p, T0 + 16 + 32 * p, T0 + 72
            swaps(RES + 10 * p)
            for k in range(10):
                x = ACC + 20 * p + 2 * k
                r = RES + 10 * p + k
                e(f'v_lshlrev_b32 {v(T0)}, 16, {v(r)}')
                e(f'v_and_b32 {v(T0+1)}, 0xffff0000, {v(r)}')
                if exact:
                    e(f'v_cvt_pk_bf16_f32 {v(T0+2)}, {v(x)}, {v(x+1)}')
                    e(f'v_lshlrev_b32 {v(x)}, 16, {v(T0+2)}')
                    e(f'v_and_b32 {v(x+1)}, 0xffff0000, {v(T0+2)}')
                e(f'v_pk_add_f32 {v(x,2)}, {v(x,2)}, {v(T0,2)}')
                e(f'v_cvt_pk_bf16_f32 {v(XPK+k)}, {v(x)}, {v(x+1)}')
            if ln:
                if exact:
                    self.unpack(ACC + 20 * p, XPK, 10)
                self.ln_pair(ACC + 20 * p, NPK, TT)
                swaps(NPK)
                rowio('store', NPK, WS, 's61', p)
            swaps(XPK)
            rowio('store', XPK, SRC, 's62', p)

        for tag, nj, ln in (('a', 4, True), ('b', 2, True), ('c', 2, False)):
            if tag == 'a':
                e(f's_bitcmp1_b32 {sK}, 0')
                e('s_cbranch_scc1 L_r_b')
            elif tag == 'b':
                e('L_r_b:')
                e(f's_cmp_eq_u32 {sK}, 3')
                e('s_cbranch_scc1 L_r_c')
            else:
                e('L_r_c:')
            rowio('load', RES, SRB, 's60', 0)
            loads(0, nj)
            rowio('load', RES + 10, SRB, 's60', 1)
            loads(1, nj)
            mm(0, nj, 3 + 5 * nj)
            self.stamp(1, real=True)
            post(0, ln)
            mm(1, nj, 6 if ln else 3)
            post(1, ln)
            if tag != 'c':
                e('s_branch L_r_end')
        e('L_r_end:')
        self.stamp(2, real=True)
        flags()
        e(f's_add_u32 {sS}, {sS}, 1')
        e(f's_add_u32 {sN}, {sS}, 1')
        e('s_waitcnt vmcnt(0)')
        self.signal('v4', 's71', sS)
        self.stamp(3, real=True)
        self.dbgtime(7)
        e(f's_cmp_ge_u32 {sS}, 64')
        e('s_cbranch_scc1 L_end')
        check('L_r_go')
        e('s_branch L_r_poll')

    def role_op(self):
        e = self.A.e
        A = self.A
        L, RQ = self.L, self.opt['rq']
        e('L_op:')
        sJ, sF0, sF1, sN, sT, sO, sA0 = 's70', 's71', 's72', 's73', 's74', 's75', 's76'
        e(f's_sub_u32 {sJ}, {sSLOT}, 21')
        e(f's_mul_i32 s60, {sCLS}, 5')
        e(f's_add_u32 s60, s60, {sJ}')
        e('s_lshl_b32 s60, s60, 7')
        e(f's_add_u32 {sF0}, s60, {P_OP}')
        e(f's_add_u32 {sF1}, {sF0}, 8192')
        self.zero_word(sF0)
        self.zero_word(sF1)
        e(f's_lshl_b32 s85, {sCLS}, 7')
        e(f's_lshl_b32 s60, {sJ}, 2')
        e('s_add_u32 s85, s85, s60')
        e(f's_add_u32 s85, s85, {P_OPI}')
        e('s_add_u32 s86, s85, 32')
        self.zero_word('s85')
        self.zero_word('s86')
        self.arrive()
        self.ln1_items()
        if not self.on('op'):
            e('s_endpgm')
            return
        if self.opt['hold']:
            self.wait_init('v6', 'v7')
            e(f's_lshl_b32 s60, {sCLS}, 8')
            e(f's_add_u32 s60, s60, {P_QKV}')
            e('v_mov_b32 v6, 12')
            self.poll('v4', 'v6', 's60', 1, sleep=8)
        self.srd(SRA, 'wo')
        e('v_lshrrev_b32 v1, 4, v0')
        e(f's_lshl_b32 s60, {sW}, 6')
        e('v_add_u32 v1, s60, v1')
        e('v_mul_u32_u24 v1, 1280, v1')
        e('v_and_b32 v2, 15, v0')
        e('v_lshl_add_u32 v5, v2, 4, v1')
        e(f's_mul_i32 s60, {sCLS}, {768*1280}')
        e(f's_lshl_b32 s61, {sJ}, 8')
        e('s_add_u32 s60, s60, s61')
        e('v_add_u32 v5, s60, v5')
        e(f's_lshl_b32 s62, {sW}, 6')
        self.tr_lane('v6', 4, 256, 's62')

        def stage(c):
            e(f's_lshl_b32 s60, {sW}, 14')
            e(f's_add_u32 m0, s60, {(c & 1) * 65536}')
            e(f's_mov_b32 s61, {c * 256 * 1280}')
            self.dma(16, 'v5', SRA, 's61', 4 * 1280)

        def take(c, left):
            e(f's_waitcnt vmcnt({left})')
            e('s_barrier')
            self.trl([(a(4 * (16 * c + k) + 2 * u, 2), (c & 1) * 65536 + k * 4096 + u * 2048)
                      for k in range(16) for u in range(2)], 'v6', 'v7')
            e('s_waitcnt lgkmcnt(0)')
            e('s_barrier')
        stage(0)
        stage(1)
        take(0, 16)
        stage(2)
        take(1, 16)
        take(2, 0)
        self.lds_zero([110592, 110596])
        vL16, vW, vR, vG, vF = 8, 9, 10, 12, 5
        e(f'v_lshlrev_b32 {v(vL16)}, 4, v0')
        self.tile_out_consts(vW, vR, vG, 98304)
        e('v_and_b32 v1, 3, v0')
        e(f'v_lshlrev_b32 {v(vF)}, 2, v1')
        e(f's_lshl_b32 s60, {sCLS}, 7')
        e(f's_add_u32 {sA0}, s60, {P_AT}')
        e(f's_lshl_b32 s60, {sCLS}, 2')
        e(f's_add_u32 s60, s60, {sW}')
        e(f's_mul_i32 s77, s60, {QKV_HEAD}')
        self.clsoff('s77', 's61', QKV_HEAD, self.QL2)
        e(f's_add_u32 s77, s77, {QKV}')
        e(f's_mul_i32 s78, {sCLS}, {SEGB}')
        e(f's_lshl_b32 s60, {sJ}, 8')
        e('s_add_u32 s78, s78, s60')
        e(f's_lshl_b32 s60, {sW}, 6')
        e('s_add_u32 s78, s78, s60')
        self.wait_init('v6', 'v7')
        e(f'v_add_u32 v7, 32768, {v(vL16)}')
        e(f's_mul_i32 s81, {sW}, 12288')
        ACC, PK, BR = 16, 32, 64
        sS, sS2, sN2, sT2, sD = 's79', 's80', 's82', 's83', 's84'

        def src(dst, sseg, ly):
            e(f's_and_b32 {dst}, {sseg}, {RQ-1}')
            e(f's_mul_i32 {dst}, {dst}, {QKV_SEG}')
            e(f's_add_u32 {dst}, {dst}, s77')
            if ly:
                e(f's_add_u32 {dst}, {dst}, {self.QL2}')

        def dma_one(i, st, ly):
            if i % 4 == 0:
                e(f's_add_u32 m0, s81, {49152 * ly + 1024 * i}')
                if i:
                    e(f's_add_u32 {st}, {st}, 4096')
                else:
                    e('s_nop 0')
            e(f'buffer_load_dwordx4 {v(vL16)}, {WS}, {st} offen offset:{1024 * (i % 4)} sc1 lds')

        def dma_if(i, val):
            l = A.lab('nd')
            e(f's_cmp_eq_u32 {sD}, {val}')
            e(f's_cbranch_scc0 {l}')
            dma_one(i, sT2, 1)
            e(f'{l}:')

        def dst(sseg, ly):
            if ly == 0:
                e(f's_and_b32 {sO}, {sseg}, {self.opt["ring"]-1}')
                e(f's_mul_i32 {sO}, {sO}, {XP_S}')
                e(f's_add_u32 {sO}, {sO}, {XP1}')
            else:
                e(f's_mul_i32 {sO}, {sseg}, {XP_S}')
                e(f's_add_u32 {sO}, {sO}, {XP2}')
            e(f's_add_u32 {sO}, {sO}, s78')

        def compute(ly, hooks, sdone):
            def rel():
                l = A.lab('rel')
                e(f's_cmp_lg_u32 {sW}, 0')
                e(f's_cbranch_scc1 {l}')
                self.signal('v6', 's86' if ly else 's85', sdone, intra=self.opt['intra'])
                e(f'{l}:')
            hooks.setdefault(1, []).insert(0, rel)
            PF = 6
            buf = 49152 * ly
            x = 0 if ly == 0 else 32768
            ad = v(vL16) if ly == 0 else 'v7'
            for k in range(PF):
                e(f'ds_read_b128 {v(BR+4*(k%8),4)}, {ad} offset:{buf-x+1024*k}')
            for k in range(48):
                if k + PF < 48:
                    e(f'ds_read_b128 {v(BR+4*((k+PF)%8),4)}, {ad} offset:{buf-x+1024*(k+PF)}')
                e(f's_waitcnt lgkmcnt({min(PF, 47-k)})')
                e(f'v_mfma_f32_32x32x16_bf16 {v(ACC,16)}, {a(4*k,4)}, {v(BR+4*(k%8),4)}, {"0" if k==0 else v(ACC,16)}')
                for h in hooks.get(k, []):
                    h()
            self.tile_out(ACC, PK, vW, vR, vG, sO, 0)

        def single(ly, tag, n0, n1):
            e(f's_mov_b32 {sS}, {n0}')
            e(f'L_op_{tag}:')
            self.flush()
            e(f's_add_u32 {sN}, {sS}, 1')
            self.poll('v4', v(vF), sA0, sN, imm=1024 * ly)
            self.stamp(4 * ly, real=True)
            src(sT, sS, ly)
            for i in range(12):
                dma_one(i, sT, ly)
            dst(sS, ly)
            e('s_waitcnt vmcnt(0)')
            e('s_barrier')
            self.stamp(4 * ly + 1, real=True)
            compute(ly, {}, sN)
            self.stamp(4 * ly + 2, real=True)
            e('s_waitcnt vmcnt(0)')
            self.signal_cu('v4', 'v6', 110592 + 4 * ly, sF1 if ly else sF0, sN)
            self.stamp(4 * ly + 3, real=True)
            e('s_barrier')
            e(f's_mov_b32 {sS}, {sN}')
            e(f's_cmp_lt_u32 {sS}, {n1}')
            e(f's_cbranch_scc1 L_op_{tag}')
        single(0, 'a', 0, L)
        e(f's_mov_b32 {sS2}, 0')
        e('L_op_b:')
        self.flush()
        e(f's_add_u32 {sN}, {sS}, 1')
        e(f's_add_u32 {sN2}, {sS2}, 1')
        e(f'buffer_load_dword v4, {v(vF)}, {WS}, {sA0} offen sc1')
        e('s_waitcnt vmcnt(0)')
        e(f's_cmp_eq_u32 {sS2}, 0')
        e('s_cbranch_scc1 L_op_b0')
        self.signal_cu('v6', 'v11', 110596, sF1, sS2)
        e('L_op_b0:')
        self.stamp(7, real=True)
        e(f'v_cmp_gt_u32 vcc, {sN}, v4')
        e('s_cbranch_vccz L_op_b1')
        self.poll('v4', v(vF), sA0, sN)
        e('L_op_b1:')
        self.stamp(0, real=True)
        src(sT, sS, 0)
        for i in range(12):
            dma_one(i, sT, 0)
        e(f'buffer_load_dword v4, {v(vF)}, {WS}, {sA0} offen offset:1024 sc1')
        dst(sS, 0)
        src(sT2, sS2, 1)
        e('s_waitcnt vmcnt(0)')
        e(f'v_cmp_gt_u32 vcc, {sN2}, v4')
        e('s_cmp_eq_u64 vcc, 0')
        e(f's_cselect_b32 {sD}, 1, 0')
        e('s_barrier')
        self.stamp(1, real=True)

        def reld():
            l = A.lab('rl')
            e(f's_cmp_lg_u32 {sD}, 0')
            e(f's_cbranch_scc1 {l}')
            e(f'buffer_load_dword v4, {v(vF)}, {WS}, {sA0} offen offset:1024 sc1')
            e(f'{l}:')

        def ck():
            l = A.lab('ck')
            e(f's_cmp_lg_u32 {sD}, 0')
            e(f's_cbranch_scc1 {l}')
            e('s_waitcnt vmcnt(0)')
            e(f'v_cmp_gt_u32 vcc, {sN2}, v4')
            e(f's_cbranch_vccnz {l}')
            e(f's_mov_b32 {sD}, 2')
            e(f'{l}:')
        if self.opt['oppre']:
            hk = {10: [reld], 22: [ck]}
            for i in range(12):
                hk.setdefault(2 * i, []).append(lambda i=i: dma_if(i, 1))
                hk.setdefault(23 + 2 * i, []).append(lambda i=i: dma_if(i, 2))
            compute(0, hk, sN)
            self.stamp(2, real=True)
            e(f's_cmp_eq_u32 {sD}, 0')
            e('s_cbranch_scc1 L_op_b2')
            e('s_waitcnt vmcnt(2)')
            e('s_branch L_op_b3')
        else:
            compute(0, {30: [reld], 44: [ck]}, sN)
            self.stamp(2, real=True)
            e(f's_cmp_eq_u32 {sD}, 0')
            e('s_cbranch_scc1 L_op_b2')
            for i in range(12):
                dma_one(i, sT2, 1)
            e('s_waitcnt vmcnt(0)')
            self.signal_cu('v6', 'v11', 110592, sF0, sN)
            self.stamp(3, real=True)
            e(f's_mov_b32 {sD}, 0')
            e('s_branch L_op_b3')
        e('L_op_b2:')
        e('s_waitcnt vmcnt(0)')
        self.signal_cu('v6', 'v11', 110592, sF0, sN)
        self.poll('v4', v(vF), sA0, sN2, imm=1024)
        for i in range(12):
            dma_one(i, sT2, 1)
        e('s_waitcnt vmcnt(0)')
        e('L_op_b3:')
        dst(sS2, 1)
        e('s_barrier')
        self.stamp(5, real=True)

        def sig0():
            e(f's_cmp_eq_u32 {sD}, 0')
            e('s_cbranch_scc1 L_op_b4')
            e('s_waitcnt vmcnt(0)')
            self.signal_cu('v6', 'v11', 110592, sF0, sN)
            self.stamp(3, real=True)
            e('L_op_b4:')
        compute(1, {self.opt['opsig']: [sig0]}, sN2)
        self.stamp(6, real=True)
        e(f's_mov_b32 {sS}, {sN}')
        e(f's_mov_b32 {sS2}, {sN2}')
        e(f's_cmp_lt_u32 {sS}, 64')
        e('s_cbranch_scc1 L_op_b')
        e('s_waitcnt vmcnt(0)')
        self.signal_cu('v6', 'v11', 110596, sF1, sS2)
        e('s_barrier')
        single(1, 'c', 64 - L, 64)
        e('s_endpgm')

    def role_f(self):
        e = self.A.e
        A = self.A
        e('L_f:')
        sLY, sI, sFW, sN, sT, sO, sS, sFl, sU, sHw, sHa, sHb, sD = ['s%d' % i for i in range(70, 83)]
        e(f's_lshr_b32 {sLY}, {sCLS}, 2')
        e(f's_sub_u32 {sI}, {sSLOT}, 26')
        e(f's_lshl_b32 {sU}, {sI}, 2')
        e(f's_add_u32 {sU}, {sU}, {sW}')
        e(f's_and_b32 s83, {sCLS}, 3')
        e('s_mul_i32 s60, s83, 384')
        e(f's_lshl_b32 s61, {sI}, 7')
        e('s_add_u32 s60, s60, s61')
        e(f's_lshl_b32 s61, {sLY}, 11')
        e('s_add_u32 s60, s60, s61')
        e(f's_add_u32 {sFW}, s60, {P_F}')
        self.zero_word(sFW)
        e(f's_mul_i32 s60, {sCLS}, {HB_C}')
        e(f's_add_u32 s60, s60, {HB}')
        e(f's_lshl_b32 s61, {sU}, 11')
        e(f's_add_u32 {sHw}, s60, s61')
        e(f's_lshl_b32 s62, {sW}, 11')
        e('s_add_u32 s60, s60, s62')
        for d, dst in ((1, sHa), (2, sHb)):
            e(f's_add_u32 s61, {sI}, {d}')
            e('s_cmp_ge_u32 s61, 3')
            e('s_cselect_b32 s62, 3, 0')
            e('s_sub_u32 s61, s61, s62')
            e('s_lshl_b32 s61, s61, 13')
            e(f's_add_u32 {dst}, s60, s61')
        e('v_lshlrev_b32 v5, 4, v0')
        for r in range(16, 20):
            e(f'v_mov_b32 v{r}, -1')
        for sl in range(2):
            e(f's_add_u32 s60, {sHw}, {sl * HB_S}')
            for h in range(2):
                e(f'buffer_store_dwordx4 v[16:19], v5, {WS}, s60 offen offset:{1024*h} sc1')
        self.arrive()
        self.ln1_items()
        if not self.on('f'):
            e('s_endpgm')
            return
        if self.opt['hold']:
            self.wait_init('v6', 'v7')
            e(f's_lshl_b32 s60, {sCLS}, 8')
            e(f's_add_u32 s60, s60, {P_QKV}')
            e('v_mov_b32 v6, 12')
            self.poll('v4', 'v6', 's60', 1, sleep=8)
        self.srd(SRA, 'w1')
        self.srd(SRB, 'w2')
        e('s_mul_i32 s84, s83, 3')
        e(f's_add_u32 s84, s84, {sI}')
        e('v_lshrrev_b32 v1, 4, v0')
        e(f's_mul_i32 s60, {sW}, 80')
        e('v_add_u32 v1, s60, v1')
        e('v_mul_u32_u24 v1, 3072, v1')
        e('v_and_b32 v2, 15, v0')
        e('v_lshl_add_u32 v5, v2, 4, v1')
        e('s_lshl_b32 s60, s84, 8')
        e('v_add_u32 v5, s60, v5')
        e(f's_lshl_b32 s62, {sW}, 6')
        self.tr_lane('v6', 8, 256, 's62')
        e(f's_lshl_b32 s85, {sU}, 7')
        e(f's_lshl_b32 s60, {sU}, 6')
        e('s_add_u32 s60, s60, 512')
        e(f's_cmp_ge_u32 {sU}, 8')
        e('s_cselect_b32 s85, s60, s85')
        e('s_min_u32 s86, s85, 1152')
        e('v_lshrrev_b32 v1, 3, v0')
        e('v_mul_u32_u24 v1, 1280, v1')
        e('v_and_b32 v2, 7, v0')
        e('v_lshl_add_u32 v8, v2, 4, v1')
        e('v_add_u32 v8, s86, v8')
        e(f's_mul_i32 s87, {sW}, 16384')
        e('s_sub_u32 s60, s85, s86')
        e('s_add_u32 s60, s60, s87')
        self.tr_lane('v9', 4, 128, 's60')

        def W2(t, k, n=4, u=0):
            r = 96 * t + 4 * k + 2 * u
            return a(160 + r, n) if r < 96 else v(160 + r - 96, n)

        def stage(voff, srd, s0, step, buf):
            e(f's_mul_i32 s60, {sW}, 20480')
            e(f's_add_u32 m0, s60, {buf}')
            e(f's_mov_b32 s61, {s0}')
            self.dma(20, voff, srd, 's61', step)

        def take(left, items, vaddr):
            e(f's_waitcnt vmcnt({left})')
            e('s_barrier')
            self.trl(sorted(items, key=lambda x: x[1]), vaddr, 'v7')
            e('s_waitcnt lgkmcnt(0)')
            e('s_barrier')
        w1i = lambda h: [(a(4 * (20 * h + k) + 2 * u, 2), 81920 * h + k * 4096 + u * 1024) for k in range(20) for u in range(2)]
        stage('v5', SRA, 0, 4 * 3072, 0)
        stage('v5', SRA, 320 * 3072, 4 * 3072, 81920)
        take(20, w1i(0), 'v6')
        take(0, w1i(1), 'v6')
        def w2_stage(j):
            e(f's_add_u32 s61, {sI}, {j}')
            e('s_cmp_ge_u32 s61, 3')
            e('s_cselect_b32 s62, 3, 0')
            e('s_sub_u32 s61, s61, s62')
            e('s_mul_i32 s62, s83, 3')
            e('s_add_u32 s61, s61, s62')
            e('s_mul_i32 s61, s61, 163840')
            e(f's_add_u32 m0, s87, {65536 * (j & 1)}')
            self.dma(16, 'v8', SRB, 's61', 8 * 1280)

        def w2_take(j, left):
            e(f's_waitcnt vmcnt({left})')
            self.trl([(W2(t, 8 * j + k, 2, u), 65536 * (j & 1) + (16 * k + 8 * u) * 128 + t * 64)
                      for t in range(2) for k in range(8) for u in range(2)], 'v9', 'v7')
            e('s_waitcnt lgkmcnt(0)')
        w2_stage(0)
        w2_stage(1)
        w2_take(0, 16)
        w2_stage(2)
        w2_take(1, 16)
        w2_take(2, 0)
        e('s_barrier')
        self.lds_zero([86016])
        VD, VR, vL16, vW, vRd, vG, vF, vH = 8, 10, 9, 128, 129, 130, 5, 6
        HXL, TOL = 40960, 65536
        self.xn_consts(VD, VR)
        e(f's_mul_i32 s60, {sW}, 4608')
        e(f's_add_u32 s60, s60, {TOL}')
        e('v_and_b32 v1, 31, v0')
        e('v_mul_u32_u24 v1, 144, v1')
        e('v_lshrrev_b32 v2, 5, v0')
        e('v_lshl_add_u32 v1, v2, 3, v1')
        e(f'v_add_u32 {v(vW)}, s60, v1')
        e('v_lshrrev_b32 v1, 3, v0')
        e('v_and_b32 v2, 7, v0')
        e('v_mul_u32_u24 v3, 144, v1')
        e('v_lshl_add_u32 v3, v2, 4, v3')
        e(f'v_add_u32 {v(vRd)}, s60, v3')
        e('v_mul_u32_u24 v3, 1280, v1')
        e(f'v_lshl_add_u32 {v(vG)}, v2, 4, v3')
        for q in range(1, 4):
            e(f'v_add_u32 {v(vG+q)}, {10240*q}, {v(vG)}')
        e(f's_cmp_ge_u32 {sU}, 8')
        e('s_cselect_b32 s88, 0x0f0f0f0f, -1')
        e('s_mov_b32 s89, s88')
        e(f'v_lshlrev_b32 {v(vL16)}, 4, v0')
        e(f's_lshl_b32 s60, {sW}, 11')
        e(f'v_add_u32 {v(vH)}, s60, {v(vL16)}')
        e('v_and_b32 v1, 7, v0')
        e(f'v_lshlrev_b32 {v(vF)}, 7, v1')
        e(f's_lshl_b32 {sFl}, {sLY}, 10')
        e(f's_add_u32 {sFl}, {sFl}, {P_R1}')
        e(f's_cmp_eq_u32 {sLY}, 0')
        e(f's_mov_b32 s90, {XNC}')
        e(f's_mov_b32 s91, {FP2}')
        e(f's_cselect_b32 s90, {XNA}, s90')
        e(f's_cselect_b32 s91, {FP1}, s91')
        e(f's_cselect_b32 s92, {self.opt["ring"]-1}, 63')
        e(f's_mul_i32 s60, s83, {SEGB}')
        e('s_add_u32 s91, s91, s60')
        e('s_add_u32 s91, s91, s85')
        e(f's_mul_i32 s93, {sW}, 10240')
        self.wait_init('v4', 'v7')
        ACC, PK, BR, GR = (16, 32), 48, 96, 64

        def dma_one(i):
            if i == 0:
                e('s_mov_b32 m0, s93')
                e('s_nop 0')
            else:
                e('s_add_u32 m0, m0, 896')
            e(f'buffer_load_dwordx4 {v(VD)}, {WS}, {sT} offen offset:{i*128} sc1{" nt" if self.opt["xnt"] else ""} lds')

        def dma_if(i):
            l = A.lab('nd')
            e(f's_cmp_eq_u32 {sD}, 1')
            e(f's_cbranch_scc0 {l}')
            dma_one(i)
            e(f'{l}:')
        e(f's_mov_b32 {sS}, 0')
        e(f's_mov_b32 {sN}, 1')
        e(f's_mov_b32 {sT}, s90')
        e('L_f_poll:')
        self.poll('v4', v(vF), sFl, sN)
        e('L_f_dma:')
        self.stamp(0, real=True)
        for i in range(10):
            dma_one(i)
        e('s_waitcnt vmcnt(0)')
        e('L_f_go:')
        e('s_barrier')
        self.stamp(1, real=True)
        e(f's_and_b32 {sO}, {sS}, s92')
        e(f's_mul_i32 {sO}, {sO}, {FP_S}')
        e(f's_add_u32 {sO}, {sO}, s91')
        e(f's_and_b32 s60, {sS}, 3')
        e(f's_mul_i32 s60, s60, {HB_S}')
        e(f's_add_u32 s61, s60, {sHw}')
        e(f's_add_u32 s62, s60, {sHa}')
        e(f's_add_u32 s63, s60, {sHb}')
        PF = 6
        for k in range(PF):
            e(f'ds_read_b128 {v(BR+4*(k%8),4)}, {v(VR+(k&3))} offset:{(k>>2)*1024}')
        for k in range(40):
            if k + PF < 40:
                kk = k + PF
                e(f'ds_read_b128 {v(BR+4*(kk%8),4)}, {v(VR+(kk&3))} offset:{(kk>>2)*1024}')
            e(f's_waitcnt lgkmcnt({min(PF, 39-k)})')
            e(f'v_mfma_f32_32x32x16_bf16 {v(ACC[0],16)}, {a(4*k,4)}, {v(BR+4*(k%8),4)}, {"0" if k==0 else v(ACC[0],16)}')
        for j in range(8):
            e(f'v_cvt_pk_bf16_f32 {v(PK+j)}, {v(ACC[0]+2*j)}, {v(ACC[0]+2*j+1)}')
        for j in range(8):
            e(f'v_pk_max_i16 {v(PK+j)}, {v(PK+j)}, 0')
        e(f'ds_write_b128 {v(vH)}, {v(PK,4)} offset:{HXL}')
        e(f'ds_write_b128 {v(vH)}, {v(PK+4,4)} offset:{HXL+1024}')
        self.st_mode([f'buffer_store_dwordx4 {v(PK+4*h,4)}, {v(vL16)}, {WS}, s61 offen offset:{1024*h}' for h in range(2)])
        e('s_waitcnt lgkmcnt(0)')
        e('s_barrier')
        self.stamp(2, real=True)

        def g2(k0, k1, hooks):
            for k in range(k0, min(k0 + PF, k1)):
                e(f'ds_read_b128 {v(BR+4*(k%8),4)}, {v(vL16)} offset:{HXL+1024*k}')
            for k in range(k0, k1):
                if k + PF < k1:
                    e(f'ds_read_b128 {v(BR+4*((k+PF)%8),4)}, {v(vL16)} offset:{HXL+1024*(k+PF)}')
                e(f's_waitcnt lgkmcnt({min(PF, k1-1-k)})')
                for t in range(2):
                    d = v(ACC[t], 16)
                    e(f'v_mfma_f32_32x32x16_bf16 {d}, {W2(t,k)}, {v(BR+4*(k%8),4)}, {"0" if k==0 else d}')
                for h in hooks.get(k, []):
                    h()

        def hld(i):
            e(f'buffer_load_dwordx4 {v(GR+4*i,4)}, {v(vL16)}, {WS}, {"s62" if i < 2 else "s63"} offen offset:{1024*(i&1)} sc1')
        g2(0, 8, {3: [lambda: [hld(i) for i in range(4)]]})
        for i in range(4):
            e(f'L_f_c{i}:')
            e(f's_waitcnt vmcnt({3-i})')
            e(f'v_max3_u32 v4, {v(GR+4*i)}, {v(GR+4*i+1)}, {v(GR+4*i+2)}')
            e(f'v_max_u32 v4, v4, {v(GR+4*i+3)}')
            e('v_cmp_eq_u32 vcc, -1, v4')
            e(f's_cbranch_vccnz L_f_r{i}')
            e(f'ds_write_b128 {v(vH)}, {v(GR+4*i,4)} offset:{HXL + 8192*(1 + i//2) + 1024*(i&1)}')
        for r in range(4):
            e(f'v_mov_b32 {v(GR+r)}, -1')
        e(f's_add_u32 s60, {sS}, 2')
        e('s_and_b32 s60, s60, 3')
        e(f's_mul_i32 s60, s60, {HB_S}')
        e(f's_add_u32 s60, s60, {sHw}')
        self.st_mode([f'buffer_store_dwordx4 {v(GR,4)}, {v(vL16)}, {WS}, s60 offen offset:{1024*h}' for h in range(2)])
        e(f'buffer_load_dword v4, {v(vF)}, {WS}, {sFl} offen sc1')
        e(f's_add_u32 {sT}, {sT}, {SEGB}')
        e(f's_add_u32 s94, {sN}, 1')
        e('s_waitcnt lgkmcnt(0)')
        e('s_barrier')
        self.stamp(5, real=True)

        def ck():
            e('s_waitcnt vmcnt(0)')
            e('v_cmp_gt_u32 vcc, s94, v4')
            e('s_cmp_eq_u64 vcc, 0')
            e(f's_cselect_b32 {sD}, 1, 0')
        hk = {13: [ck]}
        for i in range(10):
            hk.setdefault(14 + i, []).append(lambda i=i: dma_if(i))
        g2(8, 24, hk)
        for t in range(2):
            for j in range(8):
                e(f'v_cvt_pk_bf16_f32 {v(PK+8*t+j)}, {v(ACC[t]+2*j)}, {v(ACC[t]+2*j+1)}')
            for j in range(4):
                e(f'ds_write_b64 {v(vW)}, {v(PK+8*t+2*j,2)} offset:{64*t+16*j}')
        e('s_waitcnt lgkmcnt(0)')
        for q in range(4):
            e(f'ds_read_b128 {v(GR+4*q,4)}, {v(vRd)} offset:{1152*q}')
        e('s_mov_b64 exec, s[88:89]')
        for q in range(4):
            e(f's_waitcnt lgkmcnt({3-q})')
            e(f'buffer_store_dwordx4 {v(GR+4*q,4)}, {v(vG+q)}, {WS}, {sO} offen sc1')
        e('s_mov_b64 exec, -1')
        self.stamp(3, real=True)
        e(f'buffer_load_dword v4, {v(vF)}, {WS}, {sFl} offen sc1')
        e('s_waitcnt vmcnt(0)')
        self.signal_cu('v7', 'v3', 86016, sFW, sN)
        self.stamp(4, real=True)
        self.flush()
        e(f's_mov_b32 {sS}, {sN}')
        e(f's_mov_b32 {sN}, s94')
        e(f's_cmp_ge_u32 {sS}, 64')
        e('s_cbranch_scc1 L_end')
        e(f's_cmp_eq_u32 {sD}, 1')
        e('s_cbranch_scc1 L_f_go')
        e(f'v_cmp_gt_u32 vcc, {sN}, v4')
        e('s_cbranch_vccz L_f_dma')
        e('s_branch L_f_poll')
        for i in range(4):
            e(f'L_f_r{i}:')
            for j in range(i, 4):
                hld(j)
            self.spin(f'L_f_c{i}')
```

```python
import sys, os
sys.path.insert(0, os.path.dirname(os.path.abspath(__file__)))
from asmlib import Asm

from common import *
from chain import ChainMixin
from qkv import QkvMixin
from workers import WorkersMixin


class Gen(ChainMixin, QkvMixin, WorkersMixin):
    def __init__(self, L=6, A=10, roles='all', diag=False, nsteps=None, force_slow=False, opt=None):
        self.A = Asm()
        self.L = L
        self.AH = A
        self.roles = roles
        self.diag = diag
        self.nsteps = nsteps if nsteps is not None else 64 + L
        self.force_slow = force_slow
        self.opt = dict(cdelay=6, agdelay=2, sdelay=0, odelay=0, hdelay=20, rq=4, intra=1, at2delay=6, exact=0, opsig=20, psleep=1, crring=128, ring=64, ratom=1, earlysig=1, svm=11, sgap=2, lite=0, warm0=0, oks=0, skewx=0, wb=0, dense=1, cgap=0, qks=10, skew=0, oppre=1, lnfast=1, unsafe=0, crnt=0, xnt=0, rnt=1, anchor=0, adn=12, dbgt=0, wnt=0, hold=1, npre=3, opre=4, vat=8, sv1=4, warm=0, xb=0, xwait=14, lean=0, adapt=0, probe=0, fake16=0, keep=0)
        self.opt.update(opt or {})
        self.QL2 = self.opt['rq'] * QKV_SEG
        self.KL2 = self.opt['rq'] * KM_SEG
        self.opt_keep = [i for i in range(16) if self.opt['keep'] >> i & 1]

    def on(self, r):
        return self.roles == 'all' or r in self.roles.split(',')

    def srd(self, dst, name):
        e = self.A.e
        b = int(dst[2:dst.index(':')])
        p = PTR[name]
        e(f's_mov_b32 s{b}, s{p}')
        e(f's_and_b32 s{b+1}, s{p+1}, 0xffff')
        e(f's_mov_b32 s{b+2}, {NBYTES[name]}')
        e(f's_mov_b32 s{b+3}, 0x20000')

    def clsoff(self, dst, tmp, per_head, l2):
        self.A.e(f's_mul_i32 {tmp}, {sCLS}, {2 * l2 - 4 * per_head}')
        self.A.e(f's_add_u32 {dst}, {dst}, {tmp}')

    def spin(self, back, sleep=0):
        e = self.A.e
        if sleep:
            e(f's_sleep {sleep}')
        e(f's_sub_u32 {sSPIN}, {sSPIN}, 1')
        e(f's_cbranch_scc0 {back}')
        e('s_branch L_fail')

    def poll(self, vt, voff, soff, need, sleep=None, imm=0):
        e = self.A.e
        l0, l1 = self.A.lab('poll'), self.A.lab('pok')
        e(f'{l0}:')
        e(f'buffer_load_dword {vt}, {voff}, {WS}, {soff} offen offset:{imm} sc1')
        e('s_waitcnt vmcnt(0)')
        e(f'v_cmp_gt_u32 vcc, {need}, {vt}')
        e(f's_cbranch_vccz {l1}')
        self.spin(l0, self.opt['psleep'] if sleep is None else sleep)
        e(f'{l1}:')

    def st_mode(self, text):
        e = self.A.e
        lines = text if isinstance(text, list) else [text]
        l0, l1 = self.A.lab('sl'), self.A.lab('sd')
        e(f's_cmp_eq_u32 {sFAST}, 0')
        e(f's_cbranch_scc1 {l0}')
        for t in lines:
            e(t)
        e(f's_branch {l1}')
        e(f'{l0}:')
        for t in lines:
            e(t + (' sc1' if t.startswith('buffer_store') else ''))
        e(f'{l1}:')

    def st_intra(self, lines):
        if self.opt['intra']:
            self.st_mode(lines)
        else:
            for t in lines:
                self.A.e(t + ' sc1')

    def signal(self, vt, soff, val, intra=False):
        e = self.A.e
        e(f'v_mov_b32 {vt}, {val}')
        e('s_mov_b64 exec, 1')
        if intra:
            self.st_mode(f'buffer_store_dword {vt}, off, {WS}, {soff}')
        else:
            e(f'buffer_store_dword {vt}, off, {WS}, {soff} sc1')
        e('s_mov_b64 exec, -1')

    def signal_cu(self, vt, vz, ldsaddr, soff, val):
        e = self.A.e
        l = self.A.lab('nl')
        e(f'v_mov_b32 {vt}, 1')
        e(f'v_mov_b32 {vz}, {ldsaddr}')
        e('s_mov_b64 exec, 1')
        e(f'ds_add_rtn_u32 {vt}, {vz}, {vt}')
        e('s_waitcnt lgkmcnt(0)')
        e(f'v_readfirstlane_b32 s60, {vt}')
        e(f'v_mov_b32 {vt}, {val}')
        e('s_and_b32 s60, s60, 3')
        e('s_cmp_lg_u32 s60, 3')
        e(f's_cbranch_scc1 {l}')
        e(f'buffer_store_dword {vt}, off, {WS}, {soff} sc1')
        e(f'{l}:')
        e('s_mov_b64 exec, -1')

    def writeback(self, slot):
        e = self.A.e
        l = self.A.lab('wb')
        e(f's_cmp_lg_u32 {sSLOT}, {slot}')
        e(f's_cbranch_scc1 {l}')
        e(f's_cmp_lg_u32 {sW}, 0')
        e(f's_cbranch_scc1 {l}')
        e('buffer_wbl2 sc1')
        e('s_waitcnt vmcnt(0)')
        e(f'{l}:')

    def lds_zero(self, addrs):
        e = self.A.e
        e('v_mov_b32 v1, 0')
        for ad in addrs:
            e(f'v_mov_b32 v2, {ad}')
            e('ds_write_b32 v2, v1')
        e('s_waitcnt lgkmcnt(0)')
        e('s_barrier')

    def arrive(self):
        e = self.A.e
        l = self.A.lab('arr')
        e('s_waitcnt vmcnt(0)')
        e('s_barrier')
        e(f's_cmp_lg_u32 {sW}, 0')
        e(f's_cbranch_scc1 {l}')
        e('s_and_b32 s60, s2, 7')
        e('s_lshl_b32 s60, s60, 5')
        e('s_add_u32 s60, s60, 16')
        e('v_mov_b32 v1, 1')
        e('s_mov_b64 exec, 1')
        e(f'buffer_atomic_add v1, off, {DBG}, s60')
        e('s_mov_b64 exec, -1')
        e(f'{l}:')

    def wait_init(self, vt, vt2, st='s60', keep=0):
        e = self.A.e
        b = int(st[1:])
        l0, l1 = self.A.lab('wi'), self.A.lab('wid')
        e(f'v_lshlrev_b32 {vt2}, 2, v0')
        e(f'{l0}:')
        e(f'buffer_load_dword {vt}, {vt2}, {DBG}, 0 offen sc1')
        e('s_waitcnt vmcnt(0)')
        e(f'v_cmp_ne_u32 vcc, 32, {vt}')
        e(f's_mov_b32 s{b}, 0x10101010')
        e(f's_mov_b32 s{b+1}, 0x10101010')
        e(f's_and_b64 s[{b+2}:{b+3}], vcc, s[{b}:{b+1}]')
        e(f's_cbranch_scc0 {l1}')
        self.spin(l0, 2)
        e(f'{l1}:')
        e(f's_mov_b32 s{b}, 0x01010101')
        e(f's_mov_b32 s{b+1}, 0x01010101')
        e(f's_and_b64 s[{b+2}:{b+3}], vcc, s[{b}:{b+1}]')
        e(f's_cselect_b32 {sFAST}, 0, 1')
        if self.force_slow:
            e(f's_mov_b32 {sFAST}, 0')

    def trl(self, items, vaddr, vtmp):
        e = self.A.e
        base = None
        for dst, off in items:
            b = (off // 65536) * 65536 if off >= 65536 else 0
            if off - b > 65535:
                raise ValueError
            if b == 0:
                e(f'ds_read_b64_tr_b16 {dst}, {vaddr} offset:{off}')
            else:
                if base != b:
                    e(f'v_add_u32 {vtmp}, {b}, {vaddr}')
                    base = b
                e(f'ds_read_b64_tr_b16 {dst}, {vtmp} offset:{off - b}')

    def dma(self, n, voff, srd, ssoff, sstep, m0step=1024, sc1=False):
        e = self.A.e
        for i in range(n):
            e(f'buffer_load_dwordx4 {voff}, {srd}, {ssoff} offen{" sc1" if sc1 else ""}{" nt" if self.opt["wnt"] and not sc1 else ""} lds')
            if i + 1 < n:
                e(f's_add_u32 m0, m0, {m0step}')
                e(f's_add_u32 {ssoff}, {ssoff}, {sstep}')

    def stamp(self, idx, real=False):
        if not self.diag or (self.opt['lite'] and not real and idx not in self.opt_keep):
            return
        e = self.A.e
        e('s_memrealtime s[98:99]' if real else 's_memtime s[98:99]')
        e('s_waitcnt lgkmcnt(0)')
        e(f'v_writelane_b32 v14, s98, {idx}')

    def xstamp(self, idx):
        if self.diag and self.opt['probe'] == 4:
            e = self.A.e
            e('s_memtime s[98:99]')
            e('s_waitcnt lgkmcnt(0)')
            e(f'v_writelane_b32 v14, s98, {idx}')

    def dbgtime(self, word):
        if not self.opt['dbgt']:
            return
        e = self.A.e
        l = self.A.lab('dt')
        e(f's_cmp_lg_u32 {sCLS}, 0')
        e(f's_cbranch_scc1 {l}')
        e('s_memrealtime s[98:99]')
        e('s_waitcnt lgkmcnt(0)')
        e('s_and_b32 s98, s98, 0xffffff')
        e('v_mov_b32 v15, s98')
        e('s_mov_b64 exec, 1')
        e(f'buffer_atomic_umax v15, off, {DBG}, 0 offset:{4*word}')
        e('s_mov_b64 exec, -1')
        e(f'{l}:')

    def note(self, idx, sreg):
        if self.diag and self.opt['probe'] != 4:
            self.A.e(f'v_writelane_b32 v14, {sreg}, {idx}')

    def flush(self):
        if not self.diag:
            return
        e = self.A.e
        e('v_lshlrev_b32 v15, 2, v0')
        e('s_mov_b64 exec, 0xffff')
        e(f'buffer_store_dword v14, v15, {WS}, s97 offen')
        e('s_mov_b64 exec, -1')
        e('s_add_u32 s97, s97, 64')

    def rowstat(self, val, tmp):
        e = self.A.e
        for r in (8, 4, 2, 1):
            e(f'v_add_f32_dpp {val}, {val}, {val} row_ror:{r} row_mask:0xf bank_mask:0xf')
        e(f'v_mov_b32 {tmp}, {val}')
        e(f'v_permlane16_swap_b32 {tmp}, {val}')
        e(f'v_add_f32 {val}, {val}, {tmp}')

    def bfround(self, r, ):
        e = self.A.e
        e(f'v_cvt_pk_bf16_f32 {r}, {r}, {r}')
        e(f'v_and_b32 {r}, 0xffff0000, {r}')

    def ln_pair(self, X, OUT, T):
        e = self.A.e
        t0, t2, t4 = T, T + 2, T + 4
        if self.opt['lnfast']:
            return self.ln_pair2(X, OUT, T)
        e(f'v_pk_add_f32 {v(t0,2)}, {v(X,2)}, {v(X+2,2)}')
        e(f'v_pk_add_f32 {v(t2,2)}, {v(X+4,2)}, {v(X+6,2)}')
        for k in range(8, 20, 4):
            e(f'v_pk_add_f32 {v(t0,2)}, {v(t0,2)}, {v(X+k,2)}')
            e(f'v_pk_add_f32 {v(t2,2)}, {v(t2,2)}, {v(X+k+2,2)}')
        e(f'v_pk_add_f32 {v(t0,2)}, {v(t0,2)}, {v(t2,2)}')
        e(f'v_add_f32 {v(t0)}, {v(t0)}, {v(t0+1)}')
        self.rowstat(v(t0), v(t0 + 1))
        e(f'v_mul_f32 {v(t0)}, {f2u(-1.0/640):#x}, {v(t0)}')
        e(f'v_mov_b32 {v(t0+1)}, {v(t0)}')
        e(f'v_pk_add_f32 {v(t4,2)}, {v(X,2)}, {v(t0,2)}')
        e(f'v_pk_mul_f32 {v(t2,2)}, {v(t4,2)}, {v(t4,2)}')
        for k in range(2, 20, 2):
            e(f'v_pk_add_f32 {v(t4,2)}, {v(X+k,2)}, {v(t0,2)}')
            e(f'v_pk_fma_f32 {v(t2,2)}, {v(t4,2)}, {v(t4,2)}, {v(t2,2)}')
        e(f'v_add_f32 {v(t2)}, {v(t2)}, {v(t2+1)}')
        self.rowstat(v(t2), v(t2 + 1))
        e(f'v_mul_f32 {v(t2)}, {f2u(1.0/640):#x}, {v(t2)}')
        self.bfround(v(t2))
        e(f'v_add_f32 {v(t2)}, {f2u(1e-5):#x}, {v(t2)}')
        self.bfround(v(t2))
        e(f'v_sqrt_f32 {v(t2)}, {v(t2)}')
        self.bfround(v(t2))
        e(f'v_rcp_f32 {v(t2)}, {v(t2)}')
        self.bfround(v(t0))
        e(f'v_mov_b32 {v(t0+1)}, {v(t0)}')
        e(f'v_mov_b32 {v(t2+1)}, {v(t2)}')
        outs = OUT if isinstance(OUT, list) else list(range(OUT, OUT + 10))
        for k in range(0, 20, 2):
            e(f'v_pk_add_f32 {v(X+k,2)}, {v(X+k,2)}, {v(t0,2)}')
        if self.opt['exact']:
            for k in range(0, 20, 2):
                e(f'v_cvt_pk_bf16_f32 {v(X+k+1)}, {v(X+k)}, {v(X+k+1)}')
            for k in range(0, 20, 2):
                e(f'v_lshlrev_b32 {v(X+k)}, 16, {v(X+k+1)}')
                e(f'v_and_b32 {v(X+k+1)}, 0xffff0000, {v(X+k+1)}')
        for k in range(0, 20, 2):
            e(f'v_pk_mul_f32 {v(X+k,2)}, {v(X+k,2)}, {v(t2,2)}')
        for k in range(0, 20, 2):
            e(f'v_cvt_pk_bf16_f32 {v(outs[k//2])}, {v(X+k)}, {v(X+k+1)}')

    def ln_pair2(self, X, OUT, T):
        e = self.A.e
        t0, t2, t4 = T, T + 2, T + 4
        e(f'v_pk_add_f32 {v(t0,2)}, {v(X,2)}, {v(X+2,2)}')
        e(f'v_pk_add_f32 {v(t2,2)}, {v(X+4,2)}, {v(X+6,2)}')
        for k in range(8, 20, 4):
            e(f'v_pk_add_f32 {v(t0,2)}, {v(t0,2)}, {v(X+k,2)}')
            e(f'v_pk_add_f32 {v(t2,2)}, {v(t2,2)}, {v(X+k+2,2)}')
        e(f'v_pk_add_f32 {v(t0,2)}, {v(t0,2)}, {v(t2,2)}')
        e(f'v_add_f32 {v(t0)}, {v(t0)}, {v(t0+1)}')
        e(f'v_mul_f32 {v(t0)}, {f2u(-1.0/20):#x}, {v(t0)}')
        e(f'v_mov_b32 {v(t0+1)}, {v(t0)}')
        e(f'v_mov_b32 {v(T+6)}, {v(t0)}')
        rot = [8, 4, 2, 1]
        e(f'v_pk_add_f32 {v(t4,2)}, {v(X,2)}, {v(t0,2)}')
        e(f'v_pk_mul_f32 {v(t2,2)}, {v(t4,2)}, {v(t4,2)}')
        for n, k in enumerate(range(2, 20, 2)):
            e(f'v_pk_add_f32 {v(t4,2)}, {v(X+k,2)}, {v(t0,2)}')
            if n < 4:
                e(f'v_add_f32_dpp {v(T+6)}, {v(T+6)}, {v(T+6)} row_ror:{rot[n]} row_mask:0xf bank_mask:0xf')
            if n == 5:
                e(f'v_mov_b32 {v(T+7)}, {v(T+6)}')
            if n == 7:
                e(f'v_permlane16_swap_b32 {v(T+7)}, {v(T+6)}')
            e(f'v_pk_fma_f32 {v(t2,2)}, {v(t4,2)}, {v(t4,2)}, {v(t2,2)}')
        e(f'v_add_f32 {v(T+6)}, {v(T+6)}, {v(T+7)}')
        e(f'v_add_f32 {v(t2)}, {v(t2)}, {v(t2+1)}')
        e(f'v_mul_f32 {v(T+6)}, {f2u(1.0/32):#x}, {v(T+6)}')
        e(f'v_sub_f32 {v(t4)}, {v(t0)}, {v(T+6)}')
        e(f'v_mul_f32 {v(t4+1)}, {f2u(20.0):#x}, {v(t4)}')
        e(f'v_fmac_f32 {v(t2)}, {v(t4)}, {v(t4+1)}')
        e(f'v_cvt_pk_bf16_f32 {v(t0)}, {v(T+6)}, {v(T+6)}')
        e(f'v_and_b32 {v(t0)}, 0xffff0000, {v(t0)}')
        e(f'v_mov_b32 {v(t0+1)}, {v(t0)}')
        subs = list(range(0, 20, 2))
        for r in rot:
            e(f'v_add_f32_dpp {v(t2)}, {v(t2)}, {v(t2)} row_ror:{r} row_mask:0xf bank_mask:0xf')
            for _ in range(2):
                k = subs.pop(0)
                e(f'v_pk_add_f32 {v(X+k,2)}, {v(X+k,2)}, {v(t0,2)}')
        e(f'v_mov_b32 {v(t2+1)}, {v(t2)}')
        for k in subs:
            e(f'v_pk_add_f32 {v(X+k,2)}, {v(X+k,2)}, {v(t0,2)}')
        e(f'v_permlane16_swap_b32 {v(t2+1)}, {v(t2)}')
        e(f'v_add_f32 {v(t2)}, {v(t2)}, {v(t2+1)}')
        e(f'v_mul_f32 {v(t2)}, {f2u(1.0/640):#x}, {v(t2)}')
        self.bfround(v(t2))
        e(f'v_add_f32 {v(t2)}, {f2u(1e-5):#x}, {v(t2)}')
        self.bfround(v(t2))
        e(f'v_sqrt_f32 {v(t2)}, {v(t2)}')
        if self.opt['exact']:
            for k in range(0, 20, 2):
                e(f'v_cvt_pk_bf16_f32 {v(X+k+1)}, {v(X+k)}, {v(X+k+1)}')
        self.bfround(v(t2))
        e(f'v_rcp_f32 {v(t2)}, {v(t2)}')
        if self.opt['exact']:
            for k in range(0, 20, 2):
                e(f'v_lshlrev_b32 {v(X+k)}, 16, {v(X+k+1)}')
                e(f'v_and_b32 {v(X+k+1)}, 0xffff0000, {v(X+k+1)}')
        e(f'v_mov_b32 {v(t2+1)}, {v(t2)}')
        outs = OUT if isinstance(OUT, list) else list(range(OUT, OUT + 10))
        for k in range(0, 20, 2):
            e(f'v_pk_mul_f32 {v(X+k,2)}, {v(X+k,2)}, {v(t2,2)}')
        for k in range(0, 20, 2):
            e(f'v_cvt_pk_bf16_f32 {v(outs[k//2])}, {v(X+k)}, {v(X+k+1)}')

    def rowlane_addr(self, dst, tmp):
        e = self.A.e
        e(f'v_lshrrev_b32 {dst}, 5, v0')
        e(f'v_mul_u32_u24 {dst}, 1280, {dst}')
        e(f'v_and_b32 {tmp}, 15, v0')
        e(f'v_lshl_add_u32 {dst}, {tmp}, 4, {dst}')
        e(f'v_bfe_u32 {tmp}, v0, 4, 1')
        e(f'v_lshl_add_u32 {dst}, {tmp}, 3, {dst}')

    def unpack(self, dst, src, n):
        e = self.A.e
        for k in range(n):
            e(f'v_lshlrev_b32 {v(dst+2*k)}, 16, {v(src+k)}')
            e(f'v_and_b32 {v(dst+2*k+1)}, 0xffff0000, {v(src+k)}')

    def ln1_phase(self):
        e = self.A.e
        self.srd(SRA, 'x')
        e(f's_sub_u32 s64, {sSLOT}, 21')
        e('s_lshl_b32 s64, s64, 2')
        e(f's_add_u32 s64, s64, {sW}')
        self.rowlane_addr('v2', 'v3')
        e('v_mov_b32 v4, 0')
        e('s_mov_b64 exec, 1')
        e('s_lshl_b32 s65, s64, 5')
        e(f's_lshl_b32 s66, {sCLS}, 2')
        e('s_add_u32 s65, s65, s66')
        e(f'buffer_store_dword v4, off, {WS}, s65 offset:{P_LN1} sc1')
        e('s_cmp_ge_u32 s64, 20')
        l = self.A.lab('z2')
        e(f's_cbranch_scc1 {l}')
        e(f'buffer_store_dword v4, off, {WS}, s65 offset:{P_LN1 + 44*32} sc1')
        e(f'{l}:')
        e('s_mov_b64 exec, -1')

    def ln1_items(self):
        e = self.A.e
        lp, done = self.A.lab('ln1'), self.A.lab('ln1d')
        e(f's_mul_i32 s66, {sCLS}, 5120')
        e(f'{lp}:')
        e(f's_mul_i32 s67, s64, {SEGB}')
        e('s_add_u32 s67, s67, s66')
        for p in range(2):
            for cg in range(5):
                e(f'buffer_load_dwordx2 {v(16+10*p+2*cg,2)}, v2, {SRA}, s67 offen offset:{p*2560+cg*256}')
        e(f's_add_u32 s68, s67, {XN1}')
        for p in range(2):
            e(f's_waitcnt vmcnt({5 if p == 0 else 5})')
            if p == 1:
                e('s_waitcnt vmcnt(5)')
            self.unpack(40, 16 + 10 * p, 10)
            self.ln_pair(40, 60 + 10 * p, 80)
            for cg in range(5):
                e(f'buffer_store_dwordx2 {v(60+10*p+2*cg,2)}, v2, {WS}, s68 offen offset:{p*2560+cg*256} sc1')
        e('s_waitcnt vmcnt(0)')
        e(f's_add_u32 s68, s65, {P_LN1}')
        self.signal('v4', 's68', 1)
        e('s_cmp_ge_u32 s64, 20')
        e(f's_cbranch_scc1 {done}')
        e('s_add_u32 s64, s64, 44')
        e(f's_add_u32 s65, s65, {44*32}')
        e(f's_branch {lp}')
        e(f'{done}:')

    def xn_consts(self, vdma, vrd):
        e = self.A.e
        e('v_lshrrev_b32 v1, 3, v0')
        e('v_and_b32 v2, 7, v0')
        e('v_xor_b32 v2, v2, v1')
        e(f's_and_b32 s60, {sW}, 1')
        e('v_xor_b32 v2, s60, v2')
        e(f's_lshl_b32 s60, {sW}, 3')
        e('v_add_u32 v1, s60, v1')
        e('v_mul_u32_u24 v1, 1280, v1')
        e(f'v_lshl_add_u32 {v(vdma)}, v2, 4, v1')
        e('v_bfe_u32 v1, v0, 3, 2')
        e('v_and_b32 v2, 7, v0')
        e('v_mul_u32_u24 v3, 10240, v1')
        e('v_lshl_add_u32 v3, v2, 7, v3')
        e('v_and_b32 v1, 1, v1')
        e('v_xor_b32 v2, v2, v1')
        e('v_lshrrev_b32 v1, 5, v0')
        e('v_xor_b32 v2, v2, v1')
        for q in range(4):
            e(f'v_xor_b32 v1, {2*q}, v2')
            e(f'v_lshl_add_u32 {v(vrd+q)}, v1, 4, v3')

    def xn_consts16(self, vdma, vrd):
        e = self.A.e
        e('v_lshrrev_b32 v1, 3, v0')
        e('v_and_b32 v2, 7, v0')
        e('v_xor_b32 v2, v2, v1')
        e(f's_lshl_b32 s60, {sW}, 3')
        e('v_add_u32 v1, s60, v1')
        e('v_mul_u32_u24 v1, 1280, v1')
        e(f'v_lshl_add_u32 {v(vdma)}, v2, 4, v1')
        e('v_bfe_u32 v1, v0, 3, 1')
        e('v_and_b32 v2, 7, v0')
        e('v_mul_u32_u24 v3, 10240, v1')
        e('v_lshl_add_u32 v3, v2, 7, v3')
        e('v_lshrrev_b32 v1, 4, v0')
        e('v_xor_b32 v2, v2, v1')
        for par in range(2):
            e(f'v_xor_b32 v1, {4*par}, v2')
            e(f'v_lshl_add_u32 {v(vrd+par)}, v1, 4, v3')
            e(f'v_add_u32 {v(vrd+2+par)}, 20480, {v(vrd+par)}')

    def perm_lane(self, dst):
        e = self.A.e
        e('v_bfe_u32 v1, v0, 4, 1')
        e('v_lshrrev_b32 v2, 5, v0')
        e('v_lshlrev_b32 v1, 5, v1')
        e('v_lshl_add_u32 v1, v2, 4, v1')
        e('v_and_b32 v2, 15, v0')
        e('v_add_u32 v1, v1, v2')
        e(f'v_lshlrev_b32 {dst}, 4, v1')

    def tr_lane16(self, dst, pitch, perm, extra_s=None):
        e = self.A.e
        if perm:
            e('v_lshrrev_b32 v1, 5, v0')
            e('v_lshlrev_b32 v1, 4, v1')
            e('v_bfe_u32 v2, v0, 4, 1')
            e('v_lshl_add_u32 v1, v2, 2, v1')
        else:
            e('v_lshrrev_b32 v1, 4, v0')
            e('v_lshlrev_b32 v1, 3, v1')
        e('v_bfe_u32 v2, v0, 2, 2')
        e('v_add_u32 v1, v1, v2')
        e(f'v_mul_u32_u24 v1, {pitch}, v1')
        e('v_and_b32 v2, 3, v0')
        e(f'v_lshl_add_u32 {dst}, v2, 3, v1')
        if extra_s:
            e(f'v_add_u32 {dst}, {extra_s}, {dst}')

    def xn_dma(self, vdma, ssoff, ldsbase):
        e = self.A.e
        e(f's_mul_i32 s60, {sW}, 10240')
        e(f's_add_u32 m0, s60, {ldsbase}')
        for cb in range(10):
            if cb:
                e('s_add_u32 m0, m0, 896')
            e(f'buffer_load_dwordx4 {v(vdma)}, {WS}, {ssoff} offen offset:{cb*128} sc1 lds')

    def tile_out(self, acc, pk, vw, vr, vg, soff, imm, relu=False):
        e = self.A.e
        for j in range(8):
            e(f'v_cvt_pk_bf16_f32 {v(pk+j)}, {v(acc+2*j)}, {v(acc+2*j+1)}')
        for j in range(4):
            e(f'ds_write_b64 {v(vw)}, {v(pk+2*j,2)} offset:{16*j}')
        e('s_waitcnt lgkmcnt(0)')
        e(f'ds_read_b128 {v(pk+8,4)}, {v(vr)}')
        e(f'ds_read_b128 {v(pk+12,4)}, {v(vr)} offset:1280')
        e('s_waitcnt lgkmcnt(1)')
        e(f'buffer_store_dwordx4 {v(pk+8,4)}, {v(vg)}, {WS}, {soff} offen offset:{imm} sc1')
        e('s_waitcnt lgkmcnt(0)')
        e(f'buffer_store_dwordx4 {v(pk+12,4)}, {v(vg+1)}, {WS}, {soff} offen offset:{imm} sc1')

    def tile_out_consts(self, vw, vr, vg, ldsbase):
        e = self.A.e
        e(f's_mul_i32 s60, {sW}, 2560')
        e(f's_add_u32 s60, s60, {ldsbase}')
        e('v_and_b32 v1, 31, v0')
        e('v_mul_u32_u24 v1, 80, v1')
        e('v_lshrrev_b32 v2, 5, v0')
        e('v_lshl_add_u32 v1, v2, 3, v1')
        e(f'v_add_u32 {v(vw)}, s60, v1')
        e('v_lshrrev_b32 v1, 2, v0')
        e('v_and_b32 v2, 3, v0')
        e('v_mul_u32_u24 v3, 80, v1')
        e('v_lshl_add_u32 v3, v2, 4, v3')
        e(f'v_add_u32 {v(vr)}, s60, v3')
        e('v_mul_u32_u24 v3, 1280, v1')
        e(f'v_lshl_add_u32 {v(vg)}, v2, 4, v3')
        e(f'v_add_u32 {v(vg+1)}, 20480, {v(vg)}')

    def tr_lane(self, dst, rowmul_hf, pitch, extra_s=None):
        e = self.A.e
        e('v_lshrrev_b32 v1, 5, v0')
        e(f'v_mul_u32_u24 v1, {rowmul_hf}, v1')
        e('v_bfe_u32 v2, v0, 2, 2')
        e('v_add_u32 v1, v1, v2')
        e(f'v_mul_u32_u24 v1, {pitch}, v1')
        e('v_bfe_u32 v2, v0, 4, 1')
        e('v_lshl_add_u32 v1, v2, 5, v1')
        e('v_and_b32 v2, 3, v0')
        e(f'v_lshl_add_u32 {dst}, v2, 3, v1')
        if extra_s:
            e(f'v_add_u32 {dst}, {extra_s}, {dst}')

    def build(self):
        e = self.A.e
        e(f'{NAME}_kernel:')
        e('s_cmp_ge_u32 s2, 256')
        e('s_cbranch_scc1 L_end')
        e('s_load_dwordx16 s[16:31], s[0:1], 0')
        e('s_load_dwordx8 s[32:39], s[0:1], 64')
        e('s_load_dwordx2 s[40:41], s[0:1], 96')
        e(f's_getreg_b32 {sCLS}, hwreg(HW_REG_XCC_ID, 0, 3)')
        if self.opt['skewx']:
            e('s_cmp_lt_u32 s2, 100')
            e(f's_cselect_b32 s60, 6, {sCLS}')
            e(f's_cmp_eq_u32 {sCLS}, 7')
            e(f's_cselect_b32 {sCLS}, s60, {sCLS}')
        e('v_lshrrev_b32 v1, 6, v0')
        e('v_and_b32 v0, 63, v0')
        e(f'v_readfirstlane_b32 {sW}, v1')
        e(f's_mov_b32 {sSPIN}, 0x200000')
        e(f's_mov_b32 {sFAST}, 0')
        e('s_waitcnt lgkmcnt(0)')
        e('s_mov_b32 s8, s40')
        e('s_and_b32 s9, s41, 0xffff')
        e(f's_mov_b32 s10, {WS_BYTES:#x}')
        e('s_mov_b32 s11, 0x20000')
        e('s_mov_b32 s12, s38')
        e('s_and_b32 s13, s39, 0xffff')
        e('s_mov_b32 s14, 256')
        e('s_mov_b32 s15, 0x20000')
        e('v_mov_b32 v3, 0')
        e(f's_cmp_lg_u32 {sW}, 0')
        e('s_cbranch_scc1 L_tk')
        e(f's_lshl_b32 s60, {sCLS}, 5')
        e('v_mov_b32 v2, 1')
        e('s_mov_b64 exec, 1')
        e(f'buffer_atomic_add v2, off, {DBG}, s60 sc0')
        e('s_waitcnt vmcnt(0)')
        e('ds_write_b32 v3, v2')
        e('s_waitcnt lgkmcnt(0)')
        e('s_mov_b64 exec, -1')
        if self.opt['warm0']:
            e('s_branch L_tk2')
        e('L_tk:')
        if self.opt['warm0']:
            e(f's_cmp_eq_u32 {sW}, 2')
            e(f's_cselect_b32 s44, s{PTR["wk"]}, s{PTR["wq"]}')
            e(f's_cselect_b32 s45, s{PTR["wk"]+1}, s{PTR["wq"]+1}')
            e(f's_cmp_eq_u32 {sW}, 3')
            e(f's_cselect_b32 s44, s{PTR["wv"]}, s44')
            e(f's_cselect_b32 s45, s{PTR["wv"]+1}, s45')
            e('s_and_b32 s45, s45, 0xffff')
            e(f's_mov_b32 s46, {NBYTES["wq"]}')
            e('s_mov_b32 s47, 0x20000')
            e('s_lshr_b32 s60, s2, 3')
            e(f's_mul_i32 s60, s60, {self.opt["warm0"] * 12288}')
            e(f's_mul_i32 s61, {sCLS}, 1536')
            e('s_add_u32 s60, s60, s61')
            e('v_lshlrev_b32 v4, 4, v0')
            e('v_and_b32 v5, 31, v0')
            e('v_lshlrev_b32 v5, 4, v5')
            e('v_lshrrev_b32 v6, 5, v0')
            e('v_mul_u32_u24 v6, 12288, v6')
            e('v_add3_u32 v5, v5, v6, 4')
            e('v_add_u32 v5, 1020, v5')
            for r in range(self.opt['warm0']):
                e(f'buffer_load_dwordx4 v[8:11], v4, {SRA}, s60 offen')
                if r % 2 == 0:
                    e(f'buffer_load_dwordx4 v[8:11], v5, {SRA}, s60 offen')
                e('s_add_u32 s60, s60, 12288')
            e('L_tk2:')
        e('s_barrier')
        e('ds_read_b32 v2, v3')
        e('s_waitcnt lgkmcnt(0)')
        e(f'v_readfirstlane_b32 {sSLOT}, v2')
        e('s_barrier')
        e(f's_cmp_ge_u32 {sSLOT}, 32')
        e('s_cbranch_scc1 L_over')
        e('L_placed:')
        if self.diag:
            e(f's_lshl_b32 s97, {sCLS}, 5')
            e(f's_add_u32 s97, s97, {sSLOT}')
            e('s_lshl_b32 s97, s97, 2')
            e(f's_add_u32 s97, s97, {sW}')
            e('s_lshl_b32 s97, s97, 13')
            e(f's_add_u32 s97, s97, {TS}')
            self.stamp(0, real=True)
        self.dbgtime(2)
        e(f's_cmp_lt_u32 {sSLOT}, 12')
        e('s_cbranch_scc1 L_chain')
        e(f's_cmp_lt_u32 {sSLOT}, 21')
        e('s_cbranch_scc1 L_qkv')
        self.ln1_phase()
        self.rest_roles()
        e('L_over:')
        e(f's_cmp_lg_u32 {sW}, 0')
        e('s_cbranch_scc1 L_ov1')
        e('v_mov_b32 v2, 1')
        e('s_mov_b64 exec, 1')
        e(f'buffer_atomic_add v2, off, {DBG}, 0 offset:44 sc0')
        e('s_waitcnt vmcnt(0)')
        e('ds_write_b32 v3, v2')
        e('s_waitcnt lgkmcnt(0)')
        e('s_mov_b64 exec, -1')
        e('L_ov1:')
        e('s_barrier')
        e('ds_read_b32 v2, v3')
        e('s_waitcnt lgkmcnt(0)')
        e('v_readfirstlane_b32 s60, v2')
        e('s_barrier')
        e('v_lshlrev_b32 v4, 2, v0')
        e('L_ov2:')
        e(f'buffer_load_dword v2, v4, {DBG}, 0 offen sc1')
        e('s_waitcnt vmcnt(0)')
        e('s_mov_b32 s61, 0')
        for c in range(8):
            e(f'v_readlane_b32 s{64+c}, v2, {8*c}')
        for c in range(8):
            e(f's_add_u32 s61, s61, s{64+c}')
        e('s_cmp_gt_u32 s61, 256')
        e('s_cbranch_scc1 L_fail')
        e('s_cmp_eq_u32 s61, 256')
        e('s_cbranch_scc1 L_ov3')
        self.spin('L_ov2', 4)
        e('L_ov3:')
        for c in range(8):
            e(f's_min_u32 s61, s{64+c}, 32')
            e('s_sub_u32 s62, 32, s61')
            e(f's_mov_b32 {sCLS}, {c}')
            e(f's_add_u32 {sSLOT}, s61, s60')
            e('s_cmp_lt_u32 s60, s62')
            e('s_cbranch_scc1 L_placed')
            e('s_sub_u32 s60, s60, s62')
        e('L_fail:')
        e('v_mov_b32 v2, 1')
        e('s_mov_b64 exec, 1')
        e(f'buffer_atomic_add v2, off, {DBG}, 0 offset:4')
        e('s_waitcnt vmcnt(0)')
        e('L_end:')
        e('s_endpgm')
        if self.on('chain'):
            self.role_chain()
        else:
            e('L_chain:')
            self.arrive()
            e('s_endpgm')
        self.role_qkv()
        if self.opt['fake16']:
            import re
            out = []
            cnt = {}
            inattn = False
            for l in self.A.lines:
                if l.startswith('L_at_loop'):
                    inattn = True
                if l.startswith('L_r:'):
                    inattn = False
                m = re.match(r'v_mfma_f32_32x32x16_bf16 v\[(\d+):(\d+)\], (\S+), (\S+), (\S+)', l)
                if m and not inattn:
                    d = int(m.group(1))
                    if m.group(5) == '0':
                        cnt[d] = 0
                    k = cnt[d]
                    cnt[d] += 1
                    for h in range(2):
                        r = d + 4 * h + 8 * (k & 1)
                        c = '0' if k < 2 else v(r, 4)
                        out.append(f'v_mfma_f32_16x16x32_bf16 {v(r,4)}, {m.group(3)}, {m.group(4)}, {c}')
                else:
                    out.append(l)
            self.A.lines = out
        n = self.A.pad()
        head = open(os.path.join(os.path.dirname(os.path.abspath(__file__)), 'head.txt')).read()
        out = head + '; @launch grid=(256,1,1) block=(256,1,1) lds=163840\n'
        out += '.amdgcn_target "amdgcn-amd-amdhsa--gfx950"\n.text\n'
        out += f'.globl {NAME}_kernel\n.p2align 8\n.type {NAME}_kernel,@function\n'
        out += self.A.text()
        out += f'''.section .rodata,"a"
.p2align 6
.amdhsa_kernel {NAME}_kernel
  .amdhsa_next_free_vgpr 512
  .amdhsa_next_free_sgpr 102
  .amdhsa_accum_offset 256
  .amdhsa_group_segment_fixed_size 0
  .amdhsa_kernarg_size 104
  .amdhsa_user_sgpr_count 2
  .amdhsa_user_sgpr_kernarg_segment_ptr 1
  .amdhsa_system_sgpr_workgroup_id_x 1
.end_amdhsa_kernel
'''
        return out, n


if __name__ == '__main__':
    import argparse
    ap = argparse.ArgumentParser()
    ap.add_argument('-o', default='out.s')
    ap.add_argument('--L', type=int, default=6)
    ap.add_argument('--A', type=int, default=6)
    ap.add_argument('--roles', default='all')
    ap.add_argument('--diag', action='store_true')
    ap.add_argument('--slow', action='store_true')
    ap.add_argument('--nsteps', type=int, default=None)
    ap.add_argument('--opt', default='')
    args = ap.parse_args()
    opt = {k: int(x) for k, x in (kv.split('=') for kv in args.opt.split(',') if kv)}
    g = Gen(opt=opt, L=args.L, A=args.A, roles=args.roles, diag=args.diag, nsteps=args.nsteps, force_slow=args.slow)
    txt, n = g.build()
    open(args.o, 'w').write(txt)
    print('wrote', args.o, len(txt), 'bytes; nop states inserted:', n)
```
